```python
import torch

def _softmax(x, axis=-1):
    return torch.softmax(x, dim=axis)
def _gelu(x):
    return torch.nn.functional.gelu(x, approximate="tanh")
def _silu(x):
    return torch.nn.functional.silu(x)
def _sigmoid(x):
    return torch.sigmoid(x)
def _layernorm(x, axis=-1, eps=1e-5):
    m = x.mean(dim=axis, keepdim=True)
    v = x.var(dim=axis, keepdim=True, unbiased=False)
    return (x - m) / torch.sqrt(v + eps)
def _scatter_add(tgt, idx, src, axis=0):
    return tgt.clone().index_add_(axis, idx, src)
def _segment_sum(src, seg, n):
    out = torch.zeros((n,) + src.shape[1:], dtype=src.dtype)
    return out.index_add_(0, seg, src)
def _pad(x, pw):
    flat = tuple(v for pair in reversed(pw) for v in pair)
    return torch.nn.functional.pad(x, flat)

kernel_name = 'parallel_sum__sliding_block__glu_gated_reglu__prompt'

def setup_inputs():

    _w = (lambda a: (lambda t: t.to(torch.bfloat16) if t.is_floating_point() else t)(torch.as_tensor(a)))
    def _A_setup():
        B, S, D = 1, 2048, 512
        return {
            "x": _w((lambda *s: torch.randn(*s, dtype=torch.bfloat16) * 0.05)(B, S, D)),
            "wqkv": _w((lambda *s: torch.randn(*s, dtype=torch.bfloat16) * 0.05)(D, 3 * D)),
            "wo": _w((lambda *s: torch.randn(*s, dtype=torch.bfloat16) * 0.05)(D, D)),
        }
    _A_in = _A_setup()

    def _B_setup():
        B, S, D, F = 1, 2048, 512, 1376
        return {
            "x": _w((lambda *s: torch.randn(*s, dtype=torch.bfloat16) * 0.05)(B, S, D)),
            "W_gate": _w((lambda *s: torch.randn(*s, dtype=torch.bfloat16) * 0.8)(D, F) * (2.0 / D) ** 0.5),
            "W_up": _w((lambda *s: torch.randn(*s, dtype=torch.bfloat16) * 0.8)(D, F) * (2.0 / D) ** 0.5),
            "W_down": _w((lambda *s: torch.randn(*s, dtype=torch.bfloat16) * 0.8)(F, D) * (1.0 / F) ** 0.5),
        }
    _B_in = _B_setup()

    return {
        "A_x": _A_in["x"],
        "A_wqkv": _A_in["wqkv"],
        "A_wo": _A_in["wo"],
        "B_x": _B_in["x"],
        "B_W_gate": _B_in["W_gate"],
        "B_W_up": _B_in["W_up"],
        "B_W_down": _B_in["W_down"],
    }

def reference(A_x, A_wqkv, A_wo, B_x, B_W_gate, B_W_up, B_W_down):
    def _A_ref(x, wqkv, wo):
        B, S, D = x.shape
        H = 32; Dh = D // H; W = 256
        qkv = (lambda x, *d: x.permute(*d))((x @ wqkv).reshape(B, S, 3, H, Dh), 2, 0, 3, 1, 4)
        q, k, v = qkv[0], qkv[1], qkv[2]
        scores = torch.einsum("bhqd,bhkd->bhqk", q, k) * (Dh ** -0.5)
        idx = torch.arange(S)
        mask = (idx[:, None] - idx[None, :] >= 0) & (idx[:, None] - idx[None, :] < W)
        scores = torch.where(mask[None, None], scores, -1e9)
        p = _softmax(scores, axis=-1)
        o = torch.einsum("bhqk,bhkd->bhqd", p, v)
        return (lambda x, *d: x.permute(*d))(o, 0, 2, 1, 3).reshape(B, S, D) @ wo

    def _B_ref(x, W_gate, W_up, W_down):
        gate = torch.einsum("bsd,df->bsf", x, W_gate)
        up = torch.einsum("bsd,df->bsf", x, W_up)
        gate = gate * (lambda x, dt: x.to(dt))(gate > 0, gate.dtype)
        h = gate * up
        return torch.einsum("bsf,fd->bsd", h, W_down)

    x = A_x
    xn = _layernorm(x, axis=-1)
    return x + _A_ref(xn, A_wqkv, A_wo) + _B_ref(xn, B_W_gate, B_W_up, B_W_down)
```

```python
import re


def vr(lo, n=1):
    return f"v{lo}" if n == 1 else f"v[{lo}:{lo+n-1}]"


def sr(lo, n=1):
    return f"s{lo}" if n == 1 else f"s[{lo}:{lo+n-1}]"


_RE = re.compile(r"\b([vs])(\d+)\b|\b([vs])\[(\d+):(\d+)\]|\b(vcc|exec|m0|scc)\b")


def regs_of(text):
    out = []
    for m in _RE.finditer(text):
        if m.group(1):
            out.append((m.group(1), int(m.group(2))))
        elif m.group(3):
            for i in range(int(m.group(4)), int(m.group(5)) + 1):
                out.append((m.group(3), i))
        else:
            out.append((m.group(6), 0))
    return out


TRANS = ("v_exp_f32", "v_log_f32", "v_rcp_f32", "v_rsq_f32", "v_sqrt_f32", "v_sin_f32", "v_cos_f32")


class B:
    def __init__(self):
        self.lines = []
        self.pos = 0
        self.valu_w = {}
        self.trans_w = {}
        self.mfma_w = {}
        self.mfma_c = {}
        self.sgpr_vw = {}
        self.dot_w = {}
        self.store_d = {}
        self.m0_w = -100
        self.exec_valu_w = -100
        self.vm = []
        self.lg = []
        self.opt_depth = 0
        self.regions = []
        self.nlabel = 0
        self.ninstr = 0

    def raw(self, s):
        self.lines.append(s)

    def comment(self, s):
        self.lines.append("  ; " + s)

    def label(self, name):
        self.lines.append(name + ":")

    def newlabel(self, p="L"):
        self.nlabel += 1
        return f"{p}_{id(self) & 0xffff:x}_{self.nlabel}"

    def _emit(self, s, states=1):
        self.lines.append("  " + s)
        self.pos += states
        self.ninstr += 1

    def nop(self, n):
        while n > 0:
            k = min(n, 16)
            self._emit(f"s_nop {k-1}", k)
            n -= k

    def _need(self, p, ws):
        have = self.pos - p - 1
        if have < ws:
            self.nop(ws - have)

    def opt_begin(self):
        self.regions.append(self.pos)
        self.opt_depth += 1

    def opt_end(self):
        p0 = self.regions.pop()
        self.opt_depth -= 1
        pend = self.pos
        shift = pend - p0
        for d in (self.valu_w, self.trans_w, self.mfma_c, self.sgpr_vw, self.store_d):
            for k, v in d.items():
                if v >= p0:
                    d[k] = v - shift
        for d in (self.mfma_w, self.dot_w):
            for k, v in d.items():
                if v[0] >= p0:
                    d[k] = (v[0] - shift, v[1])
        if self.m0_w >= p0:
            self.m0_w -= shift
        if self.exec_valu_w >= p0:
            self.exec_valu_w -= shift
        self.pos = p0

    def forget(self, pad=0):
        if pad:
            self.nop(pad)

    def _chk_vread(self, regs, kind, op=None):
        for r in regs:
            if r[0] == 'v':
                i = r[1]
                if i in self.mfma_w:
                    p, k = self.mfma_w[i]
                    if kind == 'mfma_c':
                        pass
                    else:
                        self._need(p, 12 + 2)
                if i in self.valu_w:
                    p = self.valu_w[i]
                    if kind in ('mfma_ab', 'mfma_c', 'permlane', 'dpp'):
                        self._need(p, 2)
                    elif kind == 'readlane':
                        self._need(p, 1)
                if i in self.trans_w and kind in ('valu', 'permlane', 'dpp', 'readlane', 'mfma_ab', 'mfma_c', 'vmem', 'ds'):
                    self._need(self.trans_w[i], 1)
                if i in self.dot_w:
                    p, o = self.dot_w[i]
                    if not (kind == 'valu' and op == o):
                        self._need(p, 3)
            elif r[0] in ('s', 'vcc'):
                if r in self.sgpr_vw:
                    p = self.sgpr_vw[r]
                    if kind in ('vmem',):
                        self._need(p, 5)
                    elif kind in ('valu', 'permlane', 'dpp'):
                        self._need(p, 2)
                    elif kind == 'readlane':
                        self._need(p, 4)
                    elif kind == 'salu':
                        self._need(p, 1)

    def _chk_vwrite(self, regs, kind, op=None):
        for r in regs:
            if r[0] == 'v':
                i = r[1]
                if i in self.mfma_w and kind != 'mfma':
                    self._need(self.mfma_w[i][0], 12 + 2)
                if i in self.mfma_c and kind == 'valu':
                    self._need(self.mfma_c[i], 7 + 1)
                if i in self.store_d:
                    self._need(self.store_d[i], 2)
                if i in self.dot_w:
                    p, o = self.dot_w[i]
                    if not (kind == 'valu' and op == o):
                        self._need(p, 3)

    def valu(self, op, dst, *srcs, mods=""):
        dsts = dst if isinstance(dst, (list, tuple)) else [dst]
        rd = []
        for s in srcs:
            rd += regs_of(str(s))
        wr = []
        for d in dsts:
            wr += regs_of(d)
        kind = 'valu'
        if op.startswith('v_permlane'):
            kind = 'permlane'
            rd += wr
            wr = wr + regs_of(str(srcs[0]))
        elif op.startswith('v_readfirstlane') or op.startswith('v_readlane'):
            kind = 'readlane'
        elif 'dpp' in op:
            kind = 'dpp'
        if op.startswith('v_fmac') or op.startswith('v_dot2c'):
            rd += wr
        if op.startswith('v_cndmask') and len(srcs) == 2:
            rd.append(('vcc', 0))
        isdot = op.startswith('v_dot2')
        if isdot:
            for s in srcs[:2]:
                for r in regs_of(str(s)):
                    if r[0] == 'v' and r[1] in self.dot_w:
                        self._need(self.dot_w[r[1]][0], 3)
        self._chk_vread(rd, kind, op)
        self._chk_vwrite(wr, 'valu', op)
        txt = f"{op} " + ", ".join(list(dsts) + [str(s) for s in srcs])
        if op.startswith('v_cndmask') and len(srcs) == 2:
            txt += ", vcc"
        if mods:
            txt += " " + mods
        p = self.pos
        self._emit(txt)
        for r in wr:
            if r[0] == 'v':
                self.valu_w[r[1]] = p
                self.mfma_w.pop(r[1], None)
                self.trans_w.pop(r[1], None)
                self.dot_w.pop(r[1], None)
                if op.replace('_e32', '').replace('_e64', '') in TRANS:
                    self.trans_w[r[1]] = p
                if isdot:
                    self.dot_w[r[1]] = (p, op)
            elif r[0] in ('s', 'vcc'):
                self.sgpr_vw[r] = p
            elif r[0] == 'exec':
                self.exec_valu_w = p

    def salu(self, op, *ops):
        rd = []
        for s in ops[1:]:
            rd += regs_of(str(s))
        if op.startswith('s_cmp') or op.startswith('s_cbranch'):
            rd += regs_of(str(ops[0])) if ops else []
        self._chk_vread(rd, 'salu')
        p = self.pos
        self._emit(f"{op} " + ", ".join(str(o) for o in ops))
        if ops and not (op.startswith('s_cmp') or op.startswith('s_cbranch')):
            for r in regs_of(str(ops[0])):
                if r[0] == 'm0':
                    self.m0_w = p
                self.sgpr_vw.pop(r, None)

    def branch(self, op, target):
        if op in ('s_cbranch_vccz', 's_cbranch_vccnz') and ('vcc', 0) in self.sgpr_vw:
            self._need(self.sgpr_vw[('vcc', 0)], 5)
        self._emit(f"{op} {target}")

    def mfma(self, d, a, b, c, op="v_mfma_f32_32x32x16_bf16"):
        rd_ab = regs_of(a) + regs_of(b)
        rc = regs_of(str(c))
        wr = regs_of(d)
        self._chk_vread(rd_ab, 'mfma_ab')
        self._chk_vread(rc, 'mfma_c')
        for r in rc:
            if r[0] == 'v' and r[1] in self.mfma_w:
                p, k = self.mfma_w[r[1]]
                if k != str(c):
                    self._need(p, 10 + 1)
        for r in wr:
            if r[1] in self.mfma_w:
                p, k = self.mfma_w[r[1]]
                if k != d:
                    self._need(p, 10 + 1)
            if r[1] in self.store_d:
                self._need(self.store_d[r[1]], 2)
        self._need(self.exec_valu_w, 4)
        p = self.pos
        self._emit(f"{op} {d}, {a}, {b}, {c}")
        for r in wr:
            self.mfma_w[r[1]] = (p, d)
            self.valu_w.pop(r[1], None)
            self.trans_w.pop(r[1], None)
            self.dot_w.pop(r[1], None)
        for r in rc:
            if r[0] == 'v':
                self.mfma_c[r[1]] = p

    def _push(self, q, tag):
        q.append((tag, self.opt_depth > 0))

    def vmem_load(self, op, dst, vaddr, srd, soff, mods="", tag=None):
        self._chk_vread(regs_of(vaddr) + regs_of(srd) + regs_of(str(soff)), 'vmem')
        self._chk_vwrite(regs_of(dst), 'vmem')
        self._emit(f"{op} {dst}, {vaddr}, {srd}, {soff} offen {mods}".rstrip())
        for r in regs_of(dst):
            self.valu_w.pop(r[1], None); self.mfma_w.pop(r[1], None); self.trans_w.pop(r[1], None); self.dot_w.pop(r[1], None)
        self._push(self.vm, tag)

    def vmem_dma(self, vaddr, srd, soff, mods="", tag=None, op="buffer_load_dwordx4"):
        self._chk_vread(regs_of(vaddr) + regs_of(srd) + regs_of(str(soff)), 'vmem')
        self._need(self.m0_w, 1)
        self._emit(f"{op} {vaddr}, {srd}, {soff} offen {mods} lds".replace("  ", " "))
        self._push(self.vm, tag)

    def vmem_store(self, op, data, vaddr, srd, soff, mods="", tag=None):
        self._chk_vread(regs_of(data) + regs_of(vaddr) + regs_of(srd) + regs_of(str(soff)), 'vmem')
        p = self.pos
        self._emit(f"{op} {data}, {vaddr}, {srd}, {soff} offen {mods}".rstrip())
        for r in regs_of(data):
            self.store_d[r[1]] = p
        self._push(self.vm, tag)

    def ds_read(self, op, dst, vaddr, offset=0, tag=None):
        assert 0 <= offset < 65536, offset
        self._chk_vread(regs_of(vaddr), 'ds')
        self._chk_vwrite(regs_of(dst), 'ds')
        self._emit(f"{op} {dst}, {vaddr} offset:{offset}")
        for r in regs_of(dst):
            self.valu_w.pop(r[1], None); self.mfma_w.pop(r[1], None); self.trans_w.pop(r[1], None); self.dot_w.pop(r[1], None)
        self._push(self.lg, tag)

    def ds_write(self, op, vaddr, data, offset=0, tag=None):
        assert 0 <= offset < 65536, offset
        self._chk_vread(regs_of(vaddr) + regs_of(data), 'ds')
        self._emit(f"{op} {vaddr}, {data} offset:{offset}")
        self._push(self.lg, tag)

    def _count_after(self, q, tags):
        last = -1
        for i, (t, o) in enumerate(q):
            if t in tags:
                last = i
        if last < 0:
            return None, q
        n = sum(1 for (t, o) in q[last + 1:] if not o)
        return n, q[last + 1:]

    def wait(self, vm=None, lg=None):
        parts = []
        if vm is not None:
            if vm == 0:
                if True:
                    parts.append("vmcnt(0)")
                if self.opt_depth == 0:
                    self.vm = []
            else:
                tags = set(vm) if isinstance(vm, (list, tuple, set)) else {vm}
                n, rest = self._count_after(self.vm, tags)
                if n is not None:
                    parts.append(f"vmcnt({min(n, 63)})")
                    if self.opt_depth == 0:
                        self.vm = rest
        if lg is not None:
            if lg == 0:
                parts.append("lgkmcnt(0)")
                if self.opt_depth == 0:
                    self.lg = []
            else:
                tags = set(lg) if isinstance(lg, (list, tuple, set)) else {lg}
                n, rest = self._count_after(self.lg, tags)
                if n is not None:
                    parts.append(f"lgkmcnt({min(n, 15)})")
                    if self.opt_depth == 0:
                        self.lg = rest
        if parts:
            self._emit("s_waitcnt " + " ".join(parts))

    def barrier(self):
        self._emit("s_barrier")

    def text(self):
        return "\n".join(self.lines) + "\n"
```

```python
from asmb import *
import os
OPT = set(os.environ.get('K1OPT', '').split(','))

QF = 0x000000
KF = 0x200000
VF = 0x400000
HF = 0x600000
HF_RB = 86 * 2048
OF = 0xC00000
FL = 0xE00000
WS_USED = 0xE10000

NSLOT = 9
SLOT = 16384
MISC = NSLOT * SLOT
CS_OFF = MISC
CSS_OFF = MISC + 1024
ST_OFF = MISC + 2048
LDS_K1 = MISC + 4096

QSCALE = 0.25 * 1.4426950408889634

import struct
def f32bits(x):
    return struct.unpack("<I", struct.pack("<f", x))[0]

S_X, S_W, S_WS = 24, 28, 32
S_WV, S_R, S_P, S_RB, S_CG, S_G = 36, 37, 38, 39, 40, 41
S_W2K, S_SOFF, S_T0, S_T1, S_T2, S_ONES, S_SCALE = 42, 43, 44, 45, 46, 47, 48
S_OB = 49
S_T3 = 50

V_LANE = 0
V_XO0, V_XO1, V_WO0, V_WO1, V_SO0, V_SO1 = 1, 2, 3, 4, 5, 6
V_TR = 7
V_XB = 13
V_XT = 16
V_SUM, V_SQ, V_CSA = 17, 18, 19
V_RS, V_NM = 20, 21
V_STO = 22
V_CSRD = 23
V_CSWR = 24
V_T0, V_T1, V_T2 = 25, 26, 27
V_STR = 28
V_NCS = 30
V_RING = 32
V_TMP = 56
V_ACC = 64
V_X = 128


STAMPS = False
S_ST = 64
def stamp(b, i):
    if STAMPS:
        b.raw(f"  {'s_memtime' if 'cyc' in OPT else 's_memrealtime'} s[{S_ST+2*i}:{S_ST+2*i+1}]")

def stamp_out(b, n, base=0, wave=0):
    if not STAMPS:
        return
    b.raw("  s_waitcnt vmcnt(0)")
    stamp(b, n - 1)
    b.raw("  s_waitcnt lgkmcnt(0)")
    l = b.newlabel("stamp")
    b.raw(f"  s_cmp_lg_u32 s{S_WV}, {wave}")
    b.raw(f"  s_cbranch_scc1 {l}")
    b.raw(f"  s_mov_b32 s{S_WS+2}, 0x1000000")
    b.raw("  s_lshl_b32 s3, s2, 2")
    b.raw(f"  s_add_u32 s3, s3, {0xF00000 + base*1024}")
    b.raw("  v_mov_b32 v1, 0")
    for i in range(n):
        b.raw(f"  v_mov_b32 v2, s{S_ST+2*i}")
        b.raw(f"  buffer_store_dword v2, v1, s[{S_WS}:{S_WS+3}], s3 offen")
        b.raw("  s_add_u32 s3, s3, 1024")
        b.raw("  s_nop 1")
    b.raw(l + ":")

def k1(store_mods="sc1", name="k1_kernel", prefetch_code=None):
    b = B()
    b.raw(f".globl {name}\n.p2align 8\n.type {name},@function\n{name}:")
    L_END = name + "_end"
    b.salu("s_cmp_ge_u32", "s2", 256)
    b.branch("s_cbranch_scc1", L_END)
    stamp(b, 0)
    b.raw("  s_load_dwordx16 s[4:19], s[0:1], 0")
    b.raw("  s_load_dwordx4 s[20:23], s[0:1], 64")
    b.valu("v_lshrrev_b32", vr(V_T0), 6, "v0")
    b.valu("v_and_b32", vr(V_LANE), 63, "v0")
    b.valu("v_readfirstlane_b32", sr(S_WV), vr(V_T0))
    b.salu("s_and_b32", sr(S_T0), "s2", 1)
    b.salu("s_lshl_b32", sr(S_T0), sr(S_T0), 3)
    b.salu("s_bfe_u32", sr(S_T1), "s2", (3 << 16) | 3)
    b.salu("s_add_u32", sr(S_RB), sr(S_T0), sr(S_T1))
    b.salu("s_bfe_u32", sr(S_T0), "s2", (2 << 16) | 1)
    b.salu("s_lshl_b32", sr(S_T0), sr(S_T0), 2)
    b.salu("s_lshr_b32", sr(S_T1), "s2", 6)
    b.salu("s_add_u32", sr(S_CG), sr(S_T0), sr(S_T1))
    b.salu("s_and_b32", sr(S_R), sr(S_WV), 3)
    b.salu("s_lshr_b32", sr(S_P), sr(S_WV), 2)
    b.salu("s_lshl_b32", sr(S_W2K), sr(S_WV), 11)
    b.salu("s_mov_b32", sr(S_ONES), "0x3f803f80")
    b.valu("v_lshrrev_b32", vr(V_T0), 3, vr(V_LANE))
    b.salu("s_lshl_b32", sr(S_T0), sr(S_WV), 4)
    b.valu("v_add_u32", vr(V_T1), sr(S_T0), vr(V_T0))
    for i, dst in ((0, V_XO0), (1, V_XO1)):
        if i == 1:
            b.valu("v_add_u32", vr(V_T1), 8, vr(V_T1))
        b.valu("v_lshrrev_b32", vr(V_T2), 1, vr(V_T1))
        b.valu("v_xor_b32", vr(V_T2), vr(V_T2), vr(V_LANE))
        b.valu("v_and_b32", vr(V_T2), 7, vr(V_T2))
        b.valu("v_lshlrev_b32", vr(V_T2), 4, vr(V_T2))
        b.valu("v_lshl_add_u32", vr(dst), vr(V_T1), 10, vr(V_T2))
    b.valu("v_subrev_u32", vr(V_XO1), 1024, vr(V_XO1))
    b.valu("v_and_b32", vr(V_T0), 31, vr(V_LANE))
    b.salu("s_lshl_b32", sr(S_T0), sr(S_R), 5)
    b.valu("v_add_u32", vr(V_T0), sr(S_T0), vr(V_T0))
    b.valu("v_lshrrev_b32", vr(V_T1), 1, vr(V_T0))
    b.valu("v_lshrrev_b32", vr(V_T2), 5, vr(V_LANE))
    b.valu("v_xor_b32", vr(V_T1), vr(V_T1), vr(V_T2))
    b.valu("v_and_b32", vr(V_T1), 7, vr(V_T1))
    b.valu("v_lshlrev_b32", vr(V_T1), 4, vr(V_T1))
    b.valu("v_lshl_add_u32", vr(V_XB), vr(V_T0), 7, vr(V_T1))
    b.valu("v_add_u32", vr(V_XB + 1), 0x10000, vr(V_XB))
    b.valu("v_add_u32", vr(V_XB + 2), 0x20000, vr(V_XB))
    b.valu("v_mov_b32", vr(V_SUM), 0)
    b.valu("v_mov_b32", vr(V_SQ), 0)
    b.valu("v_mov_b32", vr(V_CSA), 0)
    b.wait(lg=0)
    b.salu("s_lshl_b32", sr(S_T0), sr(S_RB), 17)
    b.salu("s_add_u32", sr(S_X), "s4", sr(S_T0))
    b.salu("s_addc_u32", sr(S_X + 1), "s5", 0)
    b.salu("s_mov_b32", sr(S_X + 2), 0x20000)
    b.salu("s_mov_b32", sr(S_X + 3), 0x20000)
    b.salu("s_mov_b32", sr(S_WS), "s22")
    b.salu("s_mov_b32", sr(S_WS + 1), "s23")
    b.salu("s_mov_b32", sr(S_WS + 2), WS_USED)
    b.salu("s_mov_b32", sr(S_WS + 3), 0x20000)
    b.salu("s_mov_b32", sr(S_W + 3), 0x20000)
    b.salu("s_cmp_lg_u32", sr(S_WV), 0)
    b.branch("s_cbranch_scc1", name + "_nz")
    b.salu("s_lshl_b32", sr(S_T0), "s2", 7)
    b.salu("s_add_u32", sr(S_T0), sr(S_T0), FL)
    b.vmem_store("buffer_store_dword", vr(V_SUM), vr(V_SUM), sr(S_WS, 4), sr(S_T0), mods="sc1")
    b.label(name + "_nz")
    L_V, L_F = name + "_v", name + "_f"
    b.salu("s_cmp_ge_u32", sr(S_CG), 6)
    b.branch("s_cbranch_scc1", L_F)
    b.salu("s_cmp_ge_u32", sr(S_CG), 4)
    b.branch("s_cbranch_scc1", L_V)
    txt = b.text()
    for typ, lab in (("qk", None), ("v", L_V), ("f", L_F)):
        bb = B()
        bb.nlabel = {"qk": 1000, "v": 2000, "f": 3000}[typ]
        if lab:
            bb.label(lab)
        path(bb, typ, store_mods, name)
        txt += bb.text()
        print(f"k1 path {typ}: {bb.ninstr} instrs")
    txt += f"{L_END}:\n  s_endpgm\n"
    return txt


def path(b, typ, store_mods, name):
    ffn = typ == "f"
    stride = 2752 if ffn else 3072
    lab = lambda s: f"{name}_{typ}_{s}"
    if ffn:
        b.salu("s_sub_u32", sr(S_G), sr(S_CG), 6)
        b.salu("s_cmp_eq_u32", sr(S_P), 0)
        b.salu("s_cselect_b32", sr(S_W), "s12", "s14")
        b.salu("s_cselect_b32", sr(S_W + 1), "s13", "s15")
        b.salu("s_mov_b32", sr(S_W + 2), 512 * 2752)
        b.salu("s_lshl_b32", sr(S_T0), sr(S_G), 8)
    else:
        b.salu("s_mov_b32", sr(S_W), "s6")
        b.salu("s_mov_b32", sr(S_W + 1), "s7")
        b.salu("s_mov_b32", sr(S_W + 2), 512 * 3072)
        b.salu("s_lshl_b32", sr(S_T0), sr(S_CG), 9)
        b.salu("s_lshl_b32", sr(S_T1), sr(S_P), 7)
        b.salu("s_add_u32", sr(S_T0), sr(S_T0), sr(S_T1))
    b.salu("s_mul_i32", sr(S_T1), sr(S_R), 16 * stride)
    b.salu("s_add_u32", sr(S_T0), sr(S_T0), sr(S_T1))
    b.valu("v_lshrrev_b32", vr(V_T0), 3, vr(V_LANE))
    b.valu("v_mul_u32_u24", vr(V_T0), stride, vr(V_T0))
    b.valu("v_add_u32", vr(V_T0), sr(S_T0), vr(V_T0))
    b.valu("v_bfe_u32", vr(V_T1), vr(V_LANE), 4, 1)
    if ffn:
        b.valu("v_lshlrev_b32", vr(V_T1), 1, vr(V_T1))
        b.salu("s_lshl_b32", sr(S_T1), sr(S_P), 2)
        b.valu("v_or_b32", vr(V_T1), sr(S_T1), vr(V_T1))
    else:
        b.valu("v_lshlrev_b32", vr(V_T1), 2, vr(V_T1))
    b.valu("v_xor_b32", vr(V_T1), vr(V_T1), vr(V_LANE))
    b.valu("v_and_b32", vr(V_T1), 7, vr(V_T1))
    b.valu("v_lshl_add_u32", vr(V_WO0), vr(V_T1), 4, vr(V_T0))
    b.valu("v_add_u32", vr(V_WO1), 8 * stride - 1024, vr(V_WO0))

    units = []
    for t in range(8):
        units += [("X", t), ("W", t)]
    for t in range(8):
        units += [("W", 8 + t)]
    if ffn:
        units += [("S", 0), ("S", 1)]
    phase_units = {t: [("X", t), ("W", t)] for t in range(8)}
    for t in range(8, 16):
        phase_units[t] = [("W", t)]
    if ffn:
        phase_units[16] = [("S", 0), ("S", 1)]
    slot_of = {}
    free = list(range(NSLOT))
    nxt = [0]

    def issue_unit(u):
        sl = free.pop(0)
        slot_of[u] = sl
        k, i = u
        tag = f"{k}{i}"
        b.salu("s_add_u32", "m0", sr(S_W2K), sl * SLOT)
        if k == "X":
            so = i * 128
            v0, v1, srd = V_XO0, V_XO1, S_X
        elif k == "W":
            so = (i % 8) * 64 * stride + (i // 8) * (128 if ffn else 256)
            v0, v1, srd = V_WO0, V_WO1, S_W
        else:
            so = i * 256 * stride
            v0, v1, srd = V_SO0, V_SO1, S_W
        if so <= 64:
            sot = str(so)
        else:
            b.salu("s_mov_b32", sr(S_SOFF), so)
            sot = sr(S_SOFF)
        b.vmem_dma(vr(v0), sr(srd, 4), sot, tag=tag)
        b.vmem_dma(vr(v1), sr(srd, 4), sot, mods="offset:1024", tag=tag)

    def issue_more(maxn=99):
        n = 0
        while free and nxt[0] < len(units) and n < maxn:
            issue_unit(units[nxt[0]])
            nxt[0] += 1
            n += 1

    issue_more()

    b.valu("v_lshrrev_b32", vr(V_T0), 5, vr(V_LANE))
    b.valu("v_lshlrev_b32", vr(V_T0), 3, vr(V_T0))
    b.valu("v_bfe_u32", vr(V_T1), vr(V_LANE), 2, 2)
    b.valu("v_add_u32", vr(V_T0), vr(V_T0), vr(V_T1))
    b.valu("v_and_b32", vr(V_T2), 3, vr(V_LANE))
    b.valu("v_lshlrev_b32", vr(V_T2), 3, vr(V_T2))
    b.valu("v_lshl_add_u32", vr(V_XT), vr(V_T0), 7, vr(V_T2))
    if ffn:
        b.valu("v_lshl_add_u32", vr(V_STR), vr(V_T0), 5, vr(V_T2))
        b.valu("v_bfe_u32", vr(V_T2), vr(V_LANE), 4, 1)
        b.valu("v_lshl_add_u32", vr(V_STR), vr(V_T2), 13, vr(V_STR))
        b.valu("v_lshl_add_u32", vr(V_STR), vr(V_T2), 7, vr(V_STR))
        b.valu("v_xor_b32", vr(V_STR + 1), 128, vr(V_STR))
    b.valu("v_lshrrev_b32", vr(V_T1), 1, vr(V_T1))
    b.valu("v_bfe_u32", vr(V_T2), vr(V_LANE), 4, 1)
    if ffn:
        b.valu("v_lshl_add_u32", vr(V_T1), vr(V_T2), 1, vr(V_T1))
        b.salu("s_lshl_b32", sr(S_T0), sr(S_P), 1)
        b.valu("v_xor_b32", vr(V_T1), sr(S_T0), vr(V_T1))
        b.valu("v_lshl_add_u32", vr(V_XT), vr(V_T2), 13, vr(V_XT))
        b.valu("v_lshl_add_u32", vr(V_TR), vr(V_T1), 5, vr(V_XT))
        b.valu("v_xor_b32", vr(V_TR + 3), 32, vr(V_TR))
    else:
        b.valu("v_lshl_add_u32", vr(V_T1), vr(V_T1), 1, vr(V_T2))
        b.salu("s_lshl_b32", sr(S_T0), sr(S_P), 13)
        b.valu("v_add_u32", vr(V_XT), sr(S_T0), vr(V_XT))
        b.valu("v_lshl_add_u32", vr(V_TR), vr(V_T1), 5, vr(V_XT))
        b.valu("v_xor_b32", vr(V_TR + 3), 64, vr(V_TR))
    for j in range(2):
        b.valu("v_add_u32", vr(V_TR + 3 * j + 1), 0x10000, vr(V_TR + 3 * j))
        b.valu("v_add_u32", vr(V_TR + 3 * j + 2), 0x20000, vr(V_TR + 3 * j))
    if ffn:
        b.valu("v_lshrrev_b32", vr(V_T0), 1, vr(V_LANE))
        b.salu("s_lshl_b32", sr(S_T0), sr(S_P), 2)
        b.valu("v_xor_b32", vr(V_T0), sr(S_T0), vr(V_T0))
        b.valu("v_mul_u32_u24", vr(V_T0), stride, vr(V_T0))
        b.salu("s_mul_i32", sr(S_T0), sr(S_R), 64 * stride)
        b.salu("s_lshl_b32", sr(S_T1), sr(S_G), 5)
        b.salu("s_add_u32", sr(S_T0), sr(S_T0), sr(S_T1))
        b.salu("s_add_u32", sr(S_T0), sr(S_T0), 80 * 32)
        b.salu("s_cmp_lt_u32", sr(S_G), 6)
        b.salu("s_cselect_b32", sr(S_T0), sr(S_T0), "0x40000000")
        b.valu("v_add_u32", vr(V_T0), sr(S_T0), vr(V_T0))
        b.valu("v_and_b32", vr(V_T1), 1, vr(V_LANE))
        b.valu("v_lshl_add_u32", vr(V_SO0), vr(V_T1), 4, vr(V_T0))
        b.valu("v_add_u32", vr(V_SO1), 32 * stride - 1024, vr(V_SO0))
    b.salu("s_and_b32", sr(S_T0), sr(S_R), 1)
    b.salu("s_lshl_b32", sr(S_T1), sr(S_P), 1)
    b.salu("s_add_u32", sr(S_T0), sr(S_T0), sr(S_T1))
    b.salu("s_lshl_b32", sr(S_T0), sr(S_T0), 7)
    b.salu("s_lshr_b32", sr(S_T1), sr(S_R), 1)
    b.salu("s_lshl_b32", sr(S_T1), sr(S_T1), 9)
    b.salu("s_add_u32", sr(S_T0), sr(S_T0), sr(S_T1))
    b.salu("s_add_u32", sr(S_T0), sr(S_T0), CS_OFF)
    b.valu("v_and_b32", vr(V_T0), 31, vr(V_LANE))
    b.valu("v_lshlrev_b32", vr(V_T0), 2, vr(V_T0))
    b.valu("v_add_u32", vr(V_CSWR), sr(S_T0), vr(V_T0))
    b.salu("s_lshl_b32", sr(S_T0), sr(S_P), 8)
    b.salu("s_add_u32", sr(S_T0), sr(S_T0), CS_OFF)
    if typ == "v":
        b.valu("v_add_u32", vr(V_CSRD), sr(S_T0), vr(V_T0))
    else:
        b.valu("v_lshrrev_b32", vr(V_T0), 5, vr(V_LANE))
        b.valu("v_lshlrev_b32", vr(V_T0), 4, vr(V_T0))
        b.valu("v_add_u32", vr(V_CSRD), sr(S_T0), vr(V_T0))
    b.salu("s_lshl_b32", sr(S_T0), sr(S_RB), 2)
    b.salu("s_add_u32", sr(S_T0), sr(S_T0), sr(S_R))
    if typ == "qk":
        b.salu("s_lshr_b32", sr(S_T1), sr(S_CG), 1)
        b.salu("s_lshl_b32", sr(S_OB), sr(S_T1), 21)
        b.salu("s_cmp_eq_u32", sr(S_T1), 0)
        b.salu("s_cselect_b32", sr(S_SCALE), hex(f32bits(QSCALE)), "1.0")
        b.salu("s_and_b32", sr(S_T1), sr(S_CG), 1)
        b.salu("s_lshl_b32", sr(S_T1), sr(S_T1), 20)
        b.salu("s_add_u32", sr(S_OB), sr(S_OB), sr(S_T1))
        b.salu("s_lshl_b32", sr(S_T1), sr(S_P), 18)
        b.salu("s_add_u32", sr(S_OB), sr(S_OB), sr(S_T1))
        b.salu("s_lshl_b32", sr(S_T1), sr(S_T0), 10)
        b.salu("s_add_u32", sr(S_OB), sr(S_OB), sr(S_T1))
        b.valu("v_lshlrev_b32", vr(V_STO), 4, vr(V_LANE))
    elif typ == "v":
        b.salu("s_and_b32", sr(S_T1), sr(S_CG), 1)
        b.salu("s_lshl_b32", sr(S_OB), sr(S_T1), 20)
        b.salu("s_add_u32", sr(S_OB), sr(S_OB), VF)
        b.salu("s_lshl_b32", sr(S_T1), sr(S_P), 18)
        b.salu("s_add_u32", sr(S_OB), sr(S_OB), sr(S_T1))
        b.salu("s_lshl_b32", sr(S_T1), sr(S_T0), 10)
        b.salu("s_add_u32", sr(S_OB), sr(S_OB), sr(S_T1))
        b.valu("v_and_b32", vr(V_T0), 15, vr(V_LANE))
        b.valu("v_lshlrev_b32", vr(V_T0), 4, vr(V_T0))
        b.valu("v_lshrrev_b32", vr(V_T1), 5, vr(V_LANE))
        b.valu("v_lshl_add_u32", vr(V_T0), vr(V_T1), 8, vr(V_T0))
        b.valu("v_bfe_u32", vr(V_T1), vr(V_LANE), 4, 1)
        b.valu("v_lshl_add_u32", vr(V_STO), vr(V_T1), 16, vr(V_T0))
    else:
        b.salu("s_lshr_b32", sr(S_T1), sr(S_T0), 1)
        b.salu("s_mul_i32", sr(S_OB), sr(S_T1), HF_RB)
        b.salu("s_add_u32", sr(S_OB), sr(S_OB), HF)
        b.salu("s_and_b32", sr(S_T1), sr(S_T0), 1)
        b.salu("s_lshl_b32", sr(S_T1), sr(S_T1), 10)
        b.salu("s_add_u32", sr(S_OB), sr(S_OB), sr(S_T1))
        b.salu("s_lshl_b32", sr(S_T1), sr(S_G), 11)
        b.salu("s_add_u32", sr(S_T3), sr(S_OB), sr(S_T1))
        b.salu("s_add_u32", sr(S_T3), sr(S_T3), 80 * 2048)
        b.salu("s_lshl_b32", sr(S_T1), sr(S_G), 14)
        b.salu("s_add_u32", sr(S_OB), sr(S_OB), sr(S_T1))
        b.salu("s_lshl_b32", sr(S_T1), sr(S_P), 12)
        b.salu("s_add_u32", sr(S_OB), sr(S_OB), sr(S_T1))
        b.valu("v_lshlrev_b32", vr(V_STO), 4, vr(V_LANE))

    def lds(addr_regs, off):
        return vr(addr_regs + (off >> 16)), off & 0xffff

    ring = [0]

    def read_frags(ks):
        quad, s32 = divmod(ks, 32)
        t, s = divmod(ks, 4)
        if quad == 0:
            off = slot_of[("X", t)] * SLOT
            base = V_XB + (off >> 16)
            if s:
                b.valu("v_xor_b32", vr(V_XT), 32 * s, vr(base))
                base = V_XT
            b.ds_read("ds_read_b128", vr(V_X + 4 * s32, 4), vr(base), off & 0xffff, tag=f"x{ks}")
        for j in range(2):
            r0 = V_RING + 4 * ((2 * ks + j) % 6)
            for q in range(2):
                off = slot_of[("W", t)] * SLOT + s * 2048 + q * 512
                a, o = lds(V_TR + 3 * j, off)
                b.ds_read("ds_read_b64_tr_b16", vr(r0 + 2 * q, 2), a, o, tag=f"w{ks}_{j}")

    def read_sfrag(s32):
        su, s = divmod(s32, 16)
        r0 = V_RING + 4 * (s32 % 6)
        for q in range(2):
            off = slot_of[("S", su)] * SLOT + s * 512
            b.ds_read("ds_read_b64_tr_b16", vr(r0 + 2 * q, 2), vr(V_XB + 2 * su + q), off & 0xffff, tag=f"s{s32}")

    def phase_barrier(t):
        tags = [f"{k}{i}" for (k, i) in phase_units[t]]
        b.wait(vm=tags, lg=0 if t > 0 else None)
        b.barrier()
        if STAMPS and t in (0, 2, 4, 8, 12):
            stamp(b, 1 + (0, 2, 4, 8, 12).index(t))
            b.raw("  s_waitcnt lgkmcnt(0)")
        if t > 0:
            for u in phase_units[t - 1]:
                free.append(slot_of[u])
            issue_more(2)

    def mf(acc, wreg, xreg, first):
        c = "0" if first else vr(acc, 16)
        if typ == "v":
            b.mfma(vr(acc, 16), vr(xreg, 4), vr(wreg, 4), c)
        else:
            b.mfma(vr(acc, 16), vr(wreg, 4), vr(xreg, 4), c)

    def half_sum(reg, tmp):
        b.valu("v_mov_b32", vr(tmp), vr(reg))
        b.valu("v_permlane32_swap_b32", vr(tmp), vr(reg))
        b.valu("v_add_f32", vr(reg), vr(reg), vr(tmp))

    def bf16r(reg):
        b.valu("v_cvt_pk_bf16_f32", vr(reg), vr(reg), vr(reg))
        b.valu("v_lshlrev_b32", vr(reg), 16, vr(reg))

    def stats_ops():
        ops = []
        A = ops.append
        A(lambda: half_sum(V_SUM, V_T0))
        A(lambda: half_sum(V_SQ, V_T0))
        A(lambda: b.valu("v_mul_f32", vr(V_SUM), hex(f32bits(1.0 / 512)), vr(V_SUM)))
        A(lambda: b.valu("v_mul_f32", vr(V_SQ), hex(f32bits(1.0 / 512)), vr(V_SQ)))
        A(lambda: b.valu("v_fma_f32", vr(V_SQ), f"-{vr(V_SUM)}", vr(V_SUM), vr(V_SQ)))
        A(lambda: b.valu("v_max_f32", vr(V_SQ), 0, vr(V_SQ)))
        A(lambda: bf16r(V_SQ))
        A(lambda: b.valu("v_add_f32", vr(V_SQ), hex(f32bits(1e-5)), vr(V_SQ)))
        A(lambda: bf16r(V_SQ))
        A(lambda: b.valu("v_sqrt_f32", vr(V_SQ), vr(V_SQ)))
        A(lambda: bf16r(V_SQ))
        A(lambda: b.valu("v_rcp_f32", vr(V_RS), vr(V_SQ)))
        A(lambda: bf16r(V_SUM))
        if typ == "qk":
            A(lambda: b.valu("v_mul_f32", vr(V_RS), sr(S_SCALE), vr(V_RS)))
            A(lambda: b.valu("v_sub_f32", vr(V_NM), 0, vr(V_SUM)))
        elif typ == "f":
            A(lambda: b.valu("v_mul_f32", vr(V_RS), vr(V_RS), vr(V_RS)))
            A(lambda: b.valu("v_sub_f32", vr(V_NM), 0, vr(V_SUM)))
        else:
            def f():
                b.valu("v_mul_f32", vr(V_NM), vr(V_SUM), vr(V_RS))
                b.valu("v_and_b32", vr(V_T0), 31, vr(V_LANE))
                b.valu("v_lshlrev_b32", vr(V_T0), 2, vr(V_T0))
                b.salu("s_lshl_b32", sr(S_T0), sr(S_WV), 8)
                b.salu("s_add_u32", sr(S_T0), sr(S_T0), ST_OFF)
                b.valu("v_add_u32", vr(V_T0), sr(S_T0), vr(V_T0))
                b.ds_write("ds_write_b32", vr(V_T0), vr(V_RS), 0, tag="stw")
                b.ds_write("ds_write_b32", vr(V_T0), vr(V_NM), 128, tag="stw")
                b.valu("v_lshrrev_b32", vr(V_T0), 5, vr(V_LANE))
                b.valu("v_lshlrev_b32", vr(V_T0), 4, vr(V_T0))
                b.valu("v_add_u32", vr(V_RS), sr(S_T0), vr(V_T0))
            A(f)
        return ops

    uid = [0]

    def epi_ops(acc, cs_addr, cs_off, so_reg, so_off):
        ops = []
        A = ops.append
        uid[0] += 1
        u = uid[0]

        def store(regs, extra, imm=0):
            def f():
                b.salu("s_add_u32", sr(S_SOFF), sr(so_reg), so_off + extra)
                b.vmem_store("buffer_store_dwordx4", vr(regs, 4), vr(V_STO), sr(S_WS, 4), sr(S_SOFF),
                             mods=(f"offset:{imm} " if imm else "") + store_mods, tag="st")
            return f
        if typ == "qk":
            for hf in range(2):
                A(lambda hf=hf: (b.ds_read("ds_read_b128", vr(V_TMP, 4), vr(cs_addr), cs_off + hf * 64, tag=f"c{u}{hf}"),
                                 b.ds_read("ds_read_b128", vr(V_TMP + 4, 4), vr(cs_addr), cs_off + hf * 64 + 32, tag=f"c{u}{hf}")))
                A(None)
                A(lambda hf=hf: b.wait(lg=f"c{u}{hf}"))
                for i in range(8):
                    A(lambda i=i, hf=hf: b.valu("v_fmac_f32", vr(acc + 8 * hf + i), vr(V_NM), vr(V_TMP + i)))
                for i in range(8):
                    A(lambda i=i, hf=hf: b.valu("v_mul_f32", vr(acc + 8 * hf + i), vr(V_RS), vr(acc + 8 * hf + i)))
                for i in range(4):
                    A(lambda i=i, hf=hf: b.valu("v_cvt_pk_bf16_f32", vr(acc + 8 * hf + i), vr(acc + 8 * hf + 2 * i), vr(acc + 8 * hf + 2 * i + 1)))
                A(store(acc + 8 * hf, hf * 65536))
        elif typ == "v":
            A(lambda: b.ds_read("ds_read_b32", vr(V_NCS), vr(cs_addr), cs_off, tag=f"n{u}"))
            for g in range(4):
                A(lambda g=g: (b.ds_read("ds_read_b128", vr(V_TMP, 4), vr(V_RS), g * 32, tag=f"c{u}{g}"),
                               b.ds_read("ds_read_b128", vr(V_TMP + 4, 4), vr(V_RS), 128 + g * 32, tag=f"c{u}{g}")))
                A(None)
                A(lambda g=g: b.wait(lg=f"c{u}{g}"))
                for i in range(4):
                    A(lambda i=i, g=g: b.valu("v_mul_f32", vr(acc + 4 * g + i), vr(V_TMP + i), vr(acc + 4 * g + i)))
                for i in range(4):
                    A(lambda i=i, g=g: b.valu("v_fma_f32", vr(acc + 4 * g + i), f"-{vr(V_NCS)}", vr(V_TMP + 4 + i), vr(acc + 4 * g + i)))
                if g % 2 == 1:
                    hf = g // 2
                    for i in range(4):
                        A(lambda i=i, hf=hf: b.valu("v_cvt_pk_bf16_f32", vr(acc + 8 * hf + i), vr(acc + 8 * hf + 2 * i), vr(acc + 8 * hf + 2 * i + 1)))
                    A(store(acc + 8 * hf, 0, imm=hf * 512))
        else:
            for g in range(2):
                A(lambda g=g: (b.ds_read("ds_read_b128", vr(V_TMP, 4), vr(cs_addr), cs_off + g * 32, tag=f"c{u}{g}"),
                               b.ds_read("ds_read_b128", vr(V_TMP + 4, 4), vr(cs_addr), cs_off + 64 + g * 32, tag=f"c{u}{g}")))
                A(None)
                A(lambda g=g: b.wait(lg=f"c{u}{g}"))
                for i in range(4):
                    A(lambda i=i, g=g: b.valu("v_fmac_f32", vr(acc + 4 * g + i), vr(V_NM), vr(V_TMP + i)))
                for i in range(4):
                    A(lambda i=i, g=g: b.valu("v_fmac_f32", vr(acc + 8 + 4 * g + i), vr(V_NM), vr(V_TMP + 4 + i)))
                for i in range(4):
                    A(lambda i=i, g=g: b.valu("v_max_f32", vr(acc + 4 * g + i), 0, vr(acc + 4 * g + i)))
                for i in range(4):
                    A(lambda i=i, g=g: b.valu("v_mul_f32", vr(acc + 8 + 4 * g + i), vr(V_RS), vr(acc + 8 + 4 * g + i)))
                for i in range(4):
                    A(lambda i=i, g=g: b.valu("v_mul_f32", vr(acc + 4 * g + i), vr(acc + 4 * g + i), vr(acc + 8 + 4 * g + i)))
            for i in range(4):
                A(lambda i=i: b.valu("v_cvt_pk_bf16_f32", vr(acc + i), vr(acc + 2 * i), vr(acc + 2 * i + 1)))
            A(store(acc, 0))
        return ops

    def quad_epi(quad):
        ops = []
        for j in range(2):
            acc = V_ACC + 32 * quad + 16 * j
            if typ == "f":
                so = (quad * 4 + j) * 2048
            else:
                so = (quad * 8 + j * 2) * 65536
            ops += epi_ops(acc, V_CSRD, quad * 512 + j * 128, S_OB, so)
        return ops

    fill = []

    def run_fill(n):
        while n > 0 and fill:
            f = fill.pop(0)
            if f is None:
                return
            f()
            n -= 1

    def set_flag(quad):
        b.salu("s_lshr_b32", sr(S_T0), sr(S_R), 1)
        b.salu("s_cmp_eq_u32", sr(S_T0), quad)
        b.salu("s_cselect_b64", "vcc", "-1", "0")

    def colsum_write():
        l1 = b.newlabel(lab("cw"))
        b.branch("s_cbranch_vccz", l1)
        b.opt_begin()
        half_sum(V_CSA, V_T0)
        b.ds_write("ds_write_b32", vr(V_CSWR), vr(V_CSA), 0, tag="csw")
        b.opt_end()
        b.label(l1)

    D = 2
    set_flag(0)
    phase_barrier(0)
    for ks in range(D):
        read_frags(ks)
    for ks in range(64):
        quad, s32 = divmod(ks, 32)
        nk = ks + D
        if nk < 64:
            if nk % 4 == 0:
                phase_barrier(nk // 4)
            read_frags(nk)
        elif ffn and nk == 64:
            phase_barrier(16)
        acc = V_ACC + 32 * quad
        r0 = V_RING + 4 * ((2 * ks) % 6)
        r1 = V_RING + 4 * ((2 * ks + 1) % 6)
        xr = V_X + 4 * s32
        b.wait(lg=[f"x{ks}", f"w{ks}_0"])
        mf(acc, r0, xr, s32 == 0)
        if quad == 0:
            for i in range(0 if 'nostats' in OPT else 4):
                b.valu("v_dot2c_f32_bf16", vr(V_SUM), sr(S_ONES), vr(xr + i))
        else:
            run_fill(3)
        b.wait(lg=[f"w{ks}_1"])
        mf(acc + 16, r1, xr, s32 == 0)
        if quad == 0:
            for i in range(0 if 'nostats' in OPT else 4):
                b.valu("v_dot2c_f32_bf16", vr(V_SQ), vr(xr + i), vr(xr + i))
        else:
            run_fill(3)
        if 'nocs' not in OPT:
            lskip, lb = b.newlabel(lab("cs")), b.newlabel(lab("cb"))
            b.branch("s_cbranch_vccz", lskip)
            b.opt_begin()
            b.salu("s_bitcmp1_b32", sr(S_R), 0)
            b.branch("s_cbranch_scc1", lb)
            b.opt_begin()
            for i in range(4):
                b.valu("v_dot2c_f32_bf16", vr(V_CSA), sr(S_ONES), vr(r0 + i))
            b.branch("s_branch", lskip)
            b.opt_end()
            b.label(lb)
            for i in range(4):
                b.valu("v_dot2c_f32_bf16", vr(V_CSA), sr(S_ONES), vr(r1 + i))
            b.opt_end()
            b.label(lskip)
        if ks == 31:
            colsum_write()
            set_flag(1)
            fill += stats_ops()
        if ks == 34:
            fill += quad_epi(0)
    run_fill(1000)
    while fill:
        run_fill(1000)
    colsum_write()
    b.wait(lg=0)
    b.barrier()
    if STAMPS:
        stamp(b, 6)
        b.raw("  s_waitcnt lgkmcnt(0)")
    if ffn:
        LB = lab("pathb")
        b.salu("s_cmp_lt_u32", sr(S_G), 6)
        b.salu("s_cselect_b32", sr(S_T0), 0, 1)
        b.salu("s_or_b32", sr(S_T0), sr(S_T0), sr(S_P))
        b.salu("s_cmp_lg_u32", sr(S_T0), 0)
        b.branch("s_cbranch_scc1", LB)
        import copy
        saved = copy.deepcopy((b.pos, b.valu_w, b.trans_w, b.mfma_w, b.mfma_c, b.sgpr_vw, b.dot_w, b.store_d, b.m0_w, b.vm, b.lg))
        for su in range(2):
            off = slot_of[("S", su)] * SLOT
            for q in range(2):
                b.valu("v_add_u32", vr(V_XB + 2 * su + q), off & ~0xffff, vr(V_STR + q))
        b.valu("v_mov_b32", vr(V_CSA), 0)
        fill += quad_epi(1)
        DS = 4
        for s in range(DS):
            read_sfrag(s)
        for s in range(32):
            if s + DS < 32:
                read_sfrag(s + DS)
            r0 = V_RING + 4 * (s % 6)
            b.wait(lg=f"s{s}")
            mf(V_ACC, r0, V_X + 4 * s, s == 0)
            for i in range(4):
                b.valu("v_dot2c_f32_bf16", vr(V_CSA), sr(S_ONES), vr(r0 + i))
            run_fill(4)
        while fill:
            run_fill(1000)
        half_sum(V_CSA, V_T0)
        b.valu("v_and_b32", vr(V_T0), 31, vr(V_LANE))
        b.valu("v_lshlrev_b32", vr(V_T0), 2, vr(V_T0))
        b.salu("s_lshl_b32", sr(S_T0), sr(S_WV), 7)
        b.salu("s_add_u32", sr(S_T0), sr(S_T0), CSS_OFF)
        b.valu("v_add_u32", vr(V_T0), sr(S_T0), vr(V_T0))
        b.ds_write("ds_write_b32", vr(V_T0), vr(V_CSA), 0, tag="csw")
        b.valu("v_lshrrev_b32", vr(V_T0), 5, vr(V_LANE))
        b.valu("v_lshlrev_b32", vr(V_T0), 4, vr(V_T0))
        b.valu("v_add_u32", vr(V_T1), sr(S_T0), vr(V_T0))
        fill += epi_ops(V_ACC, V_T1, 0, S_T3, 0)
        while fill:
            run_fill(1000)
        stamp(b, 7)
        stamp_out(b, 9)
        b.raw("  s_endpgm")
        b.label(LB)
        (b.pos, b.valu_w, b.trans_w, b.mfma_w, b.mfma_c, b.sgpr_vw, b.dot_w, b.store_d, b.m0_w, b.vm, b.lg) = saved
    fill += quad_epi(1)
    while fill:
        run_fill(1000)
    stamp(b, 7)
    stamp_out(b, 9)
    b.raw("  s_endpgm")


def desc(name, vgpr=256, sgpr=100):
    return f"""
.p2align 6
.amdhsa_kernel {name}
  .amdhsa_next_free_vgpr {vgpr}
  .amdhsa_next_free_sgpr {sgpr}
  .amdhsa_accum_offset {(vgpr + 3) // 4 * 4}
  .amdhsa_group_segment_fixed_size 0
  .amdhsa_kernarg_size 80
  .amdhsa_user_sgpr_count 2
  .amdhsa_user_sgpr_kernarg_segment_ptr 1
  .amdhsa_system_sgpr_workgroup_id_x 1
.end_amdhsa_kernel
"""


if __name__ == "__main__":
    import sys
    if "stamps" in sys.argv:
        STAMPS = True
    s = f"; @launch kernel=k1_kernel grid=(256,1,1) block=(512,1,1) lds={LDS_K1}\n"
    s += '.amdgcn_target "amdgcn-amd-amdhsa--gfx950"\n.text\n'
    s += k1()
    s += '.section .rodata,"a"\n' + desc("k1_kernel")
    open(sys.argv[1], "w").write(s)
```

```python
from asmb import *
import os
import gen_k1 as g1
from gen_k1 import QF, KF, VF, HF, HF_RB, OF, FL, WS_USED, f32bits
OPT = set(os.environ.get('K2OPT', '').split(','))

RD = 12
RING = RD * 2048
CNT_OFF = 4 * RING
LDS_K2 = CNT_OFF + 64
NDOWN = 22
NSTEP = 30

S_WS, S_H, S_O, S_WD, S_WO, S_XO, S_OUT = 24, 28, 32, 36, 40, 44, 48
S_WV, S_RB, S_CB, S_T0, S_T1, S_T2, S_SO, S_M0B, S_SB = 52, 53, 54, 55, 56, 57, 58, 59, 60
S_NF, S_BIAS, S_EX = 61, 62, 64
S_MASK = 66
S_ST = 8


def stamp(b, i):
    if g1.STAMPS:
        b.raw(f"  {'s_memtime' if 'cyc' in OPT else 's_memrealtime'} s[{S_ST+2*i}:{S_ST+2*i+1}]")
        b.raw("  s_waitcnt lgkmcnt(0)")


def stamp_out(b, idxs, base, wave):
    if not g1.STAMPS:
        return
    l = b.newlabel("stamp")
    b.raw(f"  s_cmp_lg_u32 s{S_WV}, {wave}")
    b.raw(f"  s_cbranch_scc1 {l}")
    b.raw(f"  s_mov_b32 s{S_WS+2}, 0x1000000")
    b.raw("  s_lshl_b32 s3, s2, 2")
    b.raw(f"  s_add_u32 s3, s3, {0xF00000 + base*1024}")
    b.raw("  v_mov_b32 v1, 0")
    for i in idxs:
        b.raw(f"  v_mov_b32 v2, s{S_ST+2*i}")
        b.raw(f"  buffer_store_dword v2, v1, s[{S_WS}:{S_WS+3}], s3 offen")
        b.raw("  s_add_u32 s3, s3, 1024")
        b.raw("  s_nop 1")
    b.raw(l + ":")


def srd(b, s, lo, hi, size, add=None):
    if add is None:
        b.salu("s_mov_b32", sr(s), lo)
        b.salu("s_mov_b32", sr(s + 1), hi)
    else:
        b.salu("s_add_u32", sr(s), lo, add)
        b.salu("s_addc_u32", sr(s + 1), hi, 0)
    b.salu("s_mov_b32", sr(s + 2), size)
    b.salu("s_mov_b32", sr(s + 3), 0x20000)


def k2(name="k2_kernel"):
    b = B()
    b.raw(f".globl {name}\n.p2align 8\n.type {name},@function\n{name}:")
    L_END = name + "_end"
    L_ATT = name + "_att"
    b.salu("s_cmp_ge_u32", "s2", 256)
    b.branch("s_cbranch_scc1", L_END)
    if g1.STAMPS:
        b.raw(f"  {'s_memtime' if 'cyc' in OPT else 's_memrealtime'} s[98:99]")
    b.raw("  s_load_dwordx16 s[4:19], s[0:1], 0")
    b.raw("  s_load_dwordx4 s[20:23], s[0:1], 64")
    b.valu("v_lshrrev_b32", "v1", 6, "v0")
    b.valu("v_and_b32", "v0", 63, "v0")
    b.valu("v_readfirstlane_b32", sr(S_WV), "v1")
    b.wait(lg=0)
    srd(b, S_WS, "s22", "s23", WS_USED)
    b.salu("s_cmp_ge_u32", sr(S_WV), 4)
    b.branch("s_cbranch_scc1", L_ATT)
    txt = b.text()
    bg = B(); bg.nlabel = 5000
    gemm(bg, name)
    print("k2 gemm instrs", bg.ninstr)
    ba = B(); ba.nlabel = 6000
    ba.label(L_ATT)
    attn(ba, name)
    print("k2 attn instrs", ba.ninstr)
    return txt + bg.text() + ba.text() + f"{L_END}:\n  s_endpgm\n"


def gemm(b, name):
    V_L = 0
    V_AO, V_BO0, V_BO1, V_TR0, V_TR1, V_T0, V_T1, V_T2, V_OO, V_FO, V_WA, V_RA, V_XOFF = 1, 2, 3, 4, 5, 6, 7, 8, 9, 10, 11, 12, 13
    V_BW0, V_BW1 = 14, 15
    V_XR = 16
    V_W = 24
    V_ACC = 40
    V_A = 104
    b.salu("s_and_b32", sr(S_T0), "s2", 7)
    b.salu("s_lshl_b32", sr(S_T0), sr(S_T0), 2)
    b.salu("s_bfe_u32", sr(S_T1), "s2", (2 << 16) | 3)
    b.salu("s_add_u32", sr(S_RB), sr(S_T0), sr(S_T1))
    b.salu("s_lshr_b32", sr(S_CB), "s2", 5)
    b.salu("s_mul_i32", sr(S_T0), sr(S_RB), HF_RB)
    b.salu("s_add_u32", sr(S_T0), sr(S_T0), HF)
    srd(b, S_H, "s22", "s23", HF_RB, add=sr(S_T0))
    b.salu("s_lshl_b32", sr(S_T0), sr(S_RB), 16)
    b.salu("s_add_u32", sr(S_T1), sr(S_T0), OF)
    srd(b, S_O, "s22", "s23", 65536, add=sr(S_T1))
    srd(b, S_WD, "s16", "s17", 1376 * 1024)
    srd(b, S_WO, "s8", "s9", 512 * 1024)
    srd(b, S_XO, "s4", "s5", 65536, add=sr(S_T0))
    srd(b, S_OUT, "s18", "s19", 65536, add=sr(S_T0))
    b.valu("v_mov_b32", vr(V_T0), CNT_OFF)
    b.valu("v_mov_b32", vr(V_T1), 0)
    b.ds_write("ds_write_b32", vr(V_T0), vr(V_T1), 0)
    b.salu("s_mul_i32", sr(S_T0), sr(S_WV), NDOWN * 2048)
    b.valu("v_lshlrev_b32", vr(V_T0), 4, vr(V_L))
    b.valu("v_add_u32", vr(V_AO), sr(S_T0), vr(V_T0))
    b.salu("s_lshl_b32", sr(S_T0), sr(S_WV), 14)
    b.valu("v_add_u32", vr(V_OO), sr(S_T0), vr(V_T0))
    b.valu("v_bfe_u32", vr(V_T1), vr(V_L), 4, 1)
    b.valu("v_lshlrev_b32", vr(V_T1), 2, vr(V_T1))
    b.valu("v_xor_b32", vr(V_T1), vr(V_T1), vr(V_L))
    b.valu("v_and_b32", vr(V_T1), 7, vr(V_T1))
    b.valu("v_lshlrev_b32", vr(V_T1), 4, vr(V_T1))
    b.valu("v_lshrrev_b32", vr(V_T0), 3, vr(V_L))
    b.valu("v_lshl_add_u32", vr(V_T0), vr(V_T0), 10, vr(V_T1))
    b.salu("s_lshl_b32", sr(S_T0), sr(S_CB), 7)
    b.salu("s_mul_i32", sr(S_T1), sr(S_WV), NDOWN * 16384)
    b.salu("s_add_u32", sr(S_T1), sr(S_T1), sr(S_T0))
    b.valu("v_add_u32", vr(V_BO0), sr(S_T1), vr(V_T0))
    b.valu("v_add_u32", vr(V_BO1), 8192 - 1024, vr(V_BO0))
    b.salu("s_lshl_b32", sr(S_T1), sr(S_WV), 17)
    b.salu("s_add_u32", sr(S_T1), sr(S_T1), sr(S_T0))
    b.valu("v_add_u32", vr(V_BW0), sr(S_T1), vr(V_T0))
    b.valu("v_add_u32", vr(V_BW1), 8192 - 1024, vr(V_BW0))
    b.salu("s_mul_i32", sr(S_M0B), sr(S_WV), RING)
    b.valu("v_lshrrev_b32", vr(V_T0), 3, vr(V_L))
    b.valu("v_and_b32", vr(V_T1), 7, vr(V_L))
    b.valu("v_lshlrev_b32", vr(V_T1), 4, vr(V_T1))
    b.valu("v_lshl_add_u32", vr(V_T0), vr(V_T0), 10, vr(V_T1))
    b.salu("s_lshl_b32", sr(S_T1), sr(S_WV), 14)
    b.salu("s_add_u32", sr(S_T1), sr(S_T1), sr(S_T0))
    b.valu("v_add_u32", vr(V_XOFF), sr(S_T1), vr(V_T0))
    b.wait(lg=0)
    b.barrier()

    def pref_b(t):
        sl = t % RD
        b.salu("s_add_u32", "m0", sr(S_M0B), sl * 2048)
        if t < NDOWN:
            so, v0, v1, s = t * 16384, V_BO0, V_BO1, S_WD
        else:
            so, v0, v1, s = (t - NDOWN) * 16384, V_BW0, V_BW1, S_WO
        if so == 0:
            sot = "0"
        else:
            b.salu("s_mov_b32", sr(S_SB), so)
            sot = sr(S_SB)
        b.vmem_dma(vr(v0), sr(s, 4), sot, tag=f"b{t}")
        b.vmem_dma(vr(v1), sr(s, 4), sot, mods="offset:1024", tag=f"b{t}")

    def pref_a(t):
        sl = t % RD
        if t < NDOWN:
            tt, vo, s, mods = t, V_AO, S_H, ""
        else:
            tt, vo, s, mods = t - NDOWN, V_OO, S_O, " sc1"
        so = (tt // 2) * 4096
        if so == 0:
            sot = "0"
        else:
            if tt % 2 == 0:
                b.salu("s_mov_b32", sr(S_SO), so)
            sot = sr(S_SO)
        for i in range(2):
            off = (tt % 2) * 2048 + i * 1024
            b.vmem_load("buffer_load_dwordx4", vr(V_A + 8 * sl + 4 * i, 4), vr(vo), sr(s, 4), sot,
                        mods=(f"offset:{off}" if off else "") + mods, tag=f"a{t}")

    for t in range(RD):
        pref_b(t)
        pref_a(t)
        if t == 1:
            b.valu("v_lshrrev_b32", vr(V_T0), 5, vr(V_L))
            b.valu("v_lshlrev_b32", vr(V_T0), 2, vr(V_T0))
            b.valu("v_bfe_u32", vr(V_T1), vr(V_L), 2, 2)
            b.valu("v_add_u32", vr(V_T0), vr(V_T0), vr(V_T1))
            b.valu("v_and_b32", vr(V_T2), 3, vr(V_L))
            b.valu("v_lshlrev_b32", vr(V_T2), 3, vr(V_T2))
            b.valu("v_lshl_add_u32", vr(V_T0), vr(V_T0), 7, vr(V_T2))
            b.valu("v_lshrrev_b32", vr(V_T1), 1, vr(V_T1))
            b.valu("v_bfe_u32", vr(V_T2), vr(V_L), 4, 1)
            b.valu("v_lshl_add_u32", vr(V_T1), vr(V_T1), 1, vr(V_T2))
            b.valu("v_lshl_add_u32", vr(V_T0), vr(V_T1), 5, vr(V_T0))
            b.valu("v_add_u32", vr(V_TR0), sr(S_M0B), vr(V_T0))
            b.valu("v_xor_b32", vr(V_TR1), 64, vr(V_TR0))
            b.salu("s_lshl_b32", sr(S_T0), sr(S_RB), 3)
            b.salu("s_lshl_b32", sr(S_T1), sr(S_WV), 1)
            b.salu("s_add_u32", sr(S_T0), sr(S_T0), sr(S_T1))
            b.salu("s_lshl_b32", sr(S_T0), sr(S_T0), 7)
            b.salu("s_add_u32", sr(S_T0), sr(S_T0), FL)
            b.valu("v_and_b32", vr(V_T0), 1, vr(V_L))
            b.valu("v_lshlrev_b32", vr(V_T0), 7, vr(V_T0))
            b.valu("v_add_u32", vr(V_FO), sr(S_T0), vr(V_T0))
            b.valu("v_lshlrev_b32", vr(V_T0), 4, vr(V_L))
            b.valu("v_add_u32", vr(V_WA), sr(S_M0B), vr(V_T0))
            b.valu("v_and_b32", vr(V_T0), 7, vr(V_L))
            b.valu("v_lshlrev_b32", vr(V_T1), 10, vr(V_T0))
            b.salu("s_lshr_b32", sr(S_T0), sr(S_WV), 1)
            b.salu("s_lshl_b32", sr(S_T0), sr(S_T0), 13)
            b.valu("v_add_u32", vr(V_T1), sr(S_T0), vr(V_T1))
            b.valu("v_and_b32", vr(V_T0), 3, vr(V_T0))
            b.valu("v_lshlrev_b32", vr(V_T0), 2, vr(V_T0))
            b.valu("v_lshrrev_b32", vr(V_T2), 3, vr(V_L))
            b.salu("s_and_b32", sr(S_T0), sr(S_WV), 1)
            b.salu("s_lshl_b32", sr(S_T0), sr(S_T0), 4)
            b.valu("v_add_u32", vr(V_T2), sr(S_T0), vr(V_T2))
            b.valu("v_xor_b32", vr(V_T2), vr(V_T2), vr(V_T0))
            b.valu("v_lshl_add_u32", vr(V_RA), vr(V_T2), 4, vr(V_T1))

    def read_w(t):
        sl = t % RD
        ws = V_W + 8 * (t % 2)
        b.wait(vm=f"b{t}")
        for j in range(2):
            for q in range(2):
                b.ds_read("ds_read_b64_tr_b16", vr(ws + 4 * j + 2 * q, 2), vr(V_TR0 + j), sl * 2048 + q * 1024, tag=f"w{t}")

    stamp(b, 0)
    read_w(0)
    for t in range(NSTEP):
        sl = t % RD
        ws = V_W + 8 * (t % 2)
        if t == NDOWN:
            stamp(b, 1)
            b.salu("s_mov_b32", sr(S_T0), 8192)
            b.vmem_load("buffer_load_dwordx4", vr(V_XR, 4), vr(V_XOFF), sr(S_XO, 4), "0", tag="xr")
            b.vmem_load("buffer_load_dwordx4", vr(V_XR + 4, 4), vr(V_XOFF), sr(S_XO, 4), sr(S_T0), tag="xr")
            lp, lq = b.newlabel(name + "_poll"), b.newlabel(name + "_pok")
            b.label(lp)
            b.vmem_load("buffer_load_dword", vr(V_T0), vr(V_FO), sr(S_WS, 4), "0", mods="sc1", tag="fl")
            b.wait(vm=0)
            b.valu("v_cmp_ne_u32", "vcc", 1, vr(V_T0))
            b.branch("s_cbranch_vccz", lq)
            b.raw("  s_sleep 2")
            b.branch("s_branch", lp)
            b.label(lq)
            stamp(b, 2)
            for tt in range(NDOWN, NSTEP):
                pref_a(tt)
        if t + 1 < NSTEP:
            read_w(t + 1)
        b.wait(vm=f"a{t}", lg=f"w{t}")
        for i in range(2):
            for j in range(2):
                acc = V_ACC + 16 * (2 * i + j)
                b.mfma(vr(acc, 16), vr(ws + 4 * j, 4), vr(V_A + 8 * sl + 4 * i, 4), "0" if t == 0 else vr(acc, 16))
        nt = t + RD
        if nt < NSTEP:
            pref_b(nt)
            if nt < NDOWN:
                pref_a(nt)
    stamp(b, 3)
    for g in range(4):
        if g:
            b.valu("v_xor_b32", vr(V_T0), g << 6, vr(V_WA))
        a = V_T0 if g else V_WA
        for blk in range(4):
            b.ds_write("ds_write_b128", vr(a), vr(V_ACC + 16 * blk + 4 * g, 4), blk * 4096 + g * 1024)
    b.wait(lg=0)
    b.barrier()
    V_R = V_A
    b.valu("v_xor_b32", vr(V_T1), 128, vr(V_RA))
    b.valu("v_add_u32", vr(V_T0), 2 * RING, vr(V_RA))
    b.valu("v_add_u32", vr(V_T2), 2 * RING, vr(V_T1))
    for e in range(2):
        for P in range(4):
            for kh in range(2):
                base = [[V_RA, V_T0], [V_T1, V_T2]][e][P // 2]
                b.ds_read("ds_read_b128", vr(V_R + 32 * e + 8 * P + 4 * kh, 4), vr(base), (P % 2) * RING + kh * 512, tag=f"r{e}{P}")
    b.wait(vm="xr")
    for e in range(2):
        R = V_R + 32 * e
        X = V_XR + 4 * e
        b.wait(lg=[f"r{e}0", f"r{e}1"])
        for i in range(8):
            b.valu("v_add_f32", vr(R + i), vr(R + i), vr(R + 8 + i))
        b.wait(lg=[f"r{e}2", f"r{e}3"])
        for i in range(8):
            b.valu("v_add_f32", vr(R + 16 + i), vr(R + 16 + i), vr(R + 24 + i))
        for i in range(4):
            b.valu("v_lshlrev_b32", vr(R + 8 + 2 * i), 16, vr(X + i))
            b.valu("v_and_b32", vr(R + 8 + 2 * i + 1), "0xffff0000", vr(X + i))
        for i in range(8):
            b.valu("v_add_f32", vr(R + i), vr(R + i), vr(R + 16 + i))
        for i in range(8):
            b.valu("v_add_f32", vr(R + i), vr(R + i), vr(R + 8 + i))
        for i in range(4):
            b.valu("v_cvt_pk_bf16_f32", vr(R + i), vr(R + 2 * i), vr(R + 2 * i + 1))
        b.vmem_store("buffer_store_dwordx4", vr(R, 4), vr(V_XOFF), sr(S_OUT, 4), "0" if e == 0 else sr(S_T0))
    if g1.STAMPS:
        b.raw("  s_waitcnt vmcnt(0)")
        stamp(b, 4)
        b.raw("  s_mov_b32 s18, s98")
        stamp_out(b, [5, 0, 1, 2, 3, 4], 9, 0)
    b.raw("  s_endpgm")


def attn(b, name):
    V_L = 0
    V_QO, V_VO, V_T0, V_T1, V_M0, V_M1, V_NEG, V_SO = 1, 2, 3, 4, 5, 6, 7, 8
    V_MSK = 10
    V_Q = 18
    V_K = 26
    V_V = 66
    V_B0, V_B1, V_CN, V_O, V_SM = 146, 162, 178, 194, 210
    b.salu("s_and_b32", sr(S_T0), "s2", 7)
    b.salu("s_lshl_b32", sr(S_T0), sr(S_T0), 2)
    b.salu("s_add_u32", sr(S_T0), sr(S_T0), sr(S_WV))
    b.salu("s_sub_u32", sr(S_CB), sr(S_T0), 4)
    b.salu("s_lshr_b32", sr(S_RB), "s2", 3)
    b.salu("s_lshl_b32", sr(S_T0), sr(S_CB), 16)
    b.salu("s_lshl_b32", sr(S_T1), sr(S_RB), 11)
    b.salu("s_add_u32", sr(S_T0), sr(S_T0), sr(S_T1))
    b.valu("v_lshlrev_b32", vr(V_QO), 4, vr(V_L))
    for i in range(2):
        b.vmem_load("buffer_load_dwordx4", vr(V_Q + 4 * i, 4), vr(V_QO), sr(S_WS, 4), sr(S_T0),
                    mods=f"offset:{1024*i}" if i else "", tag="q")
    order = [0, 8, 7, 6, 5, 4, 3, 2, 1, 9]
    for grp, base in ((0, 0), (1, 4096), (2, 8192)):
        b.salu("s_add_u32", sr(S_MASK + grp), sr(S_T0), KF - 8192 + base)
        b.salu("s_add_u32", sr(S_MASK + 4 + grp), sr(S_T0), VF - 8192 + base)
    for n in order:
        off = (n % 4) * 1024
        b.vmem_load("buffer_load_dwordx4", vr(V_K + 4 * n, 4), vr(V_QO), sr(S_WS, 4), sr(S_MASK + n // 4),
                    mods=f"offset:{off}" if off else "", tag=f"k{n}")
    b.valu("v_and_b32", vr(V_T0), 15, vr(V_L))
    b.valu("v_lshlrev_b32", vr(V_T0), 4, vr(V_T0))
    b.valu("v_lshrrev_b32", vr(V_T1), 5, vr(V_L))
    b.valu("v_lshl_add_u32", vr(V_VO), vr(V_T1), 8, vr(V_T0))
    b.salu("s_mov_b32", "exec_lo", "0xffff")
    b.salu("s_mov_b32", "exec_hi", "0xffff")
    for n in [8, 0, 7, 6, 5, 4, 3, 2, 1, 9]:
        for mf in range(2):
            off = (n % 4) * 1024 + mf * 512
            b.vmem_load("buffer_load_dwordx4", vr(V_V + 8 * n + 4 * mf, 4), vr(V_VO), sr(S_WS, 4), sr(S_MASK + 4 + n // 4),
                        mods=f"offset:{off}" if off else "", tag=f"v{n}")
    b.barrier()
    b.salu("s_mov_b32", "exec_lo", "0xffff0000")
    b.salu("s_mov_b32", "exec_hi", "0xffff0000")
    for i in range(80):
        b.valu("v_mov_b32", vr(V_V + i), "0x3f803f80")
    b.salu("s_mov_b64", "exec", -1)
    b.salu("s_lshl_b32", sr(S_T0), sr(S_RB), 16)
    b.salu("s_lshl_b32", sr(S_T1), sr(S_CB), 11)
    b.salu("s_add_u32", sr(S_SO), sr(S_T0), sr(S_T1))
    b.salu("s_add_u32", sr(S_SO), sr(S_SO), OF)
    b.valu("v_and_b32", vr(V_T0), 31, vr(V_L))
    b.valu("v_lshrrev_b32", vr(V_T1), 5, vr(V_L))
    b.valu("v_lshlrev_b32", vr(V_T1), 2, vr(V_T1))
    b.valu("v_sub_u32", vr(V_T0), vr(V_T0), vr(V_T1))
    b.nop(5)
    for r in range(16):
        c = (r & 3) + 8 * (r >> 2)
        b.valu("v_cmp_le_i32", sr(S_MASK + 2 * r, 2), c, vr(V_T0))
    b.valu("v_mov_b32", vr(V_T0), "0xffff")
    b.valu("v_mov_b32", vr(V_T1), "0xffff0000")
    for i in range(8):
        b.valu("v_cndmask_b32", vr(V_MSK + i), 0, vr(V_T0), sr(S_MASK + 4 * i, 2))
        b.valu("v_cndmask_b32", vr(V_M0), 0, vr(V_T1), sr(S_MASK + 4 * i + 2, 2))
        b.valu("v_or_b32", vr(V_MSK + i), vr(V_MSK + i), vr(V_M0))
    stamp(b, 0)

    for task in range(2):
        q = vr(V_Q + 4 * task, 4)
        Kf = lambda j: vr(V_K + 4 * (8 + task - j), 4)
        Vf = lambda j, mf: vr(V_V + 8 * (8 + task - j) + 4 * mf, 4)
        ktag = lambda j: f"k{8 + task - j}"
        vtag = lambda j: f"v{8 + task - j}"
        b.salu("s_lshl_b32", sr(S_T0), sr(S_RB), 1)
        b.salu("s_add_u32", sr(S_T0), sr(S_T0), task)
        b.salu("s_min_u32", sr(S_NF), sr(S_T0), 7)
        b.salu("s_cmp_ge_u32", sr(S_T0), 8)
        b.salu("s_cselect_b32", sr(S_BIAS), 0, hex(f32bits(-1e30)))
        for i in range(16):
            b.valu("v_mov_b32", vr(V_B0 + i), sr(S_BIAS))
        L1, L2 = b.newlabel(name + "_p1"), b.newlabel(name + "_p2")
        bufs = [V_CN, V_O, V_B0, V_B1]
        b.wait(vm=["q", ktag(8)])
        b.mfma(vr(V_B0, 16), Kf(8), q, vr(V_B0, 16))
        b.wait(vm=ktag(0))
        b.mfma(vr(V_B1, 16), Kf(0), q, "0")
        for j in (1, 2):
            b.wait(vm=ktag(j))
            b.mfma(vr(bufs[(j - 1) % 4], 16), Kf(j), q, "0")
        for r in range(16):
            b.valu("v_cndmask_b32", vr(V_SM + r), vr(V_B0 + r), vr(V_B1 + r), sr(S_MASK + 2 * r, 2))

        def maxtree(buf, first):
            for i in range(8):
                m = V_M0 + (i % 2)
                if first and i < 2:
                    b.valu("v_max_f32", vr(m), vr(buf + 2 * i), vr(buf + 2 * i + 1))
                else:
                    b.valu("v_max3_f32", vr(m), vr(buf + 2 * i), vr(buf + 2 * i + 1), vr(m))
        maxtree(V_SM, True)
        for j in range(1, 8):
            b.salu("s_cmp_lt_u32", sr(S_NF), j)
            b.branch("s_cbranch_scc1", L1)
            if j + 2 <= 7:
                b.wait(vm=ktag(j + 2))
                b.mfma(vr(bufs[(j + 1) % 4], 16), Kf(j + 2), q, "0")
            maxtree(bufs[(j - 1) % 4], False)
        b.label(L1)
        b.valu("v_max_f32", vr(V_M0), vr(V_M0), vr(V_M1))
        b.valu("v_mov_b32", vr(V_M1), vr(V_M0))
        b.valu("v_permlane32_swap_b32", vr(V_M1), vr(V_M0))
        b.valu("v_max_f32", vr(V_M0), vr(V_M0), vr(V_M1))
        b.valu("v_sub_f32", vr(V_NEG), 0, vr(V_M0))
        b.nop(4)
        for i in range(16):
            b.valu("v_mov_b32", vr(V_CN + i), vr(V_NEG))
        bufs2 = [V_B0, V_B1, V_SM]
        for j in (1, 2):
            b.mfma(vr(bufs2[(j - 1) % 3], 16), Kf(j), q, vr(V_CN, 16))
        for r in range(16):
            b.valu("v_add_f32", vr(V_SM + r), vr(V_NEG), vr(V_SM + r))

        def expcvt(buf):
            for r in range(16):
                b.valu("v_exp_f32", vr(buf + r), vr(buf + r))
                if r % 2 == 1 and r >= 3:
                    i = (r - 3) // 2
                    b.valu("v_cvt_pk_bf16_f32", vr(buf + i), vr(buf + 2 * i), vr(buf + 2 * i + 1))
            b.valu("v_cvt_pk_bf16_f32", vr(buf + 7), vr(buf + 14), vr(buf + 15))
        expcvt(V_SM)
        for i in range(8):
            b.valu("v_and_b32", vr(V_SM + 8 + i), vr(V_MSK + i), vr(V_SM + i))
        for i in range(8):
            b.valu("v_xor_b32", vr(V_SM + i), vr(V_SM + i), vr(V_SM + 8 + i))
        b.wait(vm=[vtag(0), vtag(8)])
        b.mfma(vr(V_O, 16), Vf(0, 0), vr(V_SM + 8, 4), "0")
        b.mfma(vr(V_O, 16), Vf(0, 1), vr(V_SM + 12, 4), vr(V_O, 16))
        b.mfma(vr(V_O, 16), Vf(8, 0), vr(V_SM, 4), vr(V_O, 16))
        b.mfma(vr(V_O, 16), Vf(8, 1), vr(V_SM + 4, 4), vr(V_O, 16))
        for j in range(1, 8):
            b.salu("s_cmp_lt_u32", sr(S_NF), j)
            b.branch("s_cbranch_scc1", L2)
            if j + 2 <= 7:
                b.mfma(vr(bufs2[(j + 1) % 3], 16), Kf(j + 2), q, vr(V_CN, 16))
            buf = bufs2[(j - 1) % 3]
            expcvt(buf)
            b.wait(vm=vtag(j))
            b.mfma(vr(V_O, 16), Vf(j, 0), vr(buf, 4), vr(V_O, 16))
            b.mfma(vr(V_O, 16), Vf(j, 1), vr(buf + 4, 4), vr(V_O, 16))
        b.label(L2)
        b.valu("v_rcp_f32", vr(V_T0), vr(V_O + 8))
        for i in range(8):
            b.valu("v_mul_f32", vr(V_O + i), vr(V_T0), vr(V_O + i))
        for i in range(4):
            b.valu("v_cvt_pk_bf16_f32", vr(V_O + 8 + i), vr(V_O + 2 * i), vr(V_O + 2 * i + 1))
        b.vmem_store("buffer_store_dwordx4", vr(V_O + 8, 4), vr(V_QO), sr(S_WS, 4), sr(S_SO),
                     mods=(f"offset:{1024*task} " if task else "") + "sc1", tag="ost")
        stamp(b, 1 + task)
    b.wait(vm=0)
    b.valu("v_mov_b32", vr(V_T0), CNT_OFF)
    b.valu("v_mov_b32", vr(V_T1), 1)
    b.salu("s_mov_b64", "exec", 1)
    b.raw(f"  ds_add_rtn_u32 {vr(V_M0)}, {vr(V_T0)}, {vr(V_T1)}")
    b.raw("  s_waitcnt lgkmcnt(0)")
    b.valu("v_readfirstlane_b32", sr(S_T0), vr(V_M0))
    ld = b.newlabel(name + "_nf")
    b.salu("s_cmp_lg_u32", sr(S_T0), 3)
    b.branch("s_cbranch_scc1", ld)
    b.salu("s_lshl_b32", sr(S_T0), "s2", 7)
    b.salu("s_add_u32", sr(S_T0), sr(S_T0), FL)
    b.valu("v_mov_b32", vr(V_T0), 0)
    b.vmem_store("buffer_store_dword", vr(V_T1), vr(V_T0), sr(S_WS, 4), sr(S_T0), mods="sc1")
    b.label(ld)
    if g1.STAMPS:
        stamp(b, 3)
        stamp_out(b, [0, 1, 2, 3], 15, 4)
    b.raw("  s_endpgm")
```

```python
import sys
import gen_k1 as g1
if "stamps" in sys.argv:
    g1.STAMPS = True
import gen_k2 as g2
if 'nocpf' not in g1.OPT:
    g1.CODE_PF = 'k2_kernel'
hdr = open("parallel_sum__sliding_block__glu_gated_reglu__prompt.s.ref").read().split("; Override launch")[0]
s = hdr
s += f"; @launch kernel=k1_kernel grid=(256,1,1) block=(512,1,1) lds={g1.LDS_K1}\n"
s += f"; @launch kernel=k2_kernel grid=(256,1,1) block=(512,1,1) lds={g2.LDS_K2}\n"
s += '.amdgcn_target "amdgcn-amd-amdhsa--gfx950"\n.text\n'
s += g1.k1()
s += g2.k2()
s += '.fill 1024, 4, 0xbf800000\n'
s += '.section .rodata,"a"\n' + g1.desc("k1_kernel") + g1.desc("k2_kernel", vgpr=232)
open(sys.argv[1], "w").write(s)
```

```python
import re


def vr(lo, n=1):
    return f"v{lo}" if n == 1 else f"v[{lo}:{lo+n-1}]"


def sr(lo, n=1):
    return f"s{lo}" if n == 1 else f"s[{lo}:{lo+n-1}]"


_RE = re.compile(r"\b([vs])(\d+)\b|\b([vs])\[(\d+):(\d+)\]|\b(vcc|exec|m0|scc)\b")


def regs_of(text):
    out = []
    for m in _RE.finditer(text):
        if m.group(1):
            out.append((m.group(1), int(m.group(2))))
        elif m.group(3):
            for i in range(int(m.group(4)), int(m.group(5)) + 1):
                out.append((m.group(3), i))
        else:
            out.append((m.group(6), 0))
    return out


TRANS = ("v_exp_f32", "v_log_f32", "v_rcp_f32", "v_rsq_f32", "v_sqrt_f32", "v_sin_f32", "v_cos_f32")


class B:
    def __init__(self):
        self.lines = []
        self.pos = 0
        self.valu_w = {}
        self.trans_w = {}
        self.mfma_w = {}
        self.mfma_c = {}
        self.sgpr_vw = {}
        self.dot_w = {}
        self.store_d = {}
        self.m0_w = -100
        self.exec_valu_w = -100
        self.vm = [[] for _ in range(8)]
        self.par = None
        self.lg = []
        self.opt_depth = 0
        self.regions = []
        self.nlabel = 0
        self.ninstr = 0

    def raw(self, s):
        self.lines.append(s)

    def comment(self, s):
        self.lines.append("  ; " + s)

    def label(self, name):
        self.lines.append(name + ":")

    def newlabel(self, p="L"):
        self.nlabel += 1
        return f"{p}_{id(self) & 0xffff:x}_{self.nlabel}"

    def _emit(self, s, states=1):
        self.lines.append("  " + s)
        self.pos += states
        self.ninstr += 1

    def nop(self, n):
        while n > 0:
            k = min(n, 16)
            self._emit(f"s_nop {k-1}", k)
            n -= k

    def _need(self, p, ws):
        have = self.pos - p - 1
        if have < ws:
            self.nop(ws - have)

    def opt_begin(self):
        self.regions.append(self.pos)
        self.opt_depth += 1

    def opt_end(self):
        p0 = self.regions.pop()
        self.opt_depth -= 1
        pend = self.pos
        shift = pend - p0
        for d in (self.valu_w, self.trans_w, self.mfma_c, self.sgpr_vw, self.store_d):
            for k, v in d.items():
                if v >= p0:
                    d[k] = v - shift
        for d in (self.mfma_w, self.dot_w):
            for k, v in d.items():
                if v[0] >= p0:
                    d[k] = (v[0] - shift, v[1])
        if self.m0_w >= p0:
            self.m0_w -= shift
        if self.exec_valu_w >= p0:
            self.exec_valu_w -= shift
        self.pos = p0

    def forget(self, pad=0):
        if pad:
            self.nop(pad)

    def _chk_vread(self, regs, kind, op=None):
        for r in regs:
            if r[0] == 'v':
                i = r[1]
                if i in self.mfma_w:
                    p, k = self.mfma_w[i]
                    if kind == 'mfma_c':
                        pass
                    else:
                        self._need(p, 12 + 2)
                if i in self.valu_w:
                    p = self.valu_w[i]
                    if kind in ('mfma_ab', 'mfma_c', 'permlane', 'dpp'):
                        self._need(p, 2)
                    elif kind == 'readlane':
                        self._need(p, 1)
                if i in self.trans_w and kind in ('valu', 'permlane', 'dpp', 'readlane', 'mfma_ab', 'mfma_c', 'vmem', 'ds'):
                    self._need(self.trans_w[i], 1)
                if i in self.dot_w:
                    p, o = self.dot_w[i]
                    if not (kind == 'valu' and op == o):
                        self._need(p, 3)
            elif r[0] in ('s', 'vcc'):
                if r in self.sgpr_vw:
                    p = self.sgpr_vw[r]
                    if kind in ('vmem',):
                        self._need(p, 5)
                    elif kind in ('valu', 'permlane', 'dpp'):
                        self._need(p, 2)
                    elif kind == 'readlane':
                        self._need(p, 4)
                    elif kind == 'salu':
                        self._need(p, 1)

    def _chk_vwrite(self, regs, kind, op=None):
        for r in regs:
            if r[0] == 'v':
                i = r[1]
                if i in self.mfma_w and kind != 'mfma':
                    self._need(self.mfma_w[i][0], 12 + 2)
                if i in self.mfma_c and kind == 'valu':
                    self._need(self.mfma_c[i], 7 + 1)
                if i in self.store_d:
                    self._need(self.store_d[i], 2)
                if i in self.dot_w:
                    p, o = self.dot_w[i]
                    if not (kind == 'valu' and op == o):
                        self._need(p, 3)

    def valu(self, op, dst, *srcs, mods=""):
        dsts = dst if isinstance(dst, (list, tuple)) else [dst]
        rd = []
        for s in srcs:
            rd += regs_of(str(s))
        wr = []
        for d in dsts:
            wr += regs_of(d)
        kind = 'valu'
        if op.startswith('v_permlane'):
            kind = 'permlane'
            rd += wr
            wr = wr + regs_of(str(srcs[0]))
        elif op.startswith('v_readfirstlane') or op.startswith('v_readlane'):
            kind = 'readlane'
        elif 'dpp' in op:
            kind = 'dpp'
        if op.startswith('v_fmac') or op.startswith('v_dot2c'):
            rd += wr
        if op.startswith('v_cndmask') and len(srcs) == 2:
            rd.append(('vcc', 0))
        isdot = op.startswith('v_dot2')
        if isdot:
            for s in srcs[:2]:
                for r in regs_of(str(s)):
                    if r[0] == 'v' and r[1] in self.dot_w:
                        self._need(self.dot_w[r[1]][0], 3)
        self._chk_vread(rd, kind, op)
        self._chk_vwrite(wr, 'valu', op)
        txt = f"{op} " + ", ".join(list(dsts) + [str(s) for s in srcs])
        if op.startswith('v_cndmask') and len(srcs) == 2:
            txt += ", vcc"
        if mods:
            txt += " " + mods
        p = self.pos
        self._emit(txt)
        for r in wr:
            if r[0] == 'v':
                self.valu_w[r[1]] = p
                self.mfma_w.pop(r[1], None)
                self.trans_w.pop(r[1], None)
                self.dot_w.pop(r[1], None)
                if op.replace('_e32', '').replace('_e64', '') in TRANS:
                    self.trans_w[r[1]] = p
                if isdot:
                    self.dot_w[r[1]] = (p, op)
            elif r[0] in ('s', 'vcc'):
                self.sgpr_vw[r] = p
            elif r[0] == 'exec':
                self.exec_valu_w = p

    def salu(self, op, *ops):
        rd = []
        for s in ops[1:]:
            rd += regs_of(str(s))
        if op.startswith('s_cmp') or op.startswith('s_cbranch'):
            rd += regs_of(str(ops[0])) if ops else []
        self._chk_vread(rd, 'salu')
        p = self.pos
        self._emit(f"{op} " + ", ".join(str(o) for o in ops))
        if ops and not (op.startswith('s_cmp') or op.startswith('s_cbranch')):
            for r in regs_of(str(ops[0])):
                if r[0] == 'm0':
                    self.m0_w = p
                self.sgpr_vw.pop(r, None)

    def branch(self, op, target):
        if op in ('s_cbranch_vccz', 's_cbranch_vccnz') and ('vcc', 0) in self.sgpr_vw:
            self._need(self.sgpr_vw[('vcc', 0)], 5)
        self._emit(f"{op} {target}")

    def mfma(self, d, a, b, c, op="v_mfma_f32_32x32x16_bf16"):
        rd_ab = regs_of(a) + regs_of(b)
        rc = regs_of(str(c))
        wr = regs_of(d)
        self._chk_vread(rd_ab, 'mfma_ab')
        self._chk_vread(rc, 'mfma_c')
        for r in rc:
            if r[0] == 'v' and r[1] in self.mfma_w:
                p, k = self.mfma_w[r[1]]
                if k != str(c):
                    self._need(p, 10 + 1)
        for r in wr:
            if r[1] in self.mfma_w:
                p, k = self.mfma_w[r[1]]
                if k != d:
                    self._need(p, 10 + 1)
            if r[1] in self.store_d:
                self._need(self.store_d[r[1]], 2)
        self._need(self.exec_valu_w, 4)
        p = self.pos
        self._emit(f"{op} {d}, {a}, {b}, {c}")
        for r in wr:
            self.mfma_w[r[1]] = (p, d)
            self.valu_w.pop(r[1], None)
            self.trans_w.pop(r[1], None)
            self.dot_w.pop(r[1], None)
        for r in rc:
            if r[0] == 'v':
                self.mfma_c[r[1]] = p

    def _push(self, q, tag):
        if q is self.vm:
            if self.par is None:
                for v in q:
                    v.append((tag, self.opt_depth > 0))
            else:
                for p in self.par:
                    q[p].append((tag, self.opt_depth > 1))
        else:
            q.append((tag, self.opt_depth > 0))

    def vmem_load(self, op, dst, vaddr, srd, soff, mods="", tag=None):
        self._chk_vread(regs_of(vaddr) + regs_of(srd) + regs_of(str(soff)), 'vmem')
        self._chk_vwrite(regs_of(dst), 'vmem')
        self._emit(f"{op} {dst}, {vaddr}, {srd}, {soff} offen {mods}".rstrip())
        for r in regs_of(dst):
            self.valu_w.pop(r[1], None); self.mfma_w.pop(r[1], None); self.trans_w.pop(r[1], None); self.dot_w.pop(r[1], None)
        self._push(self.vm, tag)

    def vmem_dma(self, vaddr, srd, soff, mods="", tag=None, op="buffer_load_dwordx4"):
        self._chk_vread(regs_of(vaddr) + regs_of(srd) + regs_of(str(soff)), 'vmem')
        self._need(self.m0_w, 1)
        self._emit(f"{op} {vaddr}, {srd}, {soff} offen {mods} lds".replace("  ", " "))
        self._push(self.vm, tag)

    def vmem_store(self, op, data, vaddr, srd, soff, mods="", tag=None):
        self._chk_vread(regs_of(data) + regs_of(vaddr) + regs_of(srd) + regs_of(str(soff)), 'vmem')
        p = self.pos
        self._emit(f"{op} {data}, {vaddr}, {srd}, {soff} offen {mods}".rstrip())
        for r in regs_of(data):
            self.store_d[r[1]] = p
        self._push(self.vm, tag)

    def ds_read(self, op, dst, vaddr, offset=0, tag=None):
        assert 0 <= offset < 65536, offset
        self._chk_vread(regs_of(vaddr), 'ds')
        self._chk_vwrite(regs_of(dst), 'ds')
        self._emit(f"{op} {dst}, {vaddr} offset:{offset}")
        for r in regs_of(dst):
            self.valu_w.pop(r[1], None); self.mfma_w.pop(r[1], None); self.trans_w.pop(r[1], None); self.dot_w.pop(r[1], None)
        self._push(self.lg, tag)

    def ds_write(self, op, vaddr, data, offset=0, tag=None):
        assert 0 <= offset < 65536, offset
        self._chk_vread(regs_of(vaddr) + regs_of(data), 'ds')
        self._emit(f"{op} {vaddr}, {data} offset:{offset}")
        self._push(self.lg, tag)

    def _count_after(self, q, tags):
        last = -1
        for i, (t, o) in enumerate(q):
            if t in tags:
                last = i
        if last < 0:
            return None, q
        n = sum(1 for (t, o) in q[last + 1:] if not o)
        return n, q[last + 1:]

    def wait(self, vm=None, lg=None):
        parts = []
        if vm is not None:
            if vm == 0:
                if True:
                    parts.append("vmcnt(0)")
                if self.opt_depth == 0:
                    self.vm = [[] for _ in range(8)]
            else:
                tags = set(vm) if isinstance(vm, (list, tuple, set)) else {vm}
                res = [self._count_after(v, tags) for v in self.vm]
                ns = [n for (n, rest) in res if n is not None]
                if ns:
                    parts.append(f"vmcnt({min(min(ns), 63)})")
                    if self.opt_depth == 0:
                        self.vm = [rest for (n, rest) in res]
        if lg is not None:
            if lg == 0:
                parts.append("lgkmcnt(0)")
                if self.opt_depth == 0:
                    self.lg = []
            else:
                tags = set(lg) if isinstance(lg, (list, tuple, set)) else {lg}
                n, rest = self._count_after(self.lg, tags)
                if n is not None:
                    parts.append(f"lgkmcnt({min(n, 15)})")
                    if self.opt_depth == 0:
                        self.lg = rest
        if parts:
            self._emit("s_waitcnt " + " ".join(parts))

    def barrier(self):
        self._emit("s_barrier")

    def text(self):
        return "\n".join(self.lines) + "\n"
```

```python
from asmb import *
import os, copy, struct
OPT = set(os.environ.get('K1OPT', '').split(','))


def optval(name, default):
    for o in OPT:
        if o.startswith(name + "="):
            return int(o.split("=")[1])
    return default


QF = 0x000000
KF = 0x200000
VF = 0x400000
HF = 0x600000
HF_RB = 86 * 2048
OF = 0xC00000
FL = 0xE00000
RSG = 0xE08000
CSG = 0xE10000
CSG_H = 4352 * 8
WS_USED = 0xE28000

NSLOT = 9
SLOT = 16384
MISC = NSLOT * SLOT
ST_OFF = MISC
CS_OFF = MISC + 1024
CP_OFF = MISC + 4096
NC_OFF = MISC + 6144
LDS_K1 = MISC + 8192

QSCALE = 0.25 * 1.4426950408889634


def f32bits(x):
    return struct.unpack("<I", struct.pack("<f", x))[0]


S_X, S_W, S_WS, S_C, S_DBG = 24, 28, 32, 52, 56
S_WV, S_R, S_P, S_RB, S_CG, S_G = 36, 37, 38, 39, 40, 41
S_W2K, S_SOFF, S_T0, S_T1, S_T2, S_ONES, S_SCALE = 42, 43, 44, 45, 46, 47, 48
S_OB, S_T3, S_STO = 49, 50, 51
S_TASK, S_LO, S_HI, S_CSO = 60, 61, 62, 63
S_CARE0, S_CARE1 = 64, 66
S_U0, S_U1, S_U2 = 90, 91, 92
S_ROT, S_ROTR = 93, 94
S_GP = 10
S_ST = 68

V_LANE = 0
V_XO0, V_XO1, V_WO0, V_WO1, V_SO0, V_SO1 = 1, 2, 3, 4, 5, 6
V_TR = 7
V_XB = 13
V_XT = 16
V_G0, V_G1 = 17, 18
V_CSRD = 19
V_NM, V_RS = 20, 21
V_STO = 22
V_SRD = 23
V_FLG = 24
V_T0, V_T1, V_T2 = 25, 26, 27
V_STR = 28
V_NCS = 30
V_NON = 118
V_RING = 32
V_TMP = 56
V_ACC = 64
V_X = 128
V_PRO = 96

STAMPS = False
CODE_PF = None


def stamp(b, i, wait=False):
    if STAMPS:
        b.raw(f"  {'s_memtime' if 'cyc' in OPT else 's_memrealtime'} s[{S_ST+2*i}:{S_ST+2*i+1}]")
        if wait:
            b.raw("  s_waitcnt lgkmcnt(0)")


def stamp_out(b, n, base=0, wave=0):
    if not STAMPS:
        return
    b.raw("  s_waitcnt vmcnt(0)")
    stamp(b, n - 1)
    b.raw("  s_waitcnt lgkmcnt(0)")
    b.raw(f"  s_mov_b32 s{S_WS+2}, 0x1000000")
    b.raw("  s_lshl_b32 s3, s2, 3")
    b.raw(f"  s_add_u32 s3, s3, s{S_WV}")
    b.raw("  s_lshl_b32 s3, s3, 2")
    b.raw(f"  s_add_u32 s3, s3, {0xF00000 + base*8192}")
    b.raw("  v_mov_b32 v1, 0")
    for i in range(n):
        b.raw(f"  v_mov_b32 v2, s{S_ST+2*i}")
        b.raw(f"  buffer_store_dword v2, v1, s[{S_WS}:{S_WS+3}], s3 offen")
        b.raw("  s_add_u32 s3, s3, 8192")
        b.raw("  s_nop 1")


def k1(store_mods="sc1", name="k1_kernel"):
    b = B()
    b.raw(f".globl {name}\n.p2align 8\n.type {name},@function\n{name}:")
    L_END = name + "_end"
    b.salu("s_cmp_ge_u32", "s2", 256)
    b.branch("s_cbranch_scc1", L_END)
    stamp(b, 0)
    b.raw("  s_load_dwordx16 s[4:19], s[0:1], 0")
    b.raw("  s_load_dwordx4 s[20:23], s[0:1], 64")
    b.valu("v_lshrrev_b32", vr(V_T0), 6, "v0")
    b.valu("v_and_b32", vr(V_LANE), 63, "v0")
    b.valu("v_readfirstlane_b32", sr(S_WV), vr(V_T0))
    b.salu("s_and_b32", sr(S_T0), "s2", 1)
    b.salu("s_lshl_b32", sr(S_T0), sr(S_T0), 3)
    b.salu("s_bfe_u32", sr(S_T1), "s2", (3 << 16) | 3)
    b.salu("s_add_u32", sr(S_RB), sr(S_T0), sr(S_T1))
    b.salu("s_bfe_u32", sr(S_T0), "s2", (2 << 16) | 1)
    b.salu("s_lshl_b32", sr(S_T0), sr(S_T0), 2)
    b.salu("s_lshr_b32", sr(S_T1), "s2", 6)
    b.salu("s_add_u32", sr(S_CG), sr(S_T0), sr(S_T1))
    b.salu("s_and_b32", sr(S_R), sr(S_WV), 3)
    b.salu("s_lshr_b32", sr(S_P), sr(S_WV), 2)
    b.salu("s_lshl_b32", sr(S_W2K), sr(S_WV), 11)
    b.salu("s_lshl_b32", sr(S_ROT), sr(S_CG), 1)
    b.salu("s_add_u32", sr(S_ROT), sr(S_ROT), sr(S_RB))
    if 'norot' in OPT:
        b.salu("s_mov_b32", sr(S_ROT), 0)
    b.salu("s_add_u32", sr(S_ROTR), sr(S_ROT), sr(S_R))
    b.salu("s_mov_b32", sr(S_ONES), "0x3f803f80")
    b.salu("s_mov_b32", sr(S_LO), "0x3f80")
    b.salu("s_mov_b32", sr(S_HI), "0x3f800000")
    b.salu("s_sub_u32", sr(S_T0), sr(S_CG), 6)
    b.salu("s_cmp_lt_u32", sr(S_CG), 6)
    b.salu("s_cselect_b32", sr(S_T1), sr(S_CG), sr(S_T0))
    b.salu("s_mul_i32", sr(S_TASK), sr(S_RB), 10)
    b.salu("s_add_u32", sr(S_TASK), sr(S_TASK), sr(S_T1))
    b.salu("s_cmp_lt_u32", sr(S_T0), 6)
    b.salu("s_cselect_b32", sr(S_TASK), 999, sr(S_TASK))
    b.valu("v_lshrrev_b32", vr(V_T0), 3, vr(V_LANE))
    b.salu("s_lshl_b32", sr(S_T0), sr(S_WV), 4)
    b.valu("v_add_u32", vr(V_T1), sr(S_T0), vr(V_T0))
    for i, dst in ((0, V_XO0), (1, V_XO1)):
        if i == 1:
            b.valu("v_add_u32", vr(V_T1), 8, vr(V_T1))
        b.valu("v_lshrrev_b32", vr(V_T2), 1, vr(V_T1))
        b.valu("v_xor_b32", vr(V_T2), vr(V_T2), vr(V_LANE))
        b.valu("v_and_b32", vr(V_T2), 7, vr(V_T2))
        b.valu("v_lshlrev_b32", vr(V_T2), 4, vr(V_T2))
        b.valu("v_lshl_add_u32", vr(dst), vr(V_T1), 10, vr(V_T2))
    b.valu("v_subrev_u32", vr(V_XO1), 1024, vr(V_XO1))
    b.valu("v_lshlrev_b32", vr(V_STO), 4, vr(V_LANE))
    b.wait(lg=0)
    if 'sst' in OPT:
        stamp(b, 1, wait=True)
    b.salu("s_lshl_b32", sr(S_T0), sr(S_RB), 17)
    b.salu("s_add_u32", sr(S_X), "s4", sr(S_T0))
    b.salu("s_addc_u32", sr(S_X + 1), "s5", 0)
    b.salu("s_mov_b32", sr(S_X + 2), 0x20000)
    b.salu("s_mov_b32", sr(S_X + 3), 0x20000)
    b.salu("s_mov_b32", sr(S_WS), "s22")
    b.salu("s_mov_b32", sr(S_WS + 1), "s23")
    b.salu("s_mov_b32", sr(S_WS + 2), WS_USED)
    b.salu("s_mov_b32", sr(S_WS + 3), 0x20000)
    b.salu("s_mov_b32", sr(S_W + 3), 0x20000)
    b.salu("s_mov_b32", sr(S_C + 3), 0x20000)
    b.salu("s_mov_b32", sr(S_DBG), "s20")
    b.salu("s_mov_b32", sr(S_DBG + 1), "s21")
    b.salu("s_mov_b32", sr(S_DBG + 2), 256)
    b.salu("s_mov_b32", sr(S_DBG + 3), 0x20000)
    b.salu("s_or_b32", sr(S_T0), "s2", sr(S_WV))
    b.salu("s_cmp_lg_u32", sr(S_T0), 0)
    b.branch("s_cbranch_scc1", name + "_nl")
    b.raw(f"  s_memrealtime s[{S_CARE0}:{S_CARE0+1}]")
    b.raw("  s_waitcnt lgkmcnt(0)")
    b.salu("s_or_b32", sr(S_CARE0 + 1), sr(S_CARE0 + 1), "0x80000000")
    b.valu("v_mov_b32", vr(V_NON), sr(S_CARE0))
    b.valu("v_mov_b32", vr(V_NON + 1), sr(S_CARE0 + 1))
    b.valu("v_mov_b32", vr(V_T0), 0)
    b.salu("s_mov_b64", "exec", 1)
    b.vmem_store("buffer_store_dwordx2", vr(V_NON, 2), vr(V_T0), sr(S_DBG, 4), "0", mods="sc1")
    b.salu("s_mov_b64", "exec", -1)
    b.label(name + "_nl")
    L_V, L_F = name + "_v", name + "_f"
    b.salu("s_cmp_ge_u32", sr(S_CG), 6)
    b.branch("s_cbranch_scc1", L_F)
    b.salu("s_cmp_ge_u32", sr(S_CG), 4)
    b.branch("s_cbranch_scc1", L_V)
    txt = b.text()
    for typ, lab in (("qk", None), ("v", L_V), ("f", L_F)):
        bb = B()
        bb.nlabel = {"qk": 1000, "v": 2000, "f": 3000}[typ]
        if lab:
            bb.label(lab)
        path(bb, typ, store_mods, name)
        txt += bb.text()
        print(f"k1 path {typ}: {bb.ninstr} instrs")
    txt += f"{L_END}:\n  s_endpgm\n"
    return txt


def path(b, typ, store_mods, name):
    ffn = typ == "f"
    stride = 2752 if ffn else 3072
    lab = lambda s: f"{name}_{typ}_{s}"
    INIT = optval("init", 4)
    if ffn:
        b.salu("s_sub_u32", sr(S_G), sr(S_CG), 6)
        b.salu("s_cmp_eq_u32", sr(S_P), 0)
        b.salu("s_cselect_b32", sr(S_W), "s12", "s14")
        b.salu("s_cselect_b32", sr(S_W + 1), "s13", "s15")
        b.salu("s_mov_b32", sr(S_W + 2), 512 * 2752)
        b.salu("s_lshl_b32", sr(S_T0), sr(S_G), 8)
    else:
        b.salu("s_mov_b32", sr(S_W), "s6")
        b.salu("s_mov_b32", sr(S_W + 1), "s7")
        b.salu("s_mov_b32", sr(S_W + 2), 512 * 3072)
        b.salu("s_lshl_b32", sr(S_T0), sr(S_CG), 9)
        b.salu("s_lshl_b32", sr(S_T1), sr(S_P), 7)
        b.salu("s_add_u32", sr(S_T0), sr(S_T0), sr(S_T1))
    b.salu("s_mul_i32", sr(S_T1), sr(S_R), 16 * stride)
    b.salu("s_add_u32", sr(S_T0), sr(S_T0), sr(S_T1))
    b.valu("v_lshrrev_b32", vr(V_T0), 3, vr(V_LANE))
    b.valu("v_mul_u32_u24", vr(V_T0), stride, vr(V_T0))
    b.valu("v_add_u32", vr(V_T0), sr(S_T0), vr(V_T0))
    b.valu("v_bfe_u32", vr(V_T1), vr(V_LANE), 4, 1)
    if ffn:
        b.valu("v_lshlrev_b32", vr(V_T1), 1, vr(V_T1))
        b.salu("s_lshl_b32", sr(S_T1), sr(S_P), 2)
        b.valu("v_or_b32", vr(V_T1), sr(S_T1), vr(V_T1))
    else:
        b.valu("v_lshlrev_b32", vr(V_T1), 2, vr(V_T1))
    b.valu("v_xor_b32", vr(V_T1), vr(V_T1), vr(V_LANE))
    b.valu("v_and_b32", vr(V_T1), 7, vr(V_T1))
    b.valu("v_lshl_add_u32", vr(V_WO0), vr(V_T1), 4, vr(V_T0))
    b.valu("v_add_u32", vr(V_WO1), 8 * stride - 1024, vr(V_WO0))

    units = []
    for t in range(8):
        units += [("X", t), ("W", t)]
    for t in range(8):
        units += [("W", 8 + t)]
    if ffn:
        units += [("S", 0), ("S", 1)]
    phase_units = {t: [("X", t), ("W", t)] for t in range(8)}
    for t in range(8, 16):
        phase_units[t] = [("W", t)]
    if ffn:
        phase_units[16] = [("S", 0), ("S", 1)]
    slot_of = {}
    free = list(range(NSLOT))
    st = {"n": 0, "half": 0, "sot": None}
    done_units = set()

    def step():
        if st["n"] >= len(units):
            return None
        u = units[st["n"]]
        k, i = u
        tag = f"{k}{i}"
        if k == "X":
            rot, ch, mul, add, v0, v1, srd = S_ROT, i, 128, 0, V_XO0, V_XO1, S_X
        elif k == "W":
            rot, ch, mul, add, v0, v1, srd = S_ROT, i % 8, 64 * stride, (i // 8) * (128 if ffn else 256), V_WO0, V_WO1, S_W
        else:
            rot, ch, mul, add, v0, v1, srd = S_ROTR, 4 * i, 64 * stride, 0, V_SO0, V_SO1, S_W
        if st["half"] == 0:
            if not free:
                return None
            sl = free.pop(0)
            slot_of[u] = sl
            if 'norot' in OPT and rot == S_ROT:
                b.salu("s_mov_b32", sr(S_SOFF), ch * mul + add)
            else:
                b.salu("s_add_u32", sr(S_SOFF), sr(rot), ch)
                b.salu("s_and_b32", sr(S_SOFF), sr(S_SOFF), 7)
                b.salu("s_mul_i32", sr(S_SOFF), sr(S_SOFF), mul)
                if add:
                    b.salu("s_add_u32", sr(S_SOFF), sr(S_SOFF), add)
            b.salu("s_add_u32", "m0", sr(S_W2K), sl * SLOT)
            st["sot"] = sr(S_SOFF)
            b.vmem_dma(vr(v0), sr(srd, 4), st["sot"], tag=tag)
            st["half"] = 1
        else:
            b.vmem_dma(vr(v1), sr(srd, 4), st["sot"], mods="offset:1024", tag=tag)
            st["half"] = 0
            st["n"] += 1
            done_units.add(u)
        return tag

    def pace(n):
        for _ in range(n):
            if step() is None:
                break

    grp = []

    def uparams(u):
        k, i = u
        if k == "X":
            return S_ROT, i, 128, 0, V_XO0, V_XO1, S_X
        elif k == "W":
            return S_ROT, i % 8, 64 * stride, (i // 8) * (128 if ffn else 256), V_WO0, V_WO1, S_W
        return S_ROTR, 4 * i, 64 * stride, 0, V_SO0, V_SO1, S_W

    def group_begin(n):
        assert st["half"] == 0
        grp.clear()
        while len(grp) < n and free and st["n"] < len(units):
            u = units[st["n"]]
            st["n"] += 1
            sl = free.pop(0)
            slot_of[u] = sl
            rot, ch, mul, add, v0, v1, srd = uparams(u)
            g = S_GP + 2 * len(grp)
            b.salu("s_add_u32", sr(g), sr(S_W2K), sl * SLOT)
            if 'norot' in OPT and rot == S_ROT:
                b.salu("s_mov_b32", sr(g + 1), ch * mul + add)
            else:
                b.salu("s_add_u32", sr(g + 1), sr(rot), ch)
                b.salu("s_and_b32", sr(g + 1), sr(g + 1), 7)
                b.salu("s_mul_i32", sr(g + 1), sr(g + 1), mul)
                if add:
                    b.salu("s_add_u32", sr(g + 1), sr(g + 1), add)
            grp.append(u)

    def group_issue(h):
        if not grp:
            return
        w = WORD[h]
        l1 = b.newlabel(lab("gi"))
        b.salu("s_cmp_lg_u32", sr(S_WV), w)
        b.branch("s_cbranch_scc1", l1)
        b.opt_begin()
        b.par = [w]
        for n, u in enumerate(grp):
            rot, ch, mul, add, v0, v1, srd = uparams(u)
            g = S_GP + 2 * n
            tag = f"{u[0]}{u[1]}"
            b.salu("s_mov_b32", "m0", sr(g))
            b.vmem_dma(vr(v0), sr(srd, 4), sr(g + 1), tag=tag)
            b.vmem_dma(vr(v1), sr(srd, 4), sr(g + 1), mods="offset:1024", tag=tag)
        b.par = None
        b.opt_end()
        b.label(l1)
        if h == 7:
            for u in grp:
                done_units.add(u)
            grp.clear()

    WORD = [0, 1, 2, 3, 4, 5, 6, 7]

    if 'sst' in OPT:
        stamp(b, 2, wait=True)
    pace(4)
    if 'sst' in OPT:
        stamp(b, 3, wait=True)
    b.valu("v_mov_b32", vr(V_FLG), 0)
    ln = b.newlabel(lab("np"))
    b.salu("s_cmp_lg_u32", sr(S_WV), 0)
    b.branch("s_cbranch_scc1", ln)
    b.opt_begin()
    b.vmem_load("buffer_load_dwordx2", vr(V_NON, 2), vr(V_FLG), sr(S_DBG, 4), "0", mods="sc1")
    b.opt_end()
    b.label(ln)
    lc = b.newlabel(lab("ct"))
    b.salu("s_cmp_ge_u32", sr(S_TASK), 136)
    b.branch("s_cbranch_scc1", lc)
    b.opt_begin()
    b.salu("s_lshr_b32", sr(S_T0), sr(S_TASK), 1)
    b.salu("s_and_b32", sr(S_T1), sr(S_TASK), 1)
    b.salu("s_mul_i32", sr(S_CSO), sr(S_T1), CSG_H)
    b.salu("s_lshl_b32", sr(S_T2), sr(S_T0), 9)
    b.salu("s_add_u32", sr(S_CSO), sr(S_CSO), sr(S_T2))
    b.salu("s_add_u32", sr(S_CSO), sr(S_CSO), CSG)
    b.salu("s_cmp_lt_u32", sr(S_T0), 46)
    b.salu("s_cselect_b32", sr(S_C), "s12", "s14")
    b.salu("s_cselect_b32", sr(S_C + 1), "s13", "s15")
    b.salu("s_cselect_b32", sr(S_T2), 24, 46)
    b.salu("s_cmp_lt_u32", sr(S_T0), 24)
    b.salu("s_cselect_b32", sr(S_C), "s6", sr(S_C))
    b.salu("s_cselect_b32", sr(S_C + 1), "s7", sr(S_C + 1))
    b.salu("s_cselect_b32", sr(S_T2), 0, sr(S_T2))
    b.salu("s_movk_i32", sr(S_T3), 2752)
    b.salu("s_cselect_b32", sr(S_T3), 3072, sr(S_T3))
    b.salu("s_lshl_b32", sr(S_C + 2), sr(S_T3), 9)
    b.salu("s_sub_u32", sr(S_T0), sr(S_T0), sr(S_T2))
    b.salu("s_lshl_b32", sr(S_T0), sr(S_T0), 7)
    b.salu("s_lshl_b32", sr(S_T1), sr(S_T1), 8)
    b.salu("s_lshl_b32", sr(S_T2), sr(S_WV), 5)
    b.salu("s_add_u32", sr(S_T1), sr(S_T1), sr(S_T2))
    b.valu("v_lshrrev_b32", vr(V_T0), 3, vr(V_LANE))
    b.valu("v_add_u32", vr(V_T0), sr(S_T1), vr(V_T0))
    b.valu("v_mul_u32_u24", vr(V_T0), sr(S_T3), vr(V_T0))
    b.valu("v_and_b32", vr(V_T1), 7, vr(V_LANE))
    b.valu("v_lshl_add_u32", vr(V_T0), vr(V_T1), 4, vr(V_T0))
    b.salu("s_lshl_b32", sr(S_T3), sr(S_T3), 3)
    for i in range(4):
        b.vmem_load("buffer_load_dwordx4", vr(V_PRO + 4 + 4 * i, 4), vr(V_T0), sr(S_C, 4), sr(S_T0), tag="cl")
        if i < 3:
            b.salu("s_add_u32", sr(S_T0), sr(S_T0), sr(S_T3))
    b.opt_end()
    b.label(lc)
    b.salu("s_lshl_b32", sr(S_T0), sr(S_CG), 3)
    b.salu("s_add_u32", sr(S_T0), sr(S_T0), sr(S_WV))
    b.salu("s_lshl_b32", sr(S_T1), sr(S_T0), 10)
    b.vmem_load("buffer_load_dwordx4", vr(V_PRO, 4), vr(V_STO), sr(S_X, 4), sr(S_T1), tag="rl")
    b.salu("s_lshl_b32", sr(S_T1), sr(S_RB), 7)
    b.salu("s_add_u32", sr(S_T0), sr(S_T0), sr(S_T1))
    b.salu("s_lshl_b32", sr(S_STO), sr(S_T0), 4)
    b.salu("s_add_u32", sr(S_STO), sr(S_STO), RSG)
    pace(2 * INIT - 4)
    if 'sst' in OPT:
        stamp(b, 4, wait=True)

    if 'nopf' not in OPT:
        PFM = {0: "", 1: "sc1", 2: "nt", 3: "sc0 sc1"}[optval("pfm", 1)]
        b.salu("s_and_b32", sr(S_T0), sr(S_CG), 3)
        b.salu("s_lshl_b32", sr(S_T0), sr(S_T0), 15)
        b.salu("s_lshl_b32", sr(S_T1), sr(S_WV), 12)
        b.salu("s_add_u32", sr(S_T0), sr(S_T0), sr(S_T1))
        b.valu("v_lshlrev_b32", vr(V_T0), 6, vr(V_LANE))
        b.vmem_load("buffer_load_dword", vr(V_TMP), vr(V_T0), sr(S_X, 4), sr(S_T0), mods=PFM, tag="pf")
        b.salu("s_and_b32", sr(S_T0), sr(S_RB), 7)
        b.salu("s_lshl_b32", sr(S_T0), sr(S_T0), 2)
        b.salu("s_add_u32", sr(S_T0), sr(S_T0), sr(S_R))
        b.salu("s_mul_i32", sr(S_T0), sr(S_T0), 16 * stride)
        b.valu("v_lshrrev_b32", vr(V_T0), 2, vr(V_LANE))
        b.valu("v_mul_u32_u24", vr(V_T0), stride, vr(V_T0))
        b.valu("v_and_b32", vr(V_T1), 3, vr(V_LANE))
        if ffn:
            b.valu("v_lshlrev_b32", vr(V_T2), 7, vr(V_T1))
            b.valu("v_min_u32", vr(V_T2), 252, vr(V_T2))
            b.salu("s_lshl_b32", sr(S_T1), sr(S_G), 8)
            b.valu("v_add_u32", vr(V_T2), sr(S_T1), vr(V_T2))
            b.salu("s_min_u32", sr(S_T1), sr(S_G), 5)
            b.salu("s_lshl_b32", sr(S_T1), sr(S_T1), 5)
            b.salu("s_add_u32", sr(S_T1), sr(S_T1), 80 * 32)
            b.valu("v_mov_b32", vr(V_XT), sr(S_T1))
            b.valu("v_cmp_eq_u32", "vcc", 3, vr(V_T1))
            b.valu("v_cndmask_b32", vr(V_T2), vr(V_T2), vr(V_XT))
            b.valu("v_add_u32", vr(V_T0), vr(V_T0), vr(V_T2))
        else:
            b.valu("v_and_b32", vr(V_T1), 1, vr(V_T1))
            b.valu("v_lshl_add_u32", vr(V_T0), vr(V_T1), 8, vr(V_T0))
            b.salu("s_lshl_b32", sr(S_T1), sr(S_CG), 9)
            b.salu("s_add_u32", sr(S_T0), sr(S_T0), sr(S_T1))
            b.salu("s_lshl_b32", sr(S_T1), sr(S_P), 7)
            b.salu("s_add_u32", sr(S_T0), sr(S_T0), sr(S_T1))
        b.vmem_load("buffer_load_dword", vr(V_TMP + 1), vr(V_T0), sr(S_W, 4), sr(S_T0), mods=PFM, tag="pf")
    lz = b.newlabel(lab("nz"))
    b.salu("s_cmp_lg_u32", sr(S_WV), 1)
    b.branch("s_cbranch_scc1", lz)
    b.opt_begin()
    b.salu("s_lshl_b32", sr(S_T0), "s2", 7)
    b.salu("s_add_u32", sr(S_T0), sr(S_T0), FL)
    b.vmem_store("buffer_store_dword", vr(V_FLG), vr(V_FLG), sr(S_WS, 4), sr(S_T0), mods="sc1")
    b.opt_end()
    b.label(lz)
    b.valu("v_and_b32", vr(V_T0), 31, vr(V_LANE))
    b.salu("s_lshl_b32", sr(S_T0), sr(S_R), 5)
    b.valu("v_add_u32", vr(V_T0), sr(S_T0), vr(V_T0))
    b.valu("v_lshrrev_b32", vr(V_T1), 1, vr(V_T0))
    b.valu("v_lshrrev_b32", vr(V_T2), 5, vr(V_LANE))
    b.valu("v_xor_b32", vr(V_T1), vr(V_T1), vr(V_T2))
    b.valu("v_and_b32", vr(V_T1), 7, vr(V_T1))
    b.valu("v_lshlrev_b32", vr(V_T1), 4, vr(V_T1))
    b.valu("v_lshl_add_u32", vr(V_XB), vr(V_T0), 7, vr(V_T1))
    b.valu("v_add_u32", vr(V_XB + 1), 0x10000, vr(V_XB))
    b.valu("v_add_u32", vr(V_XB + 2), 0x20000, vr(V_XB))
    if typ == "v":
        b.valu("v_lshlrev_b32", vr(V_T2), 5, vr(V_T2))
        b.salu("s_lshl_b32", sr(S_T0), sr(S_R), 8)
        b.salu("s_add_u32", sr(S_T0), sr(S_T0), ST_OFF)
        b.valu("v_add_u32", vr(V_SRD), sr(S_T0), vr(V_T2))
    else:
        b.valu("v_lshlrev_b32", vr(V_T0), 3, vr(V_T0))
        b.valu("v_add_u32", vr(V_SRD), ST_OFF, vr(V_T0))
    b.valu("v_lshrrev_b32", vr(V_T0), 5, vr(V_LANE))
    b.valu("v_lshlrev_b32", vr(V_T0), 3, vr(V_T0))
    b.valu("v_bfe_u32", vr(V_T1), vr(V_LANE), 2, 2)
    b.valu("v_add_u32", vr(V_T0), vr(V_T0), vr(V_T1))
    b.valu("v_and_b32", vr(V_T2), 3, vr(V_LANE))
    b.valu("v_lshlrev_b32", vr(V_T2), 3, vr(V_T2))
    b.valu("v_lshl_add_u32", vr(V_XT), vr(V_T0), 7, vr(V_T2))
    if ffn:
        b.valu("v_lshl_add_u32", vr(V_STR), vr(V_T0), 5, vr(V_T2))
        b.valu("v_bfe_u32", vr(V_T2), vr(V_LANE), 4, 1)
        b.valu("v_lshl_add_u32", vr(V_STR), vr(V_T2), 13, vr(V_STR))
        b.valu("v_lshl_add_u32", vr(V_STR), vr(V_T2), 7, vr(V_STR))
        b.valu("v_xor_b32", vr(V_STR + 1), 128, vr(V_STR))
    b.valu("v_lshrrev_b32", vr(V_T1), 1, vr(V_T1))
    b.valu("v_bfe_u32", vr(V_T2), vr(V_LANE), 4, 1)
    if ffn:
        b.valu("v_lshl_add_u32", vr(V_T1), vr(V_T2), 1, vr(V_T1))
        b.salu("s_lshl_b32", sr(S_T0), sr(S_P), 1)
        b.valu("v_xor_b32", vr(V_T1), sr(S_T0), vr(V_T1))
        b.valu("v_lshl_add_u32", vr(V_XT), vr(V_T2), 13, vr(V_XT))
        b.valu("v_lshl_add_u32", vr(V_TR), vr(V_T1), 5, vr(V_XT))
        b.valu("v_xor_b32", vr(V_TR + 3), 32, vr(V_TR))
    else:
        b.valu("v_lshl_add_u32", vr(V_T1), vr(V_T1), 1, vr(V_T2))
        b.salu("s_lshl_b32", sr(S_T0), sr(S_P), 13)
        b.valu("v_add_u32", vr(V_XT), sr(S_T0), vr(V_XT))
        b.valu("v_lshl_add_u32", vr(V_TR), vr(V_T1), 5, vr(V_XT))
        b.valu("v_xor_b32", vr(V_TR + 3), 64, vr(V_TR))
    for j in range(2):
        b.valu("v_add_u32", vr(V_TR + 3 * j + 1), 0x10000, vr(V_TR + 3 * j))
        b.valu("v_add_u32", vr(V_TR + 3 * j + 2), 0x20000, vr(V_TR + 3 * j))

    def late_setup():
        ops = []
        A = ops.append
        S = lambda *a: A(lambda: b.salu(*a))
        Vv = lambda *a: A(lambda: b.valu(*a))
        if ffn:
            Vv("v_lshrrev_b32", vr(V_T0), 1, vr(V_LANE))
            S("s_lshl_b32", sr(S_T0), sr(S_P), 2)
            Vv("v_xor_b32", vr(V_T0), sr(S_T0), vr(V_T0))
            Vv("v_mul_u32_u24", vr(V_T0), stride, vr(V_T0))
            S("s_lshl_b32", sr(S_T0), sr(S_G), 5)
            S("s_add_u32", sr(S_T0), sr(S_T0), 80 * 32)
            A(lambda: (b.salu("s_cmp_lt_u32", sr(S_G), 6), b.salu("s_cselect_b32", sr(S_T0), sr(S_T0), "0x40000000")))
            Vv("v_add_u32", vr(V_T0), sr(S_T0), vr(V_T0))
            Vv("v_and_b32", vr(V_T1), 1, vr(V_LANE))
            Vv("v_lshl_add_u32", vr(V_SO0), vr(V_T1), 4, vr(V_T0))
            Vv("v_add_u32", vr(V_SO1), 32 * stride - 1024, vr(V_SO0))
        S("s_lshl_b32", sr(S_T0), sr(S_P), 8)
        S("s_add_u32", sr(S_T0), sr(S_T0), CS_OFF)
        if typ == "v":
            Vv("v_and_b32", vr(V_T0), 31, vr(V_LANE))
            Vv("v_lshlrev_b32", vr(V_T0), 2, vr(V_T0))
        else:
            Vv("v_lshrrev_b32", vr(V_T0), 5, vr(V_LANE))
            Vv("v_lshlrev_b32", vr(V_T0), 4, vr(V_T0))
        Vv("v_add_u32", vr(V_CSRD), sr(S_T0), vr(V_T0))
        S("s_lshl_b32", sr(S_T0), sr(S_WV), 7)
        S("s_sub_u32", sr(S_T0), sr(S_T0), 256)
        Vv("v_lshl_add_u32", vr(V_T0), vr(V_LANE), 1, sr(S_T0))
        if ffn:
            A(lambda: (b.salu("s_movk_i32", sr(S_T1), 256), b.salu("s_cmp_lt_u32", sr(S_G), 6), b.salu("s_cselect_b32", sr(S_T1), 288, sr(S_T1))))
        else:
            S("s_movk_i32", sr(S_T1), 256)
        Vv("v_cmp_gt_u32", sr(S_CARE0, 2), sr(S_T1), vr(V_T0))
        if ffn:
            Vv("v_lshrrev_b32", vr(V_T1), 5, vr(V_T0))
            Vv("v_lshlrev_b32", vr(V_T1), 4, vr(V_T1))
            S("s_lshl_b32", sr(S_T1), sr(S_G), 7)
            S("s_lshl_b32", sr(S_T2), sr(S_G), 4)
            S("s_add_u32", sr(S_T2), sr(S_T2), 1280 - 128)
            A(lambda: (b.salu("s_cmp_ge_u32", sr(S_WV), 4), b.salu("s_cselect_b32", sr(S_T1), sr(S_T2), sr(S_T1))))
            S("s_add_u32", sr(S_T1), sr(S_T1), 1536)
            Vv("v_add_u32", vr(V_T1), sr(S_T1), vr(V_T1))
            Vv("v_and_b32", vr(V_T2), 15, vr(V_T0))
            Vv("v_add_u32", vr(V_T1), vr(V_T1), vr(V_T2))
            Vv("v_bfe_u32", vr(V_T2), vr(V_T0), 4, 1)
            Vv("v_mul_u32_u24", vr(V_T2), 1408, vr(V_T2))
            Vv("v_add_u32", vr(V_T0), vr(V_T1), vr(V_T2))
        else:
            S("s_lshl_b32", sr(S_T1), sr(S_CG), 8)
            Vv("v_add_u32", vr(V_T0), sr(S_T1), vr(V_T0))
        Vv("v_lshlrev_b32", vr(V_T0), 3, vr(V_T0))
        Vv("v_add_u32", vr(V_T0), CSG, vr(V_T0))
        Vv("v_mov_b32", vr(V_T1), "0x40000000")
        Vv("v_cndmask_b32", vr(V_G0), vr(V_T1), vr(V_T0), sr(S_CARE0, 2))
        Vv("v_add_u32", vr(V_G1), CSG_H, vr(V_G0))
        S("s_mov_b64", sr(S_CARE1, 2), sr(S_CARE0, 2))

        def rowsel():
            l1 = b.newlabel(lab("g1"))
            b.salu("s_cmp_ge_u32", sr(S_WV), 2)
            b.branch("s_cbranch_scc1", l1)
            b.opt_begin()
            b.salu("s_lshl_b32", sr(S_T0), sr(S_RB), 11)
            b.salu("s_lshl_b32", sr(S_T1), sr(S_WV), 10)
            b.salu("s_add_u32", sr(S_T0), sr(S_T0), sr(S_T1))
            b.salu("s_add_u32", sr(S_T0), sr(S_T0), RSG)
            b.valu("v_lshl_add_u32", vr(V_G0), vr(V_LANE), 4, sr(S_T0))
            b.salu("s_mov_b64", sr(S_CARE0, 2), -1)
            b.opt_end()
            b.label(l1)
        A(rowsel)
        S("s_lshl_b32", sr(S_T0), sr(S_RB), 2)
        S("s_add_u32", sr(S_T0), sr(S_T0), sr(S_R))
        if typ == "qk":
            S("s_lshr_b32", sr(S_T1), sr(S_CG), 1)
            S("s_lshl_b32", sr(S_OB), sr(S_T1), 21)
            A(lambda: (b.salu("s_cmp_eq_u32", sr(S_T1), 0), b.salu("s_cselect_b32", sr(S_SCALE), hex(f32bits(QSCALE)), "1.0")))
            S("s_and_b32", sr(S_T1), sr(S_CG), 1)
            S("s_lshl_b32", sr(S_T1), sr(S_T1), 20)
            S("s_add_u32", sr(S_OB), sr(S_OB), sr(S_T1))
            S("s_lshl_b32", sr(S_T1), sr(S_P), 18)
            S("s_add_u32", sr(S_OB), sr(S_OB), sr(S_T1))
            S("s_lshl_b32", sr(S_T1), sr(S_T0), 10)
            S("s_add_u32", sr(S_OB), sr(S_OB), sr(S_T1))
        elif typ == "v":
            S("s_and_b32", sr(S_T1), sr(S_CG), 1)
            S("s_lshl_b32", sr(S_OB), sr(S_T1), 20)
            S("s_add_u32", sr(S_OB), sr(S_OB), VF)
            S("s_lshl_b32", sr(S_T1), sr(S_P), 18)
            S("s_add_u32", sr(S_OB), sr(S_OB), sr(S_T1))
            S("s_lshl_b32", sr(S_T1), sr(S_T0), 10)
            S("s_add_u32", sr(S_OB), sr(S_OB), sr(S_T1))
            Vv("v_and_b32", vr(V_T0), 15, vr(V_LANE))
            Vv("v_lshlrev_b32", vr(V_T0), 4, vr(V_T0))
            Vv("v_lshrrev_b32", vr(V_T1), 5, vr(V_LANE))
            Vv("v_lshl_add_u32", vr(V_T0), vr(V_T1), 8, vr(V_T0))
            Vv("v_bfe_u32", vr(V_T1), vr(V_LANE), 4, 1)
            Vv("v_lshl_add_u32", vr(V_STO), vr(V_T1), 16, vr(V_T0))
        else:
            S("s_lshr_b32", sr(S_T1), sr(S_T0), 1)
            S("s_mul_i32", sr(S_OB), sr(S_T1), HF_RB)
            S("s_add_u32", sr(S_OB), sr(S_OB), HF)
            S("s_and_b32", sr(S_T1), sr(S_T0), 1)
            S("s_lshl_b32", sr(S_T1), sr(S_T1), 10)
            S("s_add_u32", sr(S_OB), sr(S_OB), sr(S_T1))
            S("s_lshl_b32", sr(S_T1), sr(S_G), 11)
            S("s_add_u32", sr(S_T3), sr(S_OB), sr(S_T1))
            S("s_add_u32", sr(S_T3), sr(S_T3), 80 * 2048)
            S("s_lshl_b32", sr(S_T1), sr(S_G), 14)
            S("s_add_u32", sr(S_OB), sr(S_OB), sr(S_T1))
            S("s_lshl_b32", sr(S_T1), sr(S_P), 12)
            S("s_add_u32", sr(S_OB), sr(S_OB), sr(S_T1))
        return ops

    def bf16r(reg):
        b.valu("v_cvt_pk_bf16_f32", vr(reg), vr(reg), vr(reg))
        b.valu("v_lshlrev_b32", vr(reg), 16, vr(reg))

    DPP = "row_mask:0xf bank_mask:0xf"

    SU, SQ = 116, 117
    CA = 120
    U0, U1 = 96, 97

    def producer_ops():
        ops = []
        A = ops.append
        Vv = lambda *a, **k: A(lambda: b.valu(*a, **k))
        Vv("v_mov_b32", vr(SU), 0)
        Vv("v_mov_b32", vr(SQ), 0)
        A(lambda: b.wait(vm="rl"))
        for i in range(4):
            Vv("v_dot2c_f32_bf16", vr(SU), sr(S_ONES), vr(V_PRO + i))
            Vv("v_dot2c_f32_bf16", vr(SQ), vr(V_PRO + i), vr(V_PRO + i))
        Vv("v_permlane32_swap_b32", vr(SU), vr(SQ))
        Vv("v_add_f32", vr(SU), vr(SU), vr(SQ))
        Vv("v_mov_b32", vr(SQ), vr(SU))
        Vv("v_permlane16_swap_b32", vr(SU), vr(SQ))
        Vv("v_add_f32", vr(SU), vr(SU), vr(SQ))
        for r in (8, 4, 2, 1):
            Vv("v_add_f32_dpp", vr(SU), vr(SU), vr(SU), mods=f"row_ror:{r} {DPP}")
        Vv("v_readlane_b32", sr(S_U0), vr(SU), 0)
        Vv("v_readlane_b32", sr(S_U1), vr(SU), 32)
        Vv("v_mov_b32", vr(U0), hex(f32bits(1.0 / 512)))
        Vv("v_mul_f32", vr(SU), sr(S_U0), vr(U0))
        Vv("v_mul_f32", vr(SQ), sr(S_U1), vr(U0))
        Vv("v_fma_f32", vr(SQ), f"-{vr(SU)}", vr(SU), vr(SQ))
        Vv("v_max_f32", vr(SQ), 0, vr(SQ))
        A(lambda: bf16r(SQ))
        Vv("v_add_f32", vr(SQ), hex(f32bits(1e-5)), vr(SQ))
        A(lambda: bf16r(SQ))
        Vv("v_sqrt_f32", vr(SQ), vr(SQ))
        A(lambda: bf16r(SQ))
        Vv("v_rcp_f32", vr(SQ), vr(SQ))
        A(lambda: bf16r(SU))
        Vv("v_sub_f32", vr(SU), 0, vr(SU))

        def nonce():
            lok, lp = b.newlabel(lab("nok")), b.newlabel(lab("nl"))
            lsk = b.newlabel(lab("nsk"))
            b.salu("s_cmp_lg_u32", sr(S_WV), 0)
            b.branch("s_cbranch_scc1", lsk)
            b.opt_begin()
            b.label(lp)
            b.valu("v_cmp_eq_u32", "vcc", 0, vr(V_NON + 1))
            b.branch("s_cbranch_vccz", lok)
            b.opt_begin()
            b.raw("  s_sleep 4")
            b.vmem_load("buffer_load_dwordx2", vr(V_NON, 2), vr(V_FLG), sr(S_DBG, 4), "0", mods="sc1")
            b.wait(vm=0)
            b.branch("s_branch", lp)
            b.opt_end()
            b.label(lok)
            b.valu("v_mov_b32", vr(U0), NC_OFF)
            b.ds_write("ds_write_b64", vr(U0), vr(V_NON, 2), 0)
            b.opt_end()
            b.label(lsk)
        A(nonce)

        def cpart():
            lc = b.newlabel(lab("cc"))
            b.salu("s_cmp_ge_u32", sr(S_TASK), 136)
            b.branch("s_cbranch_scc1", lc)
            b.opt_begin()
            for j in range(8):
                b.valu("v_mov_b32", vr(CA + j), 0)
            for i in range(4):
                for j in range(8):
                    b.valu("v_dot2c_f32_bf16", vr(CA + j), sr(S_HI if j % 2 else S_LO), vr(V_PRO + 4 + 4 * i + j // 2))
            for i in range(4):
                b.valu("v_permlane32_swap_b32", vr(CA + 2 * i), vr(CA + 2 * i + 1))
            for i in range(4):
                b.valu("v_add_f32", vr(CA + 2 * i), vr(CA + 2 * i), vr(CA + 2 * i + 1))
            for i in range(2):
                b.valu("v_permlane16_swap_b32", vr(CA + 4 * i), vr(CA + 4 * i + 2))
            for i in range(2):
                b.valu("v_add_f32", vr(CA + 4 * i), vr(CA + 4 * i), vr(CA + 4 * i + 2))
            for i in range(2):
                b.valu("v_add_f32_dpp", vr(CA + 4 * i), vr(CA + 4 * i), vr(CA + 4 * i), mods=f"row_ror:8 {DPP}")
            b.valu("v_and_b32", vr(U0), 7, vr(V_LANE))
            b.valu("v_lshlrev_b32", vr(U0), 5, vr(U0))
            b.valu("v_bfe_u32", vr(U1), vr(V_LANE), 4, 1)
            b.valu("v_lshl_add_u32", vr(U0), vr(U1), 3, vr(U0))
            b.valu("v_lshrrev_b32", vr(U1), 5, vr(V_LANE))
            b.valu("v_lshl_add_u32", vr(U0), vr(U1), 2, vr(U0))
            b.salu("s_lshl_b32", sr(S_U0), sr(S_WV), 8)
            b.salu("s_add_u32", sr(S_U0), sr(S_U0), CP_OFF)
            b.valu("v_add_u32", vr(U0), sr(S_U0), vr(U0))
            b.ds_write("ds_write_b32", vr(U0), vr(CA), 0)
            b.ds_write("ds_write_b32", vr(U0), vr(CA + 4), 16)
            b.opt_end()
            b.label(lc)
        A(cpart)
        return ops

    def publish():
        b.valu("v_mov_b32", vr(U0), NC_OFF)
        b.ds_read("ds_read_b64", vr(V_NON, 2), vr(U0), 0, tag="non")
        b.wait(lg="non")
        b.salu("s_mov_b64", "exec", 1)
        b.vmem_store("buffer_store_dwordx4", vr(SU, 4), vr(V_FLG), sr(S_WS, 4), sr(S_STO), mods="sc1")
        b.salu("s_mov_b64", "exec", -1)

    def colsum_final():
        l1 = b.newlabel(lab("cf"))
        b.salu("s_cmp_ge_u32", sr(S_TASK), 136)
        b.branch("s_cbranch_scc1", l1)
        b.opt_begin()
        b.salu("s_cmp_lg_u32", sr(S_WV), 7)
        b.branch("s_cbranch_scc1", l1)
        b.valu("v_and_b32", vr(U0), 31, vr(V_LANE))
        b.valu("v_lshlrev_b32", vr(U1), 3, vr(U0))
        b.valu("v_add_u32", vr(U1), CP_OFF, vr(U1))
        b.valu("v_lshlrev_b32", vr(U0), 4, vr(U0))
        for w in range(8):
            b.ds_read("ds_read_b64", vr(100 + 2 * w, 2), vr(U1), w * 256)
        b.wait(lg=0)
        for e in range(2):
            b.valu("v_add_f32", vr(SU + e), vr(100 + e), vr(102 + e))
        for w in range(2, 8):
            for e in range(2):
                b.valu("v_add_f32", vr(SU + e), vr(SU + e), vr(100 + 2 * w + e))
        b.salu("s_mov_b32", "exec_hi", 0)
        b.vmem_store("buffer_store_dwordx4", vr(SU, 4), vr(U0), sr(S_WS, 4), sr(S_CSO), mods="sc1")
        b.salu("s_mov_b32", "exec_hi", -1)
        b.opt_end()
        b.label(l1)

    GA = 100

    def gather_issue(tag="ga"):
        b.vmem_load("buffer_load_dwordx4", vr(GA, 4), vr(V_G0), sr(S_WS, 4), "0", mods="sc1", tag=tag)
        b.vmem_load("buffer_load_dwordx4", vr(GA + 4, 4), vr(V_G1), sr(S_WS, 4), "0", mods="sc1", tag=tag)

    def gather_write():
        lok, lp = b.newlabel(lab("gok")), b.newlabel(lab("gl"))
        b.wait(vm="ga")
        b.label(lp)
        b.valu("v_cmp_ne_u64", "vcc", vr(GA + 2, 2), vr(V_NON, 2))
        b.valu("v_cmp_ne_u64", sr(S_U0, 2), vr(GA + 6, 2), vr(V_NON, 2))
        b.salu("s_and_b64", "vcc", "vcc", sr(S_CARE0, 2))
        b.salu("s_and_b64", sr(S_U0, 2), sr(S_U0, 2), sr(S_CARE1, 2))
        b.salu("s_or_b64", "vcc", "vcc", sr(S_U0, 2))
        b.branch("s_cbranch_scc0", lok)
        b.opt_begin()
        b.raw("  s_sleep 4")
        gather_issue(None)
        b.wait(vm=0)
        b.branch("s_branch", lp)
        b.opt_end()
        b.label(lok)
        b.valu("v_add_f32", vr(GA), vr(GA), vr(GA + 4))
        b.valu("v_add_f32", vr(GA + 1), vr(GA + 1), vr(GA + 5))
        b.salu("s_lshl_b32", sr(S_U0), sr(S_WV), 9)
        b.salu("s_add_u32", sr(S_U0), sr(S_U0), MISC)
        b.valu("v_lshl_add_u32", vr(U0), vr(V_LANE), 3, sr(S_U0))
        b.ds_write("ds_write_b64", vr(U0), vr(GA, 2), 0)

    def lds(addr_regs, off):
        return vr(addr_regs + (off >> 16)), off & 0xffff

    def read_frags(ks):
        quad, s32 = divmod(ks, 32)
        t, s = divmod(ks, 4)
        if quad == 0:
            off = slot_of[("X", t)] * SLOT
            base = V_XB + (off >> 16)
            if s:
                b.valu("v_xor_b32", vr(V_XT), 32 * s, vr(base))
                base = V_XT
            b.ds_read("ds_read_b128", vr(V_X + 4 * s32, 4), vr(base), off & 0xffff, tag=f"x{ks}")
        for j in range(2):
            r0 = V_RING + 4 * ((2 * ks + j) % 6)
            for q in range(2):
                off = slot_of[("W", t)] * SLOT + s * 2048 + q * 512
                a, o = lds(V_TR + 3 * j, off)
                b.ds_read("ds_read_b64_tr_b16", vr(r0 + 2 * q, 2), a, o, tag=f"w{ks}_{j}")

    def read_sfrag(s32):
        su, s = divmod(s32, 16)
        r0 = V_RING + 4 * (s32 % 6)
        for q in range(2):
            off = slot_of[("S", su)] * SLOT + s * 512
            b.ds_read("ds_read_b64_tr_b16", vr(r0 + 2 * q, 2), vr(V_XB + 2 * su + q), off & 0xffff, tag=f"s{s32}")

    def phase_barrier(t, extra=()):
        while not all(u in done_units for u in phase_units[t]):
            assert step() is not None, f"deadlock at phase {t}"
        tags = [f"{k}{i}" for (k, i) in phase_units[t]] + list(extra)
        if STAMPS and 'bst' in OPT and t in (5, 6):
            b.wait(lg=0)
            stamp(b, 1 + 3 * (t - 5), wait=True)
            b.wait(vm=tags)
            stamp(b, 2 + 3 * (t - 5), wait=True)
            b.barrier()
            if t == 5:
                stamp(b, 3, wait=True)
        elif STAMPS and 'sst' in OPT and t == 0:
            stamp(b, 5, wait=True)
            b.wait(vm=tags)
            stamp(b, 6, wait=True)
            b.barrier()
            stamp(b, 7, wait=True)
        else:
            b.wait(vm=tags, lg=0)
            b.barrier()
        if STAMPS and 'bst' not in OPT and 'sst' not in OPT and t in (0, 2, 4, 8, 12):
            stamp(b, 1 + (0, 2, 4, 8, 12).index(t), wait=True)
        if t > 0:
            for u in phase_units[t - 1]:
                free.append(slot_of[u])

    def mf(acc, wreg, xreg, first):
        c = "0" if first else vr(acc, 16)
        if typ == "v":
            b.mfma(vr(acc, 16), vr(xreg, 4), vr(wreg, 4), c)
        else:
            b.mfma(vr(acc, 16), vr(wreg, 4), vr(xreg, 4), c)

    def stats_ops():
        ops = []
        A = ops.append
        if typ != "v":
            A(lambda: b.ds_read("ds_read_b64", vr(V_NM, 2), vr(V_SRD), 0, tag="str"))
            A(None)
            A(lambda: b.wait(lg="str"))
            if typ == "qk":
                A(lambda: b.valu("v_mul_f32", vr(V_RS), sr(S_SCALE), vr(V_RS)))
            else:
                A(lambda: b.valu("v_mul_f32", vr(V_RS), vr(V_RS), vr(V_RS)))
        return ops

    uid = [0]

    def epi_ops(acc, cs_addr, cs_off, so_reg, so_off):
        ops = []
        A = ops.append
        uid[0] += 1
        u = uid[0]

        def store(regs, extra, imm=0):
            def f():
                b.salu("s_add_u32", sr(S_STO), sr(so_reg), so_off + extra)
                b.vmem_store("buffer_store_dwordx4", vr(regs, 4), vr(V_STO), sr(S_WS, 4), sr(S_STO),
                             mods=(f"offset:{imm} " if imm else "") + store_mods, tag="st")
            return f
        if typ == "qk":
            for hf in range(2):
                A(lambda hf=hf: (b.ds_read("ds_read_b128", vr(V_TMP, 4), vr(cs_addr), cs_off + hf * 64, tag=f"c{u}{hf}"),
                                 b.ds_read("ds_read_b128", vr(V_TMP + 4, 4), vr(cs_addr), cs_off + hf * 64 + 32, tag=f"c{u}{hf}")))
                A(None)
                A(lambda hf=hf: b.wait(lg=f"c{u}{hf}"))
                for i in range(8):
                    A(lambda i=i, hf=hf: b.valu("v_fmac_f32", vr(acc + 8 * hf + i), vr(V_NM), vr(V_TMP + i)))
                for i in range(8):
                    A(lambda i=i, hf=hf: b.valu("v_mul_f32", vr(acc + 8 * hf + i), vr(V_RS), vr(acc + 8 * hf + i)))
                for i in range(4):
                    A(lambda i=i, hf=hf: b.valu("v_cvt_pk_bf16_f32", vr(acc + 8 * hf + i), vr(acc + 8 * hf + 2 * i), vr(acc + 8 * hf + 2 * i + 1)))
                A(store(acc + 8 * hf, hf * 65536))
        elif typ == "v":
            A(lambda: b.ds_read("ds_read_b32", vr(V_NCS), vr(cs_addr), cs_off, tag=f"n{u}"))
            for g in range(4):
                A(lambda g=g: (b.ds_read("ds_read_b128", vr(V_TMP, 4), vr(V_SRD), g * 64, tag=f"c{u}{g}"),
                               b.ds_read("ds_read_b128", vr(V_TMP + 4, 4), vr(V_SRD), g * 64 + 16, tag=f"c{u}{g}")))
                A(None)
                A(lambda g=g: b.wait(lg=f"c{u}{g}"))
                for i in range(4):
                    A(lambda i=i, g=g: b.valu("v_fmac_f32", vr(acc + 4 * g + i), vr(V_NCS), vr(V_TMP + 2 * i)))
                for i in range(4):
                    A(lambda i=i, g=g: b.valu("v_mul_f32", vr(acc + 4 * g + i), vr(V_TMP + 2 * i + 1), vr(acc + 4 * g + i)))
                if g % 2 == 1:
                    hf = g // 2
                    for i in range(4):
                        A(lambda i=i, hf=hf: b.valu("v_cvt_pk_bf16_f32", vr(acc + 8 * hf + i), vr(acc + 8 * hf + 2 * i), vr(acc + 8 * hf + 2 * i + 1)))
                    A(store(acc + 8 * hf, 0, imm=hf * 512))
        else:
            for g in range(2):
                A(lambda g=g: (b.ds_read("ds_read_b128", vr(V_TMP, 4), vr(cs_addr), cs_off + g * 32, tag=f"c{u}{g}"),
                               b.ds_read("ds_read_b128", vr(V_TMP + 4, 4), vr(cs_addr), cs_off + 64 + g * 32, tag=f"c{u}{g}")))
                A(None)
                A(lambda g=g: b.wait(lg=f"c{u}{g}"))
                for i in range(4):
                    A(lambda i=i, g=g: b.valu("v_fmac_f32", vr(acc + 4 * g + i), vr(V_NM), vr(V_TMP + i)))
                for i in range(4):
                    A(lambda i=i, g=g: b.valu("v_fmac_f32", vr(acc + 8 + 4 * g + i), vr(V_NM), vr(V_TMP + 4 + i)))
                for i in range(4):
                    A(lambda i=i, g=g: b.valu("v_max_f32", vr(acc + 4 * g + i), 0, vr(acc + 4 * g + i)))
                for i in range(4):
                    A(lambda i=i, g=g: b.valu("v_mul_f32", vr(acc + 8 + 4 * g + i), vr(V_RS), vr(acc + 8 + 4 * g + i)))
                for i in range(4):
                    A(lambda i=i, g=g: b.valu("v_mul_f32", vr(acc + 4 * g + i), vr(acc + 4 * g + i), vr(acc + 8 + 4 * g + i)))
            for i in range(4):
                A(lambda i=i: b.valu("v_cvt_pk_bf16_f32", vr(acc + i), vr(acc + 2 * i), vr(acc + 2 * i + 1)))
            A(store(acc, 0))
        return ops

    def quad_epi(quad):
        ops = []
        for j in range(2):
            acc = V_ACC + 32 * quad + 16 * j
            so = (quad * 4 + j) * 2048 if typ == "f" else (quad * 8 + j * 2) * 65536
            ops += epi_ops(acc, V_CSRD, quad * 512 + j * 128, S_OB, so)
        return ops

    fill = []

    def run_fill(n):
        while n > 0 and fill:
            f = fill.pop(0)
            if f is None:
                return
            f()
            n -= 1

    def drain_fill():
        while fill:
            run_fill(1000)

    def w2_prefetch():
        b.salu("s_lshr_b32", sr(S_U0), "s2", 3)
        b.salu("s_sub_u32", sr(S_U1), sr(S_U0), 22)
        b.salu("s_cmp_lt_u32", sr(S_U0), 22)
        b.salu("s_cselect_b32", sr(S_C), "s16", "s8")
        b.salu("s_cselect_b32", sr(S_C + 1), "s17", "s9")
        b.salu("s_cselect_b32", sr(S_U0), sr(S_U0), sr(S_U1))
        b.salu("s_mov_b32", sr(S_C + 2), 512 * 1024)
        b.salu("s_cselect_b32", sr(S_C + 2), 1376 * 1024, sr(S_C + 2))
        b.salu("s_lshl_b32", sr(S_U0), sr(S_U0), 16)
        b.salu("s_lshl_b32", sr(S_U1), sr(S_WV), 13)
        b.salu("s_add_u32", sr(S_U0), sr(S_U0), sr(S_U1))
        b.valu("v_lshlrev_b32", vr(V_T0), 7, vr(V_LANE))
        b.vmem_load("buffer_load_dword", vr(V_T1), vr(V_T0), sr(S_C, 4), sr(S_U0), tag="pf2")
        if CODE_PF:
            l1 = b.newlabel(lab("cp"))
            b.salu("s_cmp_lt_u32", "s2", 240)
            b.branch("s_cbranch_scc1", l1)
            b.opt_begin()
            b.salu("s_cmp_ge_u32", sr(S_WV), 2)
            b.branch("s_cbranch_scc1", l1)
            lpc = b.newlabel(lab("pc"))
            b.raw(f"  s_getpc_b64 s[{S_U0}:{S_U0+1}]")
            b.label(lpc)
            b.salu("s_add_u32", sr(S_U0), sr(S_U0), f"{CODE_PF}-{lpc}")
            b.salu("s_addc_u32", sr(S_U0 + 1), sr(S_U0 + 1), 0)
            b.salu("s_lshl_b32", sr(S_U2), sr(S_WV), 13)
            b.valu("v_add_u32", vr(V_T0), sr(S_U2), vr(V_T0))
            b.raw(f"  global_load_dword {vr(V_T2)}, {vr(V_T0)}, s[{S_U0}:{S_U0+1}]")
            b._push(b.vm, None)
            b.opt_end()
            b.label(l1)

    D = 2
    P0 = optval("pace0", 1)
    PP = 'pp' in OPT
    PPN = optval("ppn", 2)
    if 'prio' in OPT:
        lp_ = b.newlabel(lab("prio"))
        b.salu("s_cmp_eq_u32", sr(S_P), 0)
        b.branch("s_cbranch_scc1", lp_)
        b.raw("  s_setprio 1")
        b.label(lp_)
    phase_barrier(0)
    if 'noprod' not in OPT:
        fill += producer_ops()
    for ks in range(D):
        read_frags(ks)
    KS_GI, KS_GW = optval("ksgi", 23), optval("ksgw", 28)
    for ks in range(64):
        quad, s32 = divmod(ks, 32)
        nk = ks + D
        if nk < 64:
            if nk % 4 == 0:
                if nk == 8:
                    drain_fill()
                phase_barrier(nk // 4)
                if nk == 8:
                    if 'noprod' not in OPT:
                        publish()
                        colsum_final()
                    fill += late_setup()
            read_frags(nk)
            if PP and nk % 4 == 0:
                group_begin(PPN if quad == 0 and ks < 28 else 2)
        elif ffn and nk == 64:
            phase_barrier(16)
        acc = V_ACC + 32 * quad
        r0 = V_RING + 4 * ((2 * ks) % 6)
        r1 = V_RING + 4 * ((2 * ks + 1) % 6)
        xr = V_X + 4 * s32
        b.wait(lg=[f"x{ks}", f"w{ks}_0"] + ([f"w{ks}_1"] if 'w1' in OPT else []))
        mf(acc, r0, xr, s32 == 0)
        if not PP:
            pace(P0 if quad == 0 else ks % 2)
        else:
            group_issue(2 * ((ks + D) % 4))
        run_fill(4)
        b.wait(lg=[f"w{ks}_1"])
        mf(acc + 16, r1, xr, s32 == 0)
        if not PP:
            pace(P0 if quad == 0 else 0)
        else:
            group_issue(2 * ((ks + D) % 4) + 1)
        run_fill(4)
        if ks == KS_GI:
            drain_fill()
            gather_issue()
        if ks == KS_GW and 'noprod' not in OPT:
            gather_write()
        if ks == 31:
            fill += stats_ops() + quad_epi(0)
        if ks == optval("kspf", 44) and 'now2' not in OPT:
            w2_prefetch()
    drain_fill()
    if 'sst' not in OPT:
        stamp(b, 6, wait=True)
    if ffn:
        LB = lab("pathb")
        b.salu("s_cmp_lt_u32", sr(S_G), 6)
        b.salu("s_cselect_b32", sr(S_T0), 0, 1)
        b.salu("s_or_b32", sr(S_T0), sr(S_T0), sr(S_P))
        b.salu("s_cmp_lg_u32", sr(S_T0), 0)
        b.branch("s_cbranch_scc1", LB)
        saved = copy.deepcopy((b.pos, b.valu_w, b.trans_w, b.mfma_w, b.mfma_c, b.sgpr_vw, b.dot_w, b.store_d, b.m0_w, b.vm, b.lg))
        for su in range(2):
            off = slot_of[("S", su)] * SLOT
            for q in range(2):
                b.valu("v_add_u32", vr(V_XB + 2 * su + q), off & ~0xffff, vr(V_STR + q))
        fill += quad_epi(1)
        DS = 4
        for s in range(DS):
            read_sfrag(s)
        for s in range(32):
            if s + DS < 32:
                read_sfrag(s + DS)
            r0 = V_RING + 4 * (s % 6)
            b.wait(lg=f"s{s}")
            mf(V_ACC, r0, V_X + 4 * s, s == 0)
            run_fill(4)
        drain_fill()
        fill += epi_ops(V_ACC, V_CSRD, 1024, S_T3, 0)
        drain_fill()
        if 'sst' not in OPT:
            stamp(b, 7)
        stamp_out(b, 9, wave=optval('sw', 0))
        b.raw("  s_endpgm")
        b.label(LB)
        (b.pos, b.valu_w, b.trans_w, b.mfma_w, b.mfma_c, b.sgpr_vw, b.dot_w, b.store_d, b.m0_w, b.vm, b.lg) = saved
    fill += quad_epi(1)
    drain_fill()
    if 'sst' not in OPT:
        stamp(b, 7)
    stamp_out(b, 9, wave=optval('sw', 0))
    b.raw("  s_endpgm")


def desc(name, vgpr=256, sgpr=100):
    return f"""
.p2align 6
.amdhsa_kernel {name}
  .amdhsa_next_free_vgpr {vgpr}
  .amdhsa_next_free_sgpr {sgpr}
  .amdhsa_accum_offset {(vgpr + 3) // 4 * 4}
  .amdhsa_group_segment_fixed_size 0
  .amdhsa_kernarg_size 80
  .amdhsa_user_sgpr_count 2
  .amdhsa_user_sgpr_kernarg_segment_ptr 1
  .amdhsa_system_sgpr_workgroup_id_x 1
.end_amdhsa_kernel
"""


if __name__ == "__main__":
    import sys
    if "stamps" in sys.argv:
        STAMPS = True
    s = f"; @launch kernel=k1_kernel grid=(256,1,1) block=(512,1,1) lds={LDS_K1}\n"
    s += '.amdgcn_target "amdgcn-amd-amdhsa--gfx950"\n.text\n'
    s += k1()
    s += '.section .rodata,"a"\n' + desc("k1_kernel")
    open(sys.argv[1], "w").write(s)
```

```python
from asmb import *
import os
import gen_k1 as g1
from gen_k1 import QF, KF, VF, HF, HF_RB, OF, FL, WS_USED, f32bits
OPT = set(os.environ.get('K2OPT', '').split(','))

def optval(name, default):
    for o in OPT:
        if o.startswith(name + "="):
            return int(o.split("=")[1])
    return default


RD = optval("rd", 11)
RING = RD * 2048
WO_OFF = 4 * RING
CNT_OFF = WO_OFF + 65536
LDS_K2 = CNT_OFF + 64
NDOWN = 22

S_WS, S_H, S_O, S_WD, S_WO, S_XO, S_OUT = 24, 28, 32, 36, 40, 44, 48
S_WV, S_RB, S_CB, S_T0, S_T1, S_T2, S_SO, S_M0B, S_SB = 52, 53, 54, 55, 56, 57, 58, 59, 60
S_NF, S_KA, S_KB, S_ROT = 61, 62, 63, 64
S_MASK = 66
S_ST = 8


def stamp(b, i):
    if g1.STAMPS:
        b.raw(f"  {'s_memtime' if 'cyc' in OPT else 's_memrealtime'} s[{S_ST+2*i}:{S_ST+2*i+1}]")
        b.raw("  s_waitcnt lgkmcnt(0)")


def stamp_out(b, idxs, base, wave):
    if not g1.STAMPS:
        return
    b.raw(f"  s_mov_b32 s{S_WS+2}, 0x1000000")
    b.raw("  s_lshl_b32 s3, s2, 3")
    b.raw(f"  s_add_u32 s3, s3, s{S_WV}")
    b.raw("  s_lshl_b32 s3, s3, 2")
    b.raw(f"  s_add_u32 s3, s3, {0xF00000 + base*8192}")
    b.raw("  v_mov_b32 v1, 0")
    for i in idxs:
        b.raw(f"  v_mov_b32 v2, s{S_ST+2*i}")
        b.raw(f"  buffer_store_dword v2, v1, s[{S_WS}:{S_WS+3}], s3 offen")
        b.raw("  s_add_u32 s3, s3, 8192")
        b.raw("  s_nop 1")


def srd(b, s, lo, hi, size, add=None):
    if add is None:
        b.salu("s_mov_b32", sr(s), lo)
        b.salu("s_mov_b32", sr(s + 1), hi)
    else:
        b.salu("s_add_u32", sr(s), lo, add)
        b.salu("s_addc_u32", sr(s + 1), hi, 0)
    b.salu("s_mov_b32", sr(s + 2), size)
    b.salu("s_mov_b32", sr(s + 3), 0x20000)


def k2(name="k2_kernel"):
    b = B()
    b.raw(f".globl {name}\n.p2align 8\n.type {name},@function\n{name}:")
    L_END = name + "_end"
    L_ATT = name + "_att"
    b.salu("s_cmp_ge_u32", "s2", 256)
    b.branch("s_cbranch_scc1", L_END)
    if g1.STAMPS:
        b.raw(f"  {'s_memtime' if 'cyc' in OPT else 's_memrealtime'} s[98:99]")
    b.raw("  s_load_dwordx16 s[4:19], s[0:1], 0")
    b.raw("  s_load_dwordx4 s[20:23], s[0:1], 64")
    b.valu("v_lshrrev_b32", "v1", 6, "v0")
    b.valu("v_and_b32", "v0", 63, "v0")
    b.valu("v_readfirstlane_b32", sr(S_WV), "v1")
    b.wait(lg=0)
    srd(b, S_WS, "s22", "s23", WS_USED)
    b.salu("s_cmp_ge_u32", sr(S_WV), 4)
    b.branch("s_cbranch_scc1", L_ATT)
    txt = b.text()
    bg = B(); bg.nlabel = 5000
    gemm(bg, name)
    print("k2 gemm instrs", bg.ninstr)
    ba = B(); ba.nlabel = 6000
    ba.label(L_ATT)
    attn(ba, name)
    print("k2 attn instrs", ba.ninstr)
    return txt + bg.text() + ba.text() + f"{L_END}:\n  s_endpgm\n"


def gemm(b, name):
    V_L = 0
    V_AO, V_BO0, V_BO1, V_TR0, V_TR1, V_T0, V_T1, V_T2, V_OO, V_FO, V_WA, V_RA, V_XOFF = 1, 2, 3, 4, 5, 6, 7, 8, 9, 10, 11, 12, 13
    V_BW0, V_BW1, V_TRW = 14, 15, 1
    V_XR = 16
    V_W = 24
    V_ACC = 40
    V_A = 104
    b.salu("s_and_b32", sr(S_T0), "s2", 7)
    b.salu("s_lshl_b32", sr(S_T0), sr(S_T0), 2)
    b.salu("s_bfe_u32", sr(S_T1), "s2", (2 << 16) | 3)
    b.salu("s_add_u32", sr(S_RB), sr(S_T0), sr(S_T1))
    b.salu("s_lshr_b32", sr(S_CB), "s2", 5)
    b.salu("s_lshr_b32", sr(S_T0), "s2", 3)
    b.salu("s_mul_i32", sr(S_T2), sr(S_T1), 5)
    b.salu("s_mul_i32", sr(S_T0), sr(S_CB), 11)
    b.salu("s_lshr_b32", sr(S_T0), sr(S_T0), 2)
    b.salu("s_add_u32", sr(S_ROT), sr(S_T0), sr(S_T2))
    b.salu("s_sub_u32", sr(S_T0), sr(S_ROT), NDOWN)
    b.salu("s_cmp_ge_u32", sr(S_ROT), NDOWN)
    b.salu("s_cselect_b32", sr(S_ROT), sr(S_T0), sr(S_ROT))
    if 'norot' in OPT:
        b.salu("s_mov_b32", sr(S_ROT), 0)
    b.salu("s_lshl_b32", sr(S_KA), sr(S_ROT), 11)
    b.salu("s_mul_i32", sr(S_T0), sr(S_RB), HF_RB)
    b.salu("s_add_u32", sr(S_T0), sr(S_T0), HF)
    srd(b, S_H, "s22", "s23", HF_RB, add=sr(S_T0))
    srd(b, S_WD, "s16", "s17", 1376 * 1024)
    b.salu("s_mul_i32", sr(S_T0), sr(S_WV), NDOWN * 2048)
    b.valu("v_lshlrev_b32", vr(V_T2), 4, vr(V_L))
    b.valu("v_add_u32", vr(V_AO), sr(S_T0), vr(V_T2))
    b.valu("v_bfe_u32", vr(V_T1), vr(V_L), 4, 1)
    b.valu("v_lshlrev_b32", vr(V_T1), 2, vr(V_T1))
    b.valu("v_xor_b32", vr(V_T1), vr(V_T1), vr(V_L))
    b.valu("v_and_b32", vr(V_T1), 7, vr(V_T1))
    b.valu("v_lshlrev_b32", vr(V_T1), 4, vr(V_T1))
    b.valu("v_lshrrev_b32", vr(V_T0), 3, vr(V_L))
    b.valu("v_lshl_add_u32", vr(V_T0), vr(V_T0), 10, vr(V_T1))
    b.salu("s_lshl_b32", sr(S_T0), sr(S_CB), 7)
    b.salu("s_mul_i32", sr(S_T1), sr(S_WV), NDOWN * 16384)
    b.salu("s_add_u32", sr(S_T1), sr(S_T1), sr(S_T0))
    b.valu("v_add_u32", vr(V_BO0), sr(S_T1), vr(V_T0))
    b.valu("v_add_u32", vr(V_BO1), 8192 - 1024, vr(V_BO0))
    b.salu("s_lshl_b32", sr(S_T1), sr(S_WV), 17)
    b.salu("s_add_u32", sr(S_T1), sr(S_T1), sr(S_T0))
    b.valu("v_add_u32", vr(V_BW0), sr(S_T1), vr(V_T0))
    b.valu("v_add_u32", vr(V_BW1), 8192 - 1024, vr(V_BW0))
    b.salu("s_mul_i32", sr(S_M0B), sr(S_WV), RING)
    b.valu("v_mov_b32", vr(V_T0), CNT_OFF)
    b.valu("v_mov_b32", vr(V_T1), 0)
    b.ds_write("ds_write_b32", vr(V_T0), vr(V_T1), 0)
    b.wait(lg=0)
    b.barrier()

    def pref(t):
        sl = t % RD
        b.salu("s_add_u32", "m0", sr(S_M0B), sl * 2048)
        b.salu("s_lshl_b32", sr(S_KB), sr(S_KA), 3)
        b.vmem_dma(vr(V_BO0), sr(S_WD, 4), sr(S_KB), tag=f"b{t}")
        b.vmem_dma(vr(V_BO1), sr(S_WD, 4), sr(S_KB), mods="offset:1024", tag=f"b{t}")
        for i in range(2):
            b.vmem_load("buffer_load_dwordx4", vr(V_A + 8 * sl + 4 * i, 4), vr(V_AO), sr(S_H, 4), sr(S_KA),
                        mods="offset:1024" if i else "", tag=f"a{t}")
        if t + 1 < NDOWN:
            b.salu("s_add_u32", sr(S_KA), sr(S_KA), 2048)
            b.salu("s_cmp_lt_u32", sr(S_KA), NDOWN * 2048)
            b.salu("s_cselect_b32", sr(S_KA), sr(S_KA), 0)

    def pref_wo(i):
        b.salu("s_add_u32", "m0", sr(S_SB), i * 2048)
        if i:
            b.salu("s_mov_b32", sr(S_KB), i * 16384)
        sot = sr(S_KB) if i else "0"
        b.vmem_dma(vr(V_BW0), sr(S_WO, 4), sot, tag="wo")
        b.vmem_dma(vr(V_BW1), sr(S_WO, 4), sot, mods="offset:1024", tag="wo")

    for t in range(RD):
        pref(t)
        if t == 1:
            b.salu("s_lshl_b32", sr(S_T0), sr(S_RB), 16)
            b.salu("s_add_u32", sr(S_T1), sr(S_T0), OF)
            srd(b, S_O, "s22", "s23", 65536, add=sr(S_T1))
            srd(b, S_WO, "s8", "s9", 512 * 1024)
            srd(b, S_XO, "s4", "s5", 65536, add=sr(S_T0))
            srd(b, S_OUT, "s18", "s19", 65536, add=sr(S_T0))
            b.salu("s_lshl_b32", sr(S_SB), sr(S_WV), 14)
            b.salu("s_add_u32", sr(S_SB), sr(S_SB), WO_OFF)
            b.valu("v_lshrrev_b32", vr(V_T0), 5, vr(V_L))
            b.valu("v_lshlrev_b32", vr(V_T0), 2, vr(V_T0))
            b.valu("v_bfe_u32", vr(V_T1), vr(V_L), 2, 2)
            b.valu("v_add_u32", vr(V_T0), vr(V_T0), vr(V_T1))
            b.valu("v_and_b32", vr(V_RA), 3, vr(V_L))
            b.valu("v_lshlrev_b32", vr(V_RA), 3, vr(V_RA))
            b.valu("v_lshl_add_u32", vr(V_T0), vr(V_T0), 7, vr(V_RA))
            b.valu("v_lshrrev_b32", vr(V_T1), 1, vr(V_T1))
            b.valu("v_bfe_u32", vr(V_RA), vr(V_L), 4, 1)
            b.valu("v_lshl_add_u32", vr(V_T1), vr(V_T1), 1, vr(V_RA))
            b.valu("v_lshl_add_u32", vr(V_T0), vr(V_T1), 5, vr(V_T0))
            b.valu("v_add_u32", vr(V_TR0), sr(S_M0B), vr(V_T0))
            b.valu("v_xor_b32", vr(V_TR1), 64, vr(V_TR0))
            b.salu("s_and_b32", sr(S_T0), sr(S_WV), 1)
            b.salu("s_lshl_b32", sr(S_T0), sr(S_T0), 6)
            b.valu("v_xor_b32", vr(V_T0), sr(S_T0), vr(V_T0))
            b.salu("s_lshl_b32", sr(S_T1), sr(S_T0), 9)
            b.salu("s_add_u32", sr(S_T1), sr(S_T1), WO_OFF)
            b.valu("v_add_u32", vr(V_XR + 7), sr(S_T1), vr(V_T0))
            b.salu("s_lshl_b32", sr(S_T1), sr(S_T0), 3)
            b.salu("s_lshl_b32", sr(S_T0), sr(S_RB), 10)
            b.salu("s_add_u32", sr(S_T0), sr(S_T0), sr(S_T1))
            b.salu("s_add_u32", sr(S_T0), sr(S_T0), FL)
            b.valu("v_and_b32", vr(V_T0), 3, vr(V_L))
            b.valu("v_lshlrev_b32", vr(V_T0), 7, vr(V_T0))
            b.valu("v_add_u32", vr(V_FO), sr(S_T0), vr(V_T0))
            b.valu("v_add_u32", vr(V_WA), sr(S_M0B), vr(V_T2))
            b.salu("s_lshl_b32", sr(S_T0), sr(S_WV), 12)
            b.valu("v_add_u32", vr(V_RA), sr(S_T0), vr(V_T2))
            b.salu("s_lshr_b32", sr(S_T0), sr(S_WV), 1)
            b.salu("s_and_b32", sr(S_T1), sr(S_WV), 1)
            b.salu("s_lshl_b32", sr(S_T1), sr(S_T1), 5)
            b.salu("s_add_u32", sr(S_T1), sr(S_T1), sr(S_T0))
            b.salu("s_lshl_b32", sr(S_T1), sr(S_T1), 10)
            b.valu("v_add_u32", vr(V_OO), sr(S_T1), vr(V_T2))
            b.salu("s_lshl_b32", sr(S_T0), sr(S_T0), 15)
            b.salu("s_lshl_b32", sr(S_T1), sr(S_CB), 7)
            b.salu("s_add_u32", sr(S_T0), sr(S_T0), sr(S_T1))
            b.salu("s_and_b32", sr(S_T1), sr(S_WV), 1)
            b.salu("s_lshl_b32", sr(S_T1), sr(S_T1), 6)
            b.salu("s_add_u32", sr(S_T0), sr(S_T0), sr(S_T1))
            b.valu("v_and_b32", vr(V_T0), 31, vr(V_L))
            b.valu("v_lshlrev_b32", vr(V_T0), 10, vr(V_T0))
            b.valu("v_lshrrev_b32", vr(V_T1), 5, vr(V_L))
            b.valu("v_lshl_add_u32", vr(V_T0), vr(V_T1), 4, vr(V_T0))
            b.valu("v_add_u32", vr(V_XOFF), sr(S_T0), vr(V_T0))

    def read_w(t):
        sl = t % RD
        ws = V_W + 8 * (t % 2)
        b.wait(vm=f"b{t}")
        for j in range(2):
            for q in range(2):
                b.ds_read("ds_read_b64_tr_b16", vr(ws + 4 * j + 2 * q, 2), vr(V_TR0 + j), sl * 2048 + q * 1024, tag=f"w{t}")

    stamp(b, 0)
    read_w(0)
    nwo = 0
    for t in range(NDOWN):
        sl = t % RD
        ws = V_W + 8 * (t % 2)
        if t + 1 < NDOWN:
            read_w(t + 1)
        b.wait(vm=f"a{t}", lg=f"w{t}")
        for i in range(2):
            for j in range(2):
                acc = V_ACC + 16 * (2 * i + j)
                b.mfma(vr(acc, 16), vr(ws + 4 * j, 4), vr(V_A + 8 * sl + 4 * i, 4), "0" if t == 0 else vr(acc, 16))
        nt = t + RD
        if nt < NDOWN:
            pref(nt)
        elif nwo < 8:
            pref_wo(nwo)
            nwo += 1
    while nwo < 8:
        pref_wo(nwo)
        nwo += 1
    b.valu("v_mov_b32", vr(V_TRW), vr(V_XR + 7))
    b.vmem_load("buffer_load_dwordx4", vr(V_XR, 4), vr(V_XOFF), sr(S_XO, 4), "0", tag="xr")
    b.vmem_load("buffer_load_dwordx4", vr(V_XR + 4, 4), vr(V_XOFF), sr(S_XO, 4), "0", mods="offset:32", tag="xr")
    stamp(b, 1)
    for blk in range(4):
        for g in range(4):
            b.ds_write("ds_write_b128", vr(V_WA), vr(V_ACC + 16 * blk + 4 * g, 4), blk * 4096 + g * 1024)
    b.wait(vm="wo", lg=0)
    b.barrier()
    V_R = V_A
    b.valu("v_add_u32", vr(V_T0), 2 * RING, vr(V_RA))
    for P in range(4):
        for g in range(4):
            b.ds_read("ds_read_b128", vr(V_R + 16 * P + 4 * g, 4), vr(V_RA if P < 2 else V_T0), (P % 2) * RING + g * 1024, tag=f"r{P}")
    b.vmem_load("buffer_load_dword", vr(V_T1), vr(V_FO), sr(S_WS, 4), "0", mods="sc1", tag="fl")
    b.wait(vm="xr")
    X = V_ACC + 16
    for e in range(2):
        for i in range(4):
            b.valu("v_lshlrev_b32", vr(X + 8 * e + 2 * i), 16, vr(V_XR + 4 * e + i))
            b.valu("v_and_b32", vr(X + 8 * e + 2 * i + 1), "0xffff0000", vr(V_XR + 4 * e + i))
    for e in range(2):
        for i in range(4):
            b.valu("v_permlane32_swap_b32", vr(X + 8 * e + i), vr(X + 8 * e + 4 + i))
    b.wait(lg=["r0", "r1"])
    for i in range(16):
        b.valu("v_add_f32", vr(V_ACC + i), vr(V_R + i), vr(V_R + 16 + i))
    b.wait(lg=["r2", "r3"])
    for i in range(16):
        b.valu("v_add_f32", vr(V_R + 32 + i), vr(V_R + 32 + i), vr(V_R + 48 + i))
    for i in range(16):
        b.valu("v_add_f32", vr(V_ACC + i), vr(V_ACC + i), vr(X + i))
    for i in range(16):
        b.valu("v_add_f32", vr(V_ACC + i), vr(V_ACC + i), vr(V_R + 32 + i))

    V_TRW1 = V_BO0
    b.valu("v_xor_b32", vr(V_TRW1), 64, vr(V_TRW))
    V_W2 = V_ACC + 32

    def read_wo(s):
        for j in range(2):
            for q in range(2):
                b.ds_read("ds_read_b64_tr_b16", vr(V_W2 + 8 * (s % 4) + 4 * j + 2 * q, 2), vr(V_TRW1 if j else V_TRW), s * 2048 + q * 1024, tag=f"u{s}")
    for s in range(3):
        read_wo(s)
    b.salu("s_lshl_b32", sr(S_T0), sr(S_WV), 12)
    b.valu("v_xor_b32", vr(V_T0), 4096, vr(V_RA))
    lp, lq = b.newlabel(name + "_poll"), b.newlabel(name + "_pok")
    b.wait(vm=0)
    b.label(lp)
    b.valu("v_cmp_ne_u32", "vcc", 1, vr(V_T1))
    b.branch("s_cbranch_vccz", lq)
    b.opt_begin()
    b.raw("  s_sleep 1")
    b.vmem_load("buffer_load_dword", vr(V_T1), vr(V_FO), sr(S_WS, 4), "0", mods="sc1")
    b.wait(vm=0)
    b.branch("s_branch", lp)
    b.opt_end()
    b.label(lq)
    stamp(b, 2)
    for s in range(16):
        if s % 2 == 0 and s:
            b.salu("s_mov_b32", sr(S_SO), (s // 2) * 4096)
        b.vmem_load("buffer_load_dwordx4", vr(V_A + 4 * s, 4), vr(V_OO), sr(S_O, 4), sr(S_SO) if s >= 2 else "0",
                    mods=("offset:2048 " if s % 2 else "") + "sc1", tag=f"o{s}")
    b.barrier()
    for s in range(16):
        if s + 3 < 16:
            read_wo(s + 3)
        b.wait(vm=f"o{s}", lg=f"u{s}")
        b.mfma(vr(V_ACC + 16, 16), vr(V_W2 + 8 * (s % 4) + 4, 4), vr(V_A + 4 * s, 4), vr(V_ACC + 16, 16) if s else "0")
        b.mfma(vr(V_ACC, 16), vr(V_W2 + 8 * (s % 4), 4), vr(V_A + 4 * s, 4), vr(V_ACC, 16))
    for g in range(4):
        b.ds_write("ds_write_b128", vr(V_RA), vr(V_ACC + 16 + 4 * g, 4), g * 1024)
    b.wait(lg=0)
    b.barrier()
    for g in range(4):
        b.ds_read("ds_read_b128", vr(V_R + 4 * g, 4), vr(V_T0), g * 1024, tag=f"e{g}")
    for g in range(4):
        b.wait(lg=f"e{g}")
        for i in range(4):
            b.valu("v_add_f32", vr(V_ACC + 4 * g + i), vr(V_ACC + 4 * g + i), vr(V_R + 4 * g + i))
    stamp(b, 3)
    for i in range(8):
        b.valu("v_cvt_pk_bf16_f32", vr(X + i), vr(V_ACC + 2 * i), vr(V_ACC + 2 * i + 1))
    for e in range(2):
        for i in range(2):
            b.valu("v_permlane32_swap_b32", vr(X + 4 * e + i), vr(X + 4 * e + 2 + i))
    for e in range(2):
        b.vmem_store("buffer_store_dwordx4", vr(X + 4 * e, 4), vr(V_XOFF), sr(S_OUT, 4), "0", mods="offset:32" if e else "")
    if g1.STAMPS:
        b.raw("  s_waitcnt vmcnt(0)")
        stamp(b, 4)
        b.raw("  s_mov_b32 s18, s98")
        stamp_out(b, [5, 0, 1, 2, 3, 4], 9, 0)
    b.raw("  s_endpgm")


def attn(b, name):
    V_L = 0
    V_QO, V_VO, V_T0, V_T1, V_M0, V_M1, V_BIG = 1, 2, 3, 4, 5, 6, 7
    V_NEG = 8
    V_MSK = 10
    V_Q = 18
    V_K = 26
    V_V = 66
    V_B0, V_B1, V_CN, V_O, V_SM = 146, 162, 178, 194, 210
    S_KO, S_VO = 28, 32
    if 'noprio' not in OPT:
        b.raw("  s_setprio 3")
    b.salu("s_and_b32", sr(S_T0), "s2", 7)
    b.salu("s_lshl_b32", sr(S_T0), sr(S_T0), 2)
    b.salu("s_add_u32", sr(S_T0), sr(S_T0), sr(S_WV))
    b.salu("s_sub_u32", sr(S_CB), sr(S_T0), 4)
    b.salu("s_lshr_b32", sr(S_RB), "s2", 3)
    b.salu("s_lshl_b32", sr(S_T0), sr(S_CB), 16)
    b.salu("s_lshl_b32", sr(S_T1), sr(S_RB), 11)
    b.salu("s_add_u32", sr(S_T0), sr(S_T0), sr(S_T1))
    b.valu("v_lshlrev_b32", vr(V_QO), 4, vr(V_L))
    for grp in range(3):
        b.salu("s_add_u32", sr(S_KO + grp), sr(S_T0), KF - 8192 + 4096 * grp)
        b.salu("s_add_u32", sr(S_VO + grp), sr(S_T0), VF - 8192 + 4096 * grp)

    def load_k(n):
        off = (n % 4) * 1024
        b.vmem_load("buffer_load_dwordx4", vr(V_K + 4 * n, 4), vr(V_QO), sr(S_WS, 4), sr(S_KO + n // 4),
                    mods=f"offset:{off}" if off else "", tag=f"k{n}")

    def load_v(ns):
        b.salu("s_mov_b64", "exec", sr(S_EXV, 2))
        for n in ns:
            for mf in range(2):
                off = (n % 4) * 1024 + mf * 512
                b.vmem_load("buffer_load_dwordx4", vr(V_V + 8 * n + 4 * mf, 4), vr(V_VO), sr(S_WS, 4), sr(S_VO + n // 4),
                            mods=f"offset:{off}" if off else "", tag=f"v{n}")
        b.salu("s_mov_b64", "exec", -1)
    S_EXV = 36
    b.vmem_load("buffer_load_dwordx4", vr(V_Q, 4), vr(V_QO), sr(S_WS, 4), sr(S_T0), tag="q0")
    for n in [0, 8, 7, 6, 5, 4, 3, 2, 1]:
        load_k(n)
    b.valu("v_and_b32", vr(V_T0), 15, vr(V_L))
    b.valu("v_lshlrev_b32", vr(V_T0), 4, vr(V_T0))
    b.valu("v_lshrrev_b32", vr(V_T1), 5, vr(V_L))
    b.valu("v_lshl_add_u32", vr(V_VO), vr(V_T1), 8, vr(V_T0))
    b.salu("s_mov_b32", sr(S_EXV), "0xffff")
    b.salu("s_mov_b32", sr(S_EXV + 1), "0xffff")
    NV0 = optval("nv0", 4)
    vorder = [8, 0, 7, 6, 5, 4, 3, 2, 1, 9]
    load_v(vorder[:NV0])
    b.barrier()
    b.valu("v_and_b32", vr(V_T0), 31, vr(V_L))
    b.valu("v_lshlrev_b32", vr(V_T1), 2, vr(V_T1))
    b.valu("v_sub_u32", vr(V_T0), vr(V_T0), vr(V_T1))
    for r in range(16):
        c = (r & 3) + 8 * (r >> 2)
        b.valu("v_cmp_le_i32", sr(S_MASK + 2 * r, 2), c, vr(V_T0))
    b.valu("v_mov_b32", vr(V_BIG), hex(f32bits(-1e30)))
    b.valu("v_mov_b32", vr(V_T0), "0xffff")
    b.valu("v_mov_b32", vr(V_T1), "0xffff0000")
    for i in range(8):
        b.valu("v_cndmask_b32", vr(V_MSK + i), 0, vr(V_T0), sr(S_MASK + 4 * i, 2))
        b.valu("v_cndmask_b32", vr(V_M0), 0, vr(V_T1), sr(S_MASK + 4 * i + 2, 2))
        b.valu("v_or_b32", vr(V_MSK + i), vr(V_MSK + i), vr(V_M0))
    b.salu("s_not_b64", "exec", sr(S_EXV, 2))
    b.valu("v_mov_b32", vr(V_NEG), "0x3f803f80")
    b.valu("v_mov_b32", vr(V_NEG + 1), "0x3f803f80")
    for i in range(40):
        b.valu("v_mov_b64", vr(V_V + 2 * i, 2), vr(V_NEG, 2))
    b.salu("s_mov_b64", "exec", -1)
    b.salu("s_lshl_b32", sr(S_T1), sr(S_RB), 16)
    b.salu("s_lshl_b32", sr(S_SO), sr(S_CB), 11)
    b.salu("s_add_u32", sr(S_SO), sr(S_SO), sr(S_T1))
    b.salu("s_add_u32", sr(S_SO), sr(S_SO), OF)
    load_v(vorder[NV0:])
    b.vmem_load("buffer_load_dwordx4", vr(V_Q + 4, 4), vr(V_QO), sr(S_WS, 4), sr(S_T0), mods="offset:1024", tag="q1")
    load_k(9)
    stamp(b, 0)
    stubs = []

    for task in range(2):
        q = vr(V_Q + 4 * task, 4)
        Kf = lambda j: vr(V_K + 4 * (8 + task - j), 4)
        Vf = lambda j, mf: vr(V_V + 8 * (8 + task - j) + 4 * mf, 4)
        ktag = lambda j: f"k{8 + task - j}"
        vtag = lambda j: f"v{8 + task - j}"
        b.salu("s_lshl_b32", sr(S_T1), sr(S_RB), 1)
        b.salu("s_add_u32", sr(S_T1), sr(S_T1), task)
        b.salu("s_min_u32", sr(S_NF), sr(S_T1), 7)
        L1, L2 = b.newlabel(name + "_p1"), b.newlabel(name + "_p2")
        bufs = [V_CN, V_O, V_B0, V_B1]
        if task == 1:
            b.wait(vm="k9")
        b.wait(vm=[f"q{task}", ktag(8)])
        b.mfma(vr(V_B0, 16), Kf(8), q, "0")
        b.wait(vm=ktag(0))
        b.mfma(vr(V_B1, 16), Kf(0), q, "0")
        for j in (1, 2):
            b.wait(vm=ktag(j))
            b.mfma(vr(bufs[(j - 1) % 4], 16), Kf(j), q, "0")
        lm1, lm2 = b.newlabel(name + "_m1"), b.newlabel(name + "_m2")
        b.nop(8)
        b.salu("s_cmp_lt_u32", sr(S_T1), 8)
        b.branch("s_cbranch_scc1", lm1)
        for r in range(16):
            b.valu("v_cndmask_b32", vr(V_SM + r), vr(V_B0 + r), vr(V_B1 + r), sr(S_MASK + 2 * r, 2))
        b.label(lm2)
        st = [f"{lm1}:", "  s_nop 7"]
        for r in range(16):
            st.append(f"  v_cndmask_b32 {vr(V_SM + r)}, {vr(V_BIG)}, {vr(V_B1 + r)}, {sr(S_MASK + 2 * r, 2)}")
        st.append(f"  s_branch {lm2}")
        stubs.append("\n".join(st))

        def maxtree(buf, first):
            for i in range(8):
                m = V_M0 + (i % 2)
                if first and i < 2:
                    b.valu("v_max_f32", vr(m), vr(buf + 2 * i), vr(buf + 2 * i + 1))
                else:
                    b.valu("v_max3_f32", vr(m), vr(buf + 2 * i), vr(buf + 2 * i + 1), vr(m))
        maxtree(V_SM, True)
        for j in range(1, 8):
            b.salu("s_cmp_lt_u32", sr(S_NF), j)
            b.branch("s_cbranch_scc1", L1)
            if j + 2 <= 7:
                b.wait(vm=ktag(j + 2))
                b.mfma(vr(bufs[(j + 1) % 4], 16), Kf(j + 2), q, "0")
            maxtree(bufs[(j - 1) % 4], False)
        b.label(L1)
        b.valu("v_max_f32", vr(V_M0), vr(V_M0), vr(V_M1))
        b.valu("v_mov_b32", vr(V_M1), vr(V_M0))
        b.valu("v_permlane32_swap_b32", vr(V_M1), vr(V_M0))
        b.valu("v_max_f32", vr(V_M0), vr(V_M0), vr(V_M1))
        b.valu("v_sub_f32", vr(V_NEG), 0, vr(V_M0))
        b.valu("v_sub_f32", vr(V_NEG + 1), 0, vr(V_M0))
        b.nop(2)
        for i in range(8):
            b.valu("v_mov_b64", vr(V_CN + 2 * i, 2), vr(V_NEG, 2))
        bufs2 = [V_B0, V_B1, V_SM]
        b.mfma(vr(V_B0, 16), Kf(1), q, vr(V_CN, 16))
        for r in range(8):
            b.valu("v_pk_add_f32", vr(V_SM + 2 * r, 2), vr(V_SM + 2 * r, 2), vr(V_NEG, 2))
        b.mfma(vr(V_B1, 16), Kf(2), q, vr(V_CN, 16))

        def expcvt(buf, inserts):
            for r in range(16):
                if r in inserts:
                    inserts[r]()
                b.valu("v_exp_f32", vr(buf + r), vr(buf + r))
                if r % 2 == 1 and r >= 3:
                    i = (r - 3) // 2
                    b.valu("v_cvt_pk_bf16_f32", vr(buf + i), vr(buf + 2 * i), vr(buf + 2 * i + 1))
            b.valu("v_cvt_pk_bf16_f32", vr(buf + 7), vr(buf + 14), vr(buf + 15))
        expcvt(V_SM, {})
        for i in range(8):
            b.valu("v_and_b32", vr(V_SM + 8 + i), vr(V_MSK + i), vr(V_SM + i))
        for i in range(8):
            b.valu("v_xor_b32", vr(V_SM + i), vr(V_SM + i), vr(V_SM + 8 + i))
        b.wait(vm=[vtag(0), vtag(8), "k1"])
        b.mfma(vr(V_O, 16), Vf(0, 0), vr(V_SM + 8, 4), "0")
        pend = [(Vf(0, 1), vr(V_SM + 12, 4)), (Vf(8, 0), vr(V_SM, 4)), (Vf(8, 1), vr(V_SM + 4, 4))]
        for j in range(1, 9):
            if j <= 7:
                lx = b.newlabel(name + "_x")
                b.salu("s_cmp_lt_u32", sr(S_NF), j)
                b.branch("s_cbranch_scc1", lx)
                st = [f"{lx}:", "  s_waitcnt vmcnt(0)", "  s_nop 1"]
                for (a_, p_) in pend:
                    st.append(f"  v_mfma_f32_32x32x16_bf16 {vr(V_O, 16)}, {a_}, {p_}, {vr(V_O, 16)}")
                st.append(f"  s_branch {L2}")
                stubs.append("\n".join(st))
                buf = bufs2[(j - 1) % 3]
                ins = {}
                pos = [0, 4, 8, 12] if len(pend) == 3 else [0, 5, 10]
                if j > 1:
                    b.wait(vm=vtag(j - 1))
                for n_, (a_, p_) in enumerate(pend):
                    ins[pos[n_]] = (lambda a_=a_, p_=p_: b.mfma(vr(V_O, 16), a_, p_, vr(V_O, 16)))
                if j + 2 <= 7:
                    ins[pos[len(pend)]] = (lambda j=j: b.mfma(vr(bufs2[(j + 1) % 3], 16), Kf(j + 2), q, vr(V_CN, 16)))
                expcvt(buf, ins)
                pend = [(Vf(j, 0), vr(buf, 4)), (Vf(j, 1), vr(buf + 4, 4))]
            else:
                b.wait(vm=vtag(7))
                for (a_, p_) in pend:
                    b.mfma(vr(V_O, 16), a_, p_, vr(V_O, 16))
        b.label(L2)
        b.valu("v_rcp_f32", vr(V_NEG), vr(V_O + 8))
        b.valu("v_mov_b32", vr(V_NEG + 1), vr(V_NEG))
        for i in range(4):
            b.valu("v_pk_mul_f32", vr(V_O + 2 * i, 2), vr(V_O + 2 * i, 2), vr(V_NEG, 2))
        for i in range(4):
            b.valu("v_cvt_pk_bf16_f32", vr(V_SM + i), vr(V_O + 2 * i), vr(V_O + 2 * i + 1))
        b.vmem_store("buffer_store_dwordx4", vr(V_SM, 4), vr(V_QO), sr(S_WS, 4), sr(S_SO),
                     mods=(f"offset:{1024*task} " if task else "") + "sc1", tag="ost")
        stamp(b, 1 + task)
    b.valu("v_mov_b32", vr(V_T0), CNT_OFF)
    b.valu("v_mov_b32", vr(V_T1), 1)
    b.salu("s_lshl_b32", sr(S_T1), "s2", 7)
    b.salu("s_add_u32", sr(S_T1), sr(S_T1), FL)
    b.valu("v_mov_b32", vr(V_M1), 0)
    b.salu("s_mov_b64", "exec", 1)
    b.wait(vm=0)
    b.raw(f"  ds_add_rtn_u32 {vr(V_M0)}, {vr(V_T0)}, {vr(V_T1)}")
    b.raw("  s_waitcnt lgkmcnt(0)")
    b.valu("v_readfirstlane_b32", sr(S_T0), vr(V_M0))
    ld = b.newlabel(name + "_nf")
    b.salu("s_cmp_lg_u32", sr(S_T0), 3)
    b.branch("s_cbranch_scc1", ld)
    b.vmem_store("buffer_store_dword", vr(V_T1), vr(V_M1), sr(S_WS, 4), sr(S_T1), mods="sc1")
    b.label(ld)
    if g1.STAMPS:
        stamp(b, 3)
        b.raw("  s_mov_b32 s18, s98")
        stamp_out(b, [5, 0, 1, 2, 3, 3], 9, 4)
    b.raw("  s_endpgm")
    for s_ in stubs:
        b.raw(s_)
```

```python
from asmb import *
import os, copy, struct
OPT = set(os.environ.get('K1OPT', '').split(','))


def optval(name, default):
    for o in OPT:
        if o.startswith(name + "="):
            return int(o.split("=")[1])
    return default


QF = 0x000000
KF = 0x200000
VF = 0x400000
HF = 0x600000
HF_RB = 86 * 2048
OF = 0xC00000
FL = 0xE00000
FL2 = 0xE08000
RSG = 0xE10000
CSG = 0xE18000
WS_USED = 0xE38000

NSLOT = 9
MISC = 159744
ST_OFF = MISC + 1024
CS_OFF = MISC
CP_OFF = MISC + 2048
NC_OFF = MISC + 3072
C1_OFF = MISC + 3088
SP_OFF = MISC + 3584
LDS_K1 = MISC + 4096

QSCALE = 0.25 * 1.4426950408889634


def f32bits(x):
    return struct.unpack("<I", struct.pack("<f", x))[0]


S_X, S_W, S_WS, S_C, S_DBG = 24, 28, 32, 52, 56
S_WV, S_R, S_P, S_RB, S_CG, S_G = 36, 37, 38, 39, 40, 41
S_R4K, S_SOFF, S_T0, S_T1, S_T2, S_ONES, S_SCALE = 42, 43, 44, 45, 46, 47, 48
S_OB, S_T3, S_STO = 49, 50, 51
S_R4W, S_LO, S_HI, S_CSO = 60, 61, 62, 63
S_CARE0, S_CARE1 = 64, 66
S_ST = 68
S_U0, S_U1, S_U2 = 90, 91, 92
S_ROT, S_R5K, S_SB = 93, 94, 95

V_LANE = 0
V_XO0, V_XO1, V_WO, V_SO = 1, 2, 3, 4
V_TR = 5
V_XB = 11
V_XT = 14
V_CSRD = 15
V_NM, V_RS = 16, 17
V_STO = 18
V_SRD = 19
V_T0, V_T1, V_T2 = 20, 21, 22
V_ZERO = 23
V_TMP = 24
V_RING = 32
V_TMP2 = 32
V_ACC = 64
V_X = 128

STAMPS = False
PH2 = None
CODE_PF = None


def stamp(b, i, wait=True):
    if STAMPS:
        b.raw(f"  {'s_memtime' if 'cyc' in OPT else 's_memrealtime'} s[{S_ST+2*i}:{S_ST+2*i+1}]")
        if wait:
            b.raw("  s_waitcnt lgkmcnt(0)")


def stamp_out(b, n, base=0):
    if not STAMPS:
        return
    b.raw("  s_waitcnt vmcnt(0)")
    stamp(b, n - 1)
    b.raw(f"  s_mov_b32 s{S_WS+2}, 0x1000000")
    b.raw("  s_lshl_b32 s3, s2, 3")
    b.raw(f"  s_add_u32 s3, s3, s{S_WV}")
    b.raw("  s_lshl_b32 s3, s3, 2")
    b.raw(f"  s_add_u32 s3, s3, {0xF00000 + base*8192}")
    b.raw("  v_mov_b32 v1, 0")
    for i in range(n):
        b.raw(f"  v_mov_b32 v2, s{S_ST+2*i}")
        b.raw(f"  buffer_store_dword v2, v1, s[{S_WS}:{S_WS+3}], s3 offen")
        b.raw("  s_add_u32 s3, s3, 8192")
        b.raw("  s_nop 1")


def k1(store_mods="sc1", name="k1_kernel"):
    b = B()
    b.raw(f".globl {name}\n.p2align 8\n.type {name},@function\n{name}:")
    L_END = name + "_end"
    b.salu("s_cmp_ge_u32", "s2", 256)
    b.branch("s_cbranch_scc1", L_END)
    stamp(b, 0, wait=False)
    b.raw("  s_load_dwordx16 s[4:19], s[0:1], 0")
    b.raw("  s_load_dwordx4 s[20:23], s[0:1], 64")
    if 'nocp1' not in OPT:
        b.raw(f"  s_getpc_b64 s[{S_U0}:{S_U0+1}]")
        b.label(name + "_pc")
        b.valu("v_lshlrev_b32", vr(V_T1), 7, "v0")
        b.valu("v_min_u32", vr(V_T1), f"{L_END}-{name}_pc", vr(V_T1))
        b.raw(f"  global_load_dword v31, {vr(V_T1)}, s[{S_U0}:{S_U0+1}]")
    b.valu("v_lshrrev_b32", vr(V_T0), 6, "v0")
    b.valu("v_and_b32", vr(V_LANE), 63, "v0")
    b.valu("v_readfirstlane_b32", sr(S_WV), vr(V_T0))
    b.salu("s_and_b32", sr(S_T0), "s2", 1)
    b.salu("s_lshl_b32", sr(S_T0), sr(S_T0), 3)
    b.salu("s_bfe_u32", sr(S_T1), "s2", (3 << 16) | 3)
    b.salu("s_add_u32", sr(S_RB), sr(S_T0), sr(S_T1))
    b.salu("s_bfe_u32", sr(S_T0), "s2", (2 << 16) | 1)
    b.salu("s_lshl_b32", sr(S_T0), sr(S_T0), 2)
    b.salu("s_lshr_b32", sr(S_T1), "s2", 6)
    b.salu("s_add_u32", sr(S_CG), sr(S_T0), sr(S_T1))
    b.salu("s_and_b32", sr(S_R), sr(S_WV), 3)
    b.salu("s_lshr_b32", sr(S_P), sr(S_WV), 2)
    b.salu("s_lshl_b32", sr(S_R4K), sr(S_R), 12)
    if 'rot' in OPT:
        b.salu("s_lshl_b32", sr(S_ROT), sr(S_CG), 1)
        b.salu("s_add_u32", sr(S_ROT), sr(S_ROT), sr(S_RB))
    else:
        b.salu("s_mov_b32", sr(S_ROT), 0)
    b.salu("s_mov_b32", sr(S_ONES), "0x3f803f80")
    b.valu("v_lshrrev_b32", vr(V_T0), 3, vr(V_LANE))
    b.salu("s_lshl_b32", sr(S_T0), sr(S_R), 5)
    b.valu("v_add_u32", vr(V_T1), sr(S_T0), vr(V_T0))
    b.valu("v_lshrrev_b32", vr(V_T2), 1, vr(V_T1))
    b.valu("v_xor_b32", vr(V_T2), vr(V_T2), vr(V_LANE))
    b.valu("v_and_b32", vr(V_T2), 7, vr(V_T2))
    b.valu("v_lshlrev_b32", vr(V_T2), 4, vr(V_T2))
    b.valu("v_lshl_add_u32", vr(V_XO0), vr(V_T1), 10, vr(V_T2))
    b.valu("v_xor_b32", vr(V_XO1), 64, vr(V_XO0))
    b.valu("v_add_u32", vr(V_XO1), 8192 - 1024, vr(V_XO1))
    b.valu("v_lshlrev_b32", vr(V_STO), 4, vr(V_LANE))
    b.valu("v_mov_b32", vr(V_ZERO), 0)
    b.wait(lg=0)
    b.salu("s_lshl_b32", sr(S_T0), sr(S_RB), 17)
    b.salu("s_add_u32", sr(S_X), "s4", sr(S_T0))
    b.salu("s_addc_u32", sr(S_X + 1), "s5", 0)
    b.salu("s_mov_b32", sr(S_X + 2), 0x20000)
    b.salu("s_mov_b32", sr(S_X + 3), 0x20000)
    b.salu("s_mov_b32", sr(S_WS), "s22")
    b.salu("s_mov_b32", sr(S_WS + 1), "s23")
    b.salu("s_mov_b32", sr(S_WS + 2), WS_USED)
    b.salu("s_mov_b32", sr(S_WS + 3), 0x20000)
    b.salu("s_mov_b32", sr(S_W + 3), 0x20000)
    b.salu("s_mov_b32", sr(S_C + 3), 0x20000)
    b.salu("s_mov_b32", sr(S_DBG), "s20")
    b.salu("s_mov_b32", sr(S_DBG + 1), "s21")
    b.salu("s_mov_b32", sr(S_DBG + 2), 256)
    b.salu("s_mov_b32", sr(S_DBG + 3), 0x20000)
    L_V, L_Q = name + "_v", name + "_q"
    b.salu("s_cmp_lt_u32", sr(S_CG), 4)
    b.branch("s_cbranch_scc1", L_Q)
    b.salu("s_cmp_lt_u32", sr(S_CG), 6)
    b.branch("s_cbranch_scc1", L_V)
    txt = b.text()
    for typ, lab in (("f", None), ("qk", L_Q), ("v", L_V)):
        t = path(typ, store_mods, name)
        txt += (lab + ":\n" if lab else "") + t
    txt += PH2(name)
    txt += f"{L_END}:\n  s_endpgm\n"
    return txt


def plan(ffn):
    units = []
    for t in range(8):
        units += [("X", t), ("W", t)]
    units += [("W", 8 + t) for t in range(8)]
    need = {t: [("X", t), ("W", t)] for t in range(8)}
    for t in range(8, 16):
        need[t] = [("W", t)]
    cost = {"X": 76, "W": 112 if ffn else 82}
    nstep = lambda u: 5 if (ffn and u[0] == "W" and u[1] >= 8) else 4
    free = list(range(7 if ffn else NSLOT))
    slot_of, issue = {}, {}
    n, stp = 0, 0
    done = set()
    INIT, BA, BB = optval("init", 2), optval("ba", 700), optval("bb", 480)
    for seg in range(-1, 16):
        if seg >= 1:
            for u in need[seg - 1]:
                free.append(slot_of[u])
        issue[seg] = []
        budget = BA if seg < 8 else BB
        while n < len(units):
            u = units[n]
            must = any(x not in done for t in (seg + 1, seg + 2) for x in need.get(t, [])) or stp > 0
            if seg == -1:
                if u[1] >= INIT:
                    break
            elif budget < cost[u[0]] and not must:
                break
            if stp == 0:
                if not free or (budget < 3 * cost[u[0]] and not must):
                    break
                slot_of[u] = free.pop(0)
            issue[seg].append((u, stp))
            budget -= cost[u[0]]
            stp += 1
            if stp == nstep(u):
                stp = 0
                done.add(u)
                n += 1
        assert all(u in done for u in need.get(seg + 1, [])), seg
    assert n == len(units)
    return units, need, slot_of, issue


def path(typ, store_mods, name):
    ffn = typ == "f"
    stride = 2752 if ffn else 3072
    lab = lambda s: f"{name}_{typ}_{s}"
    units, phase_units, slot_of, issue = plan(ffn)
    S1OFF = 8192 + (64 if ffn else 0)
    SLOT = 20608 if ffn else 16512
    S1B = 10240 + 128
    SWITCH = 8
    b = B()
    b.nlabel = {"qk": 1000, "v": 2000, "f": 3000}[typ]
    b.salu("s_lshr_b32", sr(S_T2), sr(S_R), 1)
    if ffn:
        b.salu("s_sub_u32", sr(S_G), sr(S_CG), 6)
        b.salu("s_cmp_eq_u32", sr(S_T2), 0)
        b.salu("s_cselect_b32", sr(S_W), "s12", "s14")
        b.salu("s_cselect_b32", sr(S_W + 1), "s13", "s15")
        b.salu("s_mov_b32", sr(S_W + 2), 512 * 2752)
        b.salu("s_lshl_b32", sr(S_T0), sr(S_G), 7)
        b.salu("s_lshl_b32", sr(S_SB), sr(S_G), 2)
        b.salu("s_add_u32", sr(S_SB), sr(S_SB), 40)
        b.salu("s_mul_i32", sr(S_T1), sr(S_G), 5)
        b.salu("s_add_u32", sr(S_T1), sr(S_T1), 36)
        b.salu("s_max_u32", sr(S_SB), sr(S_SB), sr(S_T1))
        b.salu("s_lshl_b32", sr(S_T1), sr(S_T2), 6)
        b.salu("s_add_u32", sr(S_R4W), sr(S_R4K), sr(S_T1))
    else:
        b.salu("s_mov_b32", sr(S_W), "s6")
        b.salu("s_mov_b32", sr(S_W + 1), "s7")
        b.salu("s_mov_b32", sr(S_W + 2), 512 * 3072)
        b.salu("s_lshl_b32", sr(S_T0), sr(S_CG), 9)
        b.salu("s_lshl_b32", sr(S_T1), sr(S_T2), 7)
        b.salu("s_add_u32", sr(S_T0), sr(S_T0), sr(S_T1))
        b.salu("s_mov_b32", sr(S_R4W), sr(S_R4K))
    b.salu("s_and_b32", sr(S_T1), sr(S_R), 1)
    b.salu("s_mul_i32", sr(S_T1), sr(S_T1), 32 * stride)
    b.salu("s_add_u32", sr(S_T0), sr(S_T0), sr(S_T1))
    b.valu("v_mul_u32_u24", vr(V_T0), stride, vr(V_T0))
    b.valu("v_add_u32", vr(V_T0), sr(S_T0), vr(V_T0))
    b.valu("v_bfe_u32", vr(V_T1), vr(V_LANE), 4, 1)
    b.valu("v_lshlrev_b32", vr(V_T1), 1 if ffn else 2, vr(V_T1))
    b.valu("v_xor_b32", vr(V_T1), vr(V_T1), vr(V_LANE))
    b.valu("v_and_b32", vr(V_T1), 7, vr(V_T1))
    b.valu("v_lshl_add_u32", vr(V_WO), vr(V_T1), 4, vr(V_T0))
    L_P0 = lab("p0")
    b.salu("s_cmp_eq_u32", sr(S_P), 0)
    b.branch("s_cbranch_scc1", L_P0)
    txt = b.text()

    def make(p):
        b = B()
        b.nlabel = {"qk": 1000, "v": 2000, "f": 3000}[typ] + 100 + 400 * p
        DPP = "row_mask:0xf bank_mask:0xf"

        sd = []

        def issue_step(us):
            u, n = us
            k, i = u
            tag = f"{k}{i}"
            sl = slot_of[u]
            NTM = " nt" if ('ntx' in OPT and k == "X") or ('ntw' in OPT and k == "W") else ""
            md = (f"offset:{1024*n}" if n else "") + NTM
            if k == "X":
                if n == 0:
                    b.salu("s_add_u32", "m0", sr(S_R4K), sl * SLOT)
                    if 'rot' in OPT:
                        b.salu("s_add_u32", sr(S_SOFF), sr(S_ROT), i)
                        b.salu("s_and_b32", sr(S_SOFF), sr(S_SOFF), 7)
                        b.salu("s_lshl_b32", sr(S_SOFF), sr(S_SOFF), 7)
                    else:
                        b.salu("s_mov_b32", sr(S_SOFF), i * 128)
                if n == 2:
                    b.salu("s_add_u32", sr(S_SOFF), sr(S_SOFF), 16384 - 2048)
                b.vmem_dma(vr(V_XO1 if n % 2 else V_XO0), sr(S_X, 4), sr(S_SOFF), mods=md, tag=tag)
            elif ffn and i >= 8:
                if not sd:
                    q5_setup()
                    sd.append(1)
                if n == 0:
                    b.salu("s_add_u32", "m0", sr(S_R5K), sl * SLOT)
                    if 'rot' in OPT:
                        b.salu("s_add_u32", sr(S_SOFF), sr(S_ROT), i % 8)
                        b.salu("s_and_b32", sr(S_SOFF), sr(S_SOFF), 7)
                        b.salu("s_mul_i32", sr(S_SOFF), sr(S_SOFF), 64 * stride)
                    else:
                        b.salu("s_mov_b32", sr(S_SOFF), (i % 8) * 64 * stride)
                if n == 4:
                    b.salu("s_add_u32", "m0", sr(S_R5K), sl * SLOT + 4096)
                    md = NTM
                b.vmem_dma(vr(Q5 + n), sr(S_W, 4), sr(S_SOFF), mods=md, tag=tag)
            else:
                if n == 0:
                    b.salu("s_add_u32", "m0", sr(S_R4W), sl * SLOT)
                    add = (i // 8) * 256
                    if 'rot' in OPT:
                        b.salu("s_add_u32", sr(S_SOFF), sr(S_ROT), i % 8)
                        b.salu("s_and_b32", sr(S_SOFF), sr(S_SOFF), 7)
                        b.salu("s_mul_i32", sr(S_SOFF), sr(S_SOFF), 64 * stride)
                        if add:
                            b.salu("s_add_u32", sr(S_SOFF), sr(S_SOFF), add)
                    else:
                        b.salu("s_mov_b32", sr(S_SOFF), (i % 8) * 64 * stride + add)
                else:
                    b.salu("s_add_u32", sr(S_SOFF), sr(S_SOFF), 8 * stride - 1024)
                b.vmem_dma(vr(V_WO), sr(S_W, 4), sr(S_SOFF), mods=md, tag=tag)

        Q5 = V_ACC if p == 1 else V_TR

        def q5_setup():
            b.salu("s_and_b32", sr(S_U0), sr(S_R), 1)
            b.salu("s_mul_i32", sr(S_R5K), sr(S_U0), 5120)
            b.salu("s_lshr_b32", sr(S_U1), sr(S_R), 1)
            b.salu("s_mul_i32", sr(S_U1), sr(S_U1), S1B)
            b.salu("s_add_u32", sr(S_R5K), sr(S_R5K), sr(S_U1))
            b.salu("s_mul_i32", sr(S_U0), sr(S_U0), 32 * stride)
            b.salu("s_lshl_b32", sr(S_U1), sr(S_SB), 5)
            b.salu("s_add_u32", sr(S_U0), sr(S_U0), sr(S_U1))
            for n in range(5):
                b.valu("v_add_u32", vr(V_T0), 64 * n, vr(V_LANE))
                b.valu("v_mul_u32_u24", vr(V_T1), 6554, vr(V_T0))
                b.valu("v_lshrrev_b32", vr(V_T1), 16, vr(V_T1))
                b.valu("v_mul_u32_u24", vr(V_T1), stride - 160, vr(V_T1))
                b.valu("v_lshl_add_u32", vr(V_T1), vr(V_T0), 4, vr(V_T1))
                b.salu("s_sub_u32", sr(S_U1), sr(S_U0), 1024 * n if n < 4 else 0)
                b.valu("v_add_u32", vr(Q5 + n), sr(S_U1), vr(V_T1))

        def trb_setup(dst):
            b.valu("v_lshrrev_b32", vr(V_T0), 5, vr(V_LANE))
            b.valu("v_lshlrev_b32", vr(V_T0), 3, vr(V_T0))
            b.valu("v_bfe_u32", vr(V_T1), vr(V_LANE), 2, 2)
            b.valu("v_add_u32", vr(V_T0), vr(V_T0), vr(V_T1))
            b.valu("v_mul_u32_u24", vr(V_T0), 160, vr(V_T0))
            b.valu("v_and_b32", vr(V_T1), 3, vr(V_LANE))
            b.valu("v_lshl_add_u32", vr(V_T0), vr(V_T1), 3, vr(V_T0))
            b.valu("v_bfe_u32", vr(V_T1), vr(V_LANE), 4, 1)
            b.valu("v_mul_u32_u24", vr(V_T1), S1B, vr(V_T1))
            b.valu("v_add_u32", vr(dst), vr(V_T0), vr(V_T1))
            b.valu("v_add_u32", vr(dst + 1), WIN, vr(dst))
            b.valu("v_add_u32", vr(dst + 2), 2 * WIN, vr(dst))

        def addr_setup():
            b.valu("v_and_b32", vr(V_T0), 31, vr(V_LANE))
            b.salu("s_lshl_b32", sr(S_T0), sr(S_R), 5)
            b.valu("v_add_u32", vr(V_T0), sr(S_T0), vr(V_T0))
            b.valu("v_lshrrev_b32", vr(V_T1), 1, vr(V_T0))
            b.valu("v_lshrrev_b32", vr(V_T2), 5, vr(V_LANE))
            b.valu("v_xor_b32", vr(V_T1), vr(V_T1), vr(V_T2))
            b.valu("v_and_b32", vr(V_T1), 7, vr(V_T1))
            b.valu("v_lshlrev_b32", vr(V_T1), 4, vr(V_T1))
            b.valu("v_lshl_add_u32", vr(V_XB), vr(V_T0), 7, vr(V_T1))
            b.valu("v_add_u32", vr(V_XB + 1), WIN, vr(V_XB))
            b.valu("v_add_u32", vr(V_XB + 2), 2 * WIN, vr(V_XB))
            b.valu("v_lshlrev_b32", vr(V_T0), 3, vr(V_T2))
            b.valu("v_bfe_u32", vr(V_T1), vr(V_LANE), 2, 2)
            b.valu("v_add_u32", vr(V_T0), vr(V_T0), vr(V_T1))
            b.valu("v_and_b32", vr(V_T2), 3, vr(V_LANE))
            b.valu("v_lshlrev_b32", vr(V_T2), 3, vr(V_T2))
            b.valu("v_lshl_add_u32", vr(V_XT), vr(V_T0), 7, vr(V_T2))
            b.valu("v_lshrrev_b32", vr(V_T1), 1, vr(V_T1))
            b.valu("v_bfe_u32", vr(V_T2), vr(V_LANE), 4, 1)
            if ffn:
                b.valu("v_lshl_add_u32", vr(V_XT), vr(V_T1), 5, vr(V_XT))
                b.valu("v_mul_u32_u24", vr(V_T2), S1OFF, vr(V_T2))
                b.valu("v_xor_b32", vr(V_TR + 3), 32, vr(V_XT))
                b.valu("v_add_u32", vr(V_TR), vr(V_XT), vr(V_T2))
                b.valu("v_add_u32", vr(V_TR + 3), vr(V_TR + 3), vr(V_T2))
            else:
                b.valu("v_lshl_add_u32", vr(V_T1), vr(V_T1), 1, vr(V_T2))
                b.valu("v_lshl_add_u32", vr(V_TR), vr(V_T1), 5, vr(V_XT))
                b.valu("v_xor_b32", vr(V_TR + 3), 64, vr(V_TR))
            for j in range(2):
                b.valu("v_add_u32", vr(V_TR + 3 * j + 1), WIN, vr(V_TR + 3 * j))
                b.valu("v_add_u32", vr(V_TR + 3 * j + 2), 2 * WIN, vr(V_TR + 3 * j))

        WIN = 3 * SLOT

        def epi_setup():
            b.valu("v_lshrrev_b32", vr(V_T2), 5, vr(V_LANE))
            b.valu("v_and_b32", vr(V_T0), 31, vr(V_LANE))
            b.salu("s_lshl_b32", sr(S_T0), sr(S_R), 8)
            b.salu("s_add_u32", sr(S_T0), sr(S_T0), ST_OFF)
            if typ == "v":
                b.valu("v_lshl_add_u32", vr(V_SRD), vr(V_T2), 5, sr(S_T0))
                b.valu("v_lshlrev_b32", vr(V_CSRD), 2, vr(V_T0))
            else:
                b.valu("v_lshl_add_u32", vr(V_SRD), vr(V_T0), 3, sr(S_T0))
                b.valu("v_lshlrev_b32", vr(V_CSRD), 4, vr(V_T2))
            b.valu("v_add_u32", vr(V_CSRD), CS_OFF + 512 * p, vr(V_CSRD))
            b.salu("s_lshl_b32", sr(S_T0), sr(S_RB), 2)
            b.salu("s_add_u32", sr(S_T0), sr(S_T0), sr(S_R))
            b.salu("s_lshr_b32", sr(S_T1), sr(S_T0), 1)
            b.salu("s_mul_i32", sr(S_T3), sr(S_T1), HF_RB)
            b.salu("s_and_b32", sr(S_T1), sr(S_T0), 1)
            b.salu("s_lshl_b32", sr(S_T1), sr(S_T1), 10)
            b.salu("s_add_u32", sr(S_T3), sr(S_T3), sr(S_T1))
            if ffn:
                b.salu("s_add_u32", sr(S_T3), sr(S_T3), HF)
                if p == 0:
                    b.salu("s_lshl_b32", sr(S_T1), sr(S_G), 13)
                    b.salu("s_add_u32", sr(S_OB), sr(S_T3), sr(S_T1))
                b.salu("s_lshl_b32", sr(S_T1), sr(S_SB), 11)
                b.salu("s_add_u32", sr(S_T3), sr(S_T3), sr(S_T1))
                if p == 1:
                    b.salu("s_mov_b32", sr(S_OB), sr(S_T3))
            else:
                b.salu("s_lshl_b32", sr(S_OB), sr(S_CG), 20)
                b.salu("s_lshl_b32", sr(S_T1), sr(S_T0), 10)
                b.salu("s_add_u32", sr(S_OB), sr(S_OB), sr(S_T1))
                if p:
                    b.salu("s_add_u32", sr(S_OB), sr(S_OB), 8 * 65536)
                if typ == "qk":
                    b.salu("s_cmp_lt_u32", sr(S_CG), 2)
                    b.salu("s_cselect_b32", sr(S_SCALE), hex(f32bits(QSCALE)), "1.0")
                else:
                    b.valu("v_and_b32", vr(V_T0), 15, vr(V_LANE))
                    b.valu("v_lshlrev_b32", vr(V_T0), 4, vr(V_T0))
                    b.valu("v_lshl_add_u32", vr(V_T0), vr(V_T2), 8, vr(V_T0))
                    b.valu("v_bfe_u32", vr(V_T1), vr(V_LANE), 4, 1)
                    b.valu("v_lshl_add_u32", vr(V_STO), vr(V_T1), 16, vr(V_T0))

        def ldsw(regs, off):
            return vr(regs + off // WIN), off % WIN

        def read_x(ks):
            t, s = divmod(ks, 4)
            a, o = V_XB + (slot_of[("X", t)] * SLOT) // WIN, (slot_of[("X", t)] * SLOT) % WIN
            if s:
                b.valu("v_xor_b32", vr(V_XT), 32 * s, vr(a))
                a = V_XT
            b.ds_read("ds_read_b128", vr(V_X + 4 * ks, 4), vr(a), o, tag=f"x{ks}")

        def read_w(f):
            ks, blk = divmod(f, 4)
            t, s = divmod(ks, 4)
            r0 = V_RING + 4 * (f % 8)
            for q in range(2):
                if ffn and t >= 8:
                    a, o = ldsw(V_TR, slot_of[("W", t)] * SLOT + s * 2560 + q * 640 + blk * 32)
                else:
                    off = slot_of[("W", t)] * SLOT + s * 2048 + q * 512 + (blk >> 1) * (64 if ffn else 8192)
                    a, o = ldsw(V_TR + 3 * (blk & 1), off)
                b.ds_read("ds_read_b64_tr_b16", vr(r0 + 2 * q, 2), a, o, tag=f"w{f}")

        def bar(t, vmtags=None, lg=0):
            b.wait(vm=vmtags, lg=lg)
            b.barrier()
            if STAMPS and t in (0, 2, 4, 8, 12):
                stamp(b, 1 + (0, 2, 4, 8, 12).index(t))

        def utags(t):
            return [f"{k}{i}" for (k, i) in phase_units.get(t, [])]

        def mf(acc, wreg, xreg, first, ct=None):
            c = "0" if first else vr(acc, 16)
            if (typ == "v") if ct is None else (not ct):
                b.mfma(vr(acc, 16), vr(xreg, 4), vr(wreg, 4), c)
            else:
                b.mfma(vr(acc, 16), vr(wreg, 4), vr(xreg, 4), c)

        LA = optval("la", 6)

        def compute(quad, hooks={}):
            f0 = quad * 128
            pre = min(LA, 128)
            for f in range(f0, f0 + pre):
                if quad == 0 and f % 4 == 0:
                    read_x(f // 4)
                read_w(f)
            for f in range(f0, f0 + 128):
                nf = f + LA
                if nf % 16 == 0:
                    t = nf // 16
                    if True:
                        bar(t, utags(t) or None)
                if nf < f0 + 128:
                    if quad == 0 and nf % 4 == 0:
                        read_x(nf // 4)
                    read_w(nf)
                ks, blk = divmod(f, 4)
                b.wait(lg=[f"w{f}", f"x{ks}"])
                mf(V_ACC + 16 * blk, V_RING + 4 * (f % 8), V_X + 4 * (ks % 32), ks % 32 == 0)
                if f in hooks:
                    hooks[f]()

        def bf16r(reg):
            b.valu("v_cvt_pk_bf16_f32", vr(reg), vr(reg), vr(reg))
            b.valu("v_lshlrev_b32", vr(reg), 16, vr(reg))

        uid = [0]

        def epi_groups(kind, acc, cs_addr, cs_off, so_reg, so_off, sto, nm, rs):
            groups = []

            def store(regs, extra, imm=0):
                def f(T):
                    b.salu("s_add_u32", sr(S_STO), sr(so_reg), so_off + extra)
                    b.vmem_store("buffer_store_dwordx4", vr(regs, 4), vr(sto), sr(S_WS, 4), sr(S_STO),
                                 mods=(f"offset:{imm} " if imm else "") + store_mods, tag="st")
                return f

            def rd2(addr, o0, o1, extra=None):
                def f(T, tag):
                    if extra:
                        extra(tag)
                    b.ds_read("ds_read_b128", vr(T, 4), vr(addr), o0, tag=tag)
                    b.ds_read("ds_read_b128", vr(T + 4, 4), vr(addr), o1, tag=tag)
                return f
            if kind == "qk":
                for hf in range(2):
                    c = []
                    for i in range(8):
                        c.append(lambda T, i=i, hf=hf: b.valu("v_fmac_f32", vr(acc + 8 * hf + i), vr(nm), vr(T + i)))
                    for i in range(8):
                        c.append(lambda T, i=i, hf=hf: b.valu("v_mul_f32", vr(acc + 8 * hf + i), vr(rs), vr(acc + 8 * hf + i)))
                    for i in range(4):
                        c.append(lambda T, i=i, hf=hf: b.valu("v_cvt_pk_bf16_f32", vr(acc + 8 * hf + i), vr(acc + 8 * hf + 2 * i), vr(acc + 8 * hf + 2 * i + 1)))
                    c.append(store(acc + 8 * hf, hf * 65536))
                    groups.append((rd2(cs_addr, cs_off + hf * 64, cs_off + hf * 64 + 32), c))
            elif kind == "v":
                ncs = V_NM + ((cs_off >> 7) & 1)
                for g in range(4):
                    c = []
                    for i in range(4):
                        c.append(lambda T, i=i, g=g: b.valu("v_fmac_f32", vr(acc + 4 * g + i), vr(ncs), vr(T + 2 * i)))
                    for i in range(4):
                        c.append(lambda T, i=i, g=g: b.valu("v_mul_f32", vr(acc + 4 * g + i), vr(T + 2 * i + 1), vr(acc + 4 * g + i)))
                    if g % 2 == 1:
                        hf = g // 2
                        for i in range(4):
                            c.append(lambda T, i=i, hf=hf: b.valu("v_cvt_pk_bf16_f32", vr(acc + 8 * hf + i), vr(acc + 8 * hf + 2 * i), vr(acc + 8 * hf + 2 * i + 1)))
                        c.append(store(acc + 8 * hf, 0, imm=hf * 512))
                    ex = (lambda tag: b.ds_read("ds_read_b32", vr(ncs), vr(cs_addr), cs_off, tag=tag)) if g == 0 else None
                    groups.append((rd2(V_SRD, g * 64, g * 64 + 16, ex), c))
            else:
                for g in range(2):
                    c = []
                    for i in range(4):
                        c.append(lambda T, i=i, g=g: b.valu("v_fmac_f32", vr(acc + 4 * g + i), vr(nm), vr(T + i)))
                    for i in range(4):
                        c.append(lambda T, i=i, g=g: b.valu("v_fmac_f32", vr(acc + 8 + 4 * g + i), vr(nm), vr(T + 4 + i)))
                    for i in range(4):
                        c.append(lambda T, i=i, g=g: b.valu("v_max_f32", vr(acc + 4 * g + i), 0, vr(acc + 4 * g + i)))
                    for i in range(4):
                        c.append(lambda T, i=i, g=g: b.valu("v_mul_f32", vr(acc + 8 + 4 * g + i), vr(rs), vr(acc + 8 + 4 * g + i)))
                    for i in range(4):
                        c.append(lambda T, i=i, g=g: b.valu("v_mul_f32", vr(acc + 4 * g + i), vr(acc + 4 * g + i), vr(acc + 8 + 4 * g + i)))
                    if g == 1:
                        for i in range(4):
                            c.append(lambda T, i=i: b.valu("v_cvt_pk_bf16_f32", vr(acc + i), vr(acc + 2 * i), vr(acc + 2 * i + 1)))
                        c.append(store(acc, 0))
                    groups.append((rd2(cs_addr, cs_off + g * 32, cs_off + 64 + g * 32), c))
            return groups

        def pipeline(groups):
            uid[0] += 1
            u = uid[0]
            TS = [V_TMP, V_TMP2]
            chunks = [lambda: groups[0][0](TS[0], f"c{u}_0")]
            for n, (rd, comp) in enumerate(groups):
                def ch(n=n, comp=comp):
                    if n + 1 < len(groups):
                        groups[n + 1][0](TS[(n + 1) % 2], f"c{u}_{n+1}")
                    b.wait(lg=f"c{u}_{n}")
                    for c in comp:
                        c(TS[n % 2])
                chunks.append(ch)
            return chunks

        def stats_read():
            if typ != "v":
                b.ds_read("ds_read_b64", vr(V_NM, 2), vr(V_SRD), 0, tag="str")

        def stats_fin():
            if typ != "v":
                b.wait(lg="str")
                if typ == "qk":
                    b.valu("v_mul_f32", vr(V_RS), sr(S_SCALE), vr(V_RS))
                else:
                    b.valu("v_mul_f32", vr(V_RS), vr(V_RS), vr(V_RS))

        def quad_chunks():
            gs = []
            for blk in range(4):
                so = blk * 2048 if ffn else blk * 2 * 65536
                gs += epi_groups(typ, V_ACC + 16 * blk, V_CSRD, blk * 128, S_OB, so, V_STO, V_NM, V_RS)
            return pipeline(gs)

        RD_, CD, CA, U0, U1 = 208, 216, 232, 240, 241
        SU, SQ, NON = 24, 25, 26
        GA, G0 = 240, 28
        PNT = 'nt' if 'ntp' in OPT else ''

        def prod_loads():
            l1 = b.newlabel(lab("np"))
            b.salu("s_cmp_lg_u32", sr(S_R), 0)
            b.branch("s_cbranch_scc1", l1)
            b.opt_begin()
            b.vmem_load("buffer_load_dwordx2", vr(NON, 2), vr(V_ZERO), sr(S_DBG, 4), "0", mods="sc1")
            b.opt_end()
            b.label(l1)
            b.salu("s_lshl_b32", sr(S_T0), sr(S_CG), 13)
            b.salu("s_lshl_b32", sr(S_T1), sr(S_R), 11)
            b.salu("s_add_u32", sr(S_T0), sr(S_T0), sr(S_T1))
            b.valu("v_lshlrev_b32", vr(U0), 5, vr(V_LANE))
            b.vmem_load("buffer_load_dwordx4", vr(RD_, 4), vr(U0), sr(S_X, 4), sr(S_T0), mods=PNT, tag="rl")
            b.vmem_load("buffer_load_dwordx4", vr(RD_ + 4, 4), vr(U0), sr(S_X, 4), sr(S_T0), mods="offset:16 " + PNT, tag="rl")
            b.salu("s_and_b32", sr(S_T0), sr(S_RB), 3)
            b.salu("s_lshr_b32", sr(S_T1), sr(S_RB), 2)
            if ffn:
                b.salu("s_cmp_lt_u32", sr(S_T0), 2)
                b.salu("s_cselect_b32", sr(S_C), "s12", "s14")
                b.salu("s_cselect_b32", sr(S_C + 1), "s13", "s15")
                b.salu("s_mov_b32", sr(S_C + 2), 512 * 2752)
                b.salu("s_lshl_b32", sr(S_T2), sr(S_SB), 5)
                b.salu("s_lshl_b32", sr(S_U0), sr(S_G), 7)
                b.salu("s_bitcmp1_b32", sr(S_T0), 0)
                b.salu("s_cselect_b32", sr(S_T2), sr(S_T2), sr(S_U0))
                b.salu("s_mov_b32", sr(S_U0), 0)
            else:
                b.salu("s_mov_b32", sr(S_C), "s6")
                b.salu("s_mov_b32", sr(S_C + 1), "s7")
                b.salu("s_mov_b32", sr(S_C + 2), 512 * 3072)
                b.salu("s_lshl_b32", sr(S_T2), sr(S_T0), 7)
                b.salu("s_lshl_b32", sr(S_U0), sr(S_CG), 9)
            b.salu("s_add_u32", sr(S_T2), sr(S_T2), sr(S_U0))
            b.salu("s_lshl_b32", sr(S_U0), sr(S_T1), 2)
            b.salu("s_add_u32", sr(S_U0), sr(S_U0), sr(S_R))
            b.salu("s_mul_i32", sr(S_U0), sr(S_U0), 32 * stride)
            b.salu("s_add_u32", sr(S_T2), sr(S_T2), sr(S_U0))
            b.valu("v_lshrrev_b32", vr(U0), 3, vr(V_LANE))
            b.valu("v_mul_u32_u24", vr(U0), stride, vr(U0))
            b.valu("v_and_b32", vr(U1), 7, vr(V_LANE))
            b.valu("v_lshl_add_u32", vr(U0), vr(U1), 4, vr(U0))
            for i in range(4):
                b.vmem_load("buffer_load_dwordx4", vr(CD + 4 * i, 4), vr(U0), sr(S_C, 4), sr(S_T2), mods=PNT, tag="cl")
                if i < 3:
                    b.salu("s_add_u32", sr(S_T2), sr(S_T2), 8 * stride)
            b.salu("s_lshl_b32", sr(S_CSO), sr(S_CG), 2)
            b.salu("s_add_u32", sr(S_CSO), sr(S_CSO), sr(S_T1))
            b.salu("s_lshl_b32", sr(S_CSO), sr(S_CSO), 11)
            b.salu("s_add_u32", sr(S_CSO), sr(S_CSO), CSG)
            if ffn:
                b.salu("s_and_b32", sr(S_T2), sr(S_T0), 1)
                b.salu("s_lshl_b32", sr(S_T2), sr(S_T2), 10)
                b.salu("s_lshr_b32", sr(S_U0), sr(S_T0), 1)
                b.salu("s_lshl_b32", sr(S_U0), sr(S_U0), 7)
                b.salu("s_add_u32", sr(S_T2), sr(S_T2), sr(S_U0))
            else:
                b.salu("s_lshl_b32", sr(S_T2), sr(S_T0), 9)
            b.salu("s_add_u32", sr(S_CSO), sr(S_CSO), sr(S_T2))

        def prod_ops():
            ops = []
            Vv = lambda *a, **k: ops.append(lambda: b.valu(*a, **k))
            A = ops.append
            A(lambda: b.wait(vm="rl"))
            for i in range(8):
                Vv("v_lshlrev_b32", vr(U0), 16, vr(RD_ + i))
                Vv("v_and_b32", vr(U1), "0xffff0000", vr(RD_ + i))
                if i == 0:
                    Vv("v_add_f32", vr(SU), vr(U0), vr(U1))
                    Vv("v_mul_f32", vr(SQ), vr(U0), vr(U0))
                else:
                    Vv("v_add_f32", vr(SU), vr(SU), vr(U0))
                    Vv("v_fmac_f32", vr(SQ), vr(U0), vr(U0))
                    Vv("v_add_f32", vr(SU), vr(SU), vr(U1))
                Vv("v_fmac_f32", vr(SQ), vr(U1), vr(U1))
            Vv("v_permlane16_swap_b32", vr(SU), vr(SQ))
            Vv("v_add_f32", vr(SU), vr(SU), vr(SQ))
            for r in (8, 4, 2, 1):
                Vv("v_add_f32_dpp", vr(SU), vr(SU), vr(SU), mods=f"row_ror:{r} {DPP}")
            Vv("v_mov_b32", vr(SQ), vr(SU))
            Vv("v_permlane16_swap_b32", vr(SU), vr(SQ))
            Vv("v_mul_f32", vr(SU), hex(f32bits(1.0 / 512)), vr(SU))
            Vv("v_mul_f32", vr(SQ), hex(f32bits(1.0 / 512)), vr(SQ))
            Vv("v_fma_f32", vr(SQ), f"-{vr(SU)}", vr(SU), vr(SQ))
            Vv("v_max_f32", vr(SQ), 0, vr(SQ))
            A(lambda: bf16r(SQ))
            Vv("v_add_f32", vr(SQ), hex(f32bits(1e-5)), vr(SQ))
            A(lambda: bf16r(SQ))
            Vv("v_sqrt_f32", vr(SQ), vr(SQ))
            A(lambda: bf16r(SQ))
            Vv("v_rcp_f32", vr(SQ), vr(SQ))
            A(lambda: bf16r(SU))
            Vv("v_sub_f32", vr(SU), 0, vr(SU))
            A(lambda: b.wait(vm="cl"))
            for i in range(4):
                for j in range(4):
                    src = CD + 4 * i + j
                    if i == 0:
                        Vv("v_lshlrev_b32", vr(CA + 2 * j), 16, vr(src))
                        Vv("v_and_b32", vr(CA + 2 * j + 1), "0xffff0000", vr(src))
                    else:
                        Vv("v_lshlrev_b32", vr(U0), 16, vr(src))
                        Vv("v_and_b32", vr(U1), "0xffff0000", vr(src))
                        Vv("v_add_f32", vr(CA + 2 * j), vr(CA + 2 * j), vr(U0))
                        Vv("v_add_f32", vr(CA + 2 * j + 1), vr(CA + 2 * j + 1), vr(U1))
            for i in range(4):
                Vv("v_permlane32_swap_b32", vr(CA + 2 * i), vr(CA + 2 * i + 1))
            for i in range(4):
                Vv("v_add_f32", vr(CA + 2 * i), vr(CA + 2 * i), vr(CA + 2 * i + 1))
            for i in range(2):
                Vv("v_permlane16_swap_b32", vr(CA + 4 * i), vr(CA + 4 * i + 2))
            for i in range(2):
                Vv("v_add_f32", vr(CA + 4 * i), vr(CA + 4 * i), vr(CA + 4 * i + 2))
            for i in range(2):
                Vv("v_add_f32_dpp", vr(CA + 4 * i), vr(CA + 4 * i), vr(CA + 4 * i), mods=f"row_ror:8 {DPP}")
            Vv("v_and_b32", vr(U0), 7, vr(V_LANE))
            Vv("v_lshlrev_b32", vr(U0), 5, vr(U0))
            Vv("v_bfe_u32", vr(U1), vr(V_LANE), 4, 1)
            Vv("v_lshl_add_u32", vr(U0), vr(U1), 3, vr(U0))
            Vv("v_lshrrev_b32", vr(U1), 5, vr(V_LANE))
            Vv("v_lshl_add_u32", vr(U0), vr(U1), 2, vr(U0))
            A(lambda: (b.salu("s_lshl_b32", sr(S_U0), sr(S_R), 8), b.salu("s_add_u32", sr(S_U0), sr(S_U0), CP_OFF)))
            Vv("v_add_u32", vr(U0), sr(S_U0), vr(U0))
            A(lambda: (b.ds_write("ds_write_b32", vr(U0), vr(CA), 0), b.ds_write("ds_write_b32", vr(U0), vr(CA + 4), 16)))
            A(prod_nonce)
            return ops

        def prod_nonce():
            lok, lp, lsk = b.newlabel(lab("nok")), b.newlabel(lab("nlp")), b.newlabel(lab("nsk"))
            b.salu("s_cmp_lg_u32", sr(S_R), 0)
            b.branch("s_cbranch_scc1", lsk)
            b.opt_begin()
            b.label(lp)
            b.valu("v_cmp_eq_u32", "vcc", 0, vr(NON + 1))
            b.branch("s_cbranch_vccz", lok)
            b.opt_begin()
            b.raw("  s_sleep 4")
            b.vmem_load("buffer_load_dwordx2", vr(NON, 2), vr(V_ZERO), sr(S_DBG, 4), "0", mods="sc1")
            b.wait(vm=0)
            b.branch("s_branch", lp)
            b.opt_end()
            b.label(lok)
            b.valu("v_mov_b32", vr(U0), NC_OFF)
            b.ds_write("ds_write_b64", vr(U0), vr(NON, 2), 0)
            b.opt_end()
            b.label(lsk)

        def publish():
            b.valu("v_mov_b32", vr(U0), NC_OFF)
            b.ds_read("ds_read_b64", vr(NON, 2), vr(U0), 0, tag="non")
            b.salu("s_lshl_b32", sr(S_U0), sr(S_RB), 11)
            b.salu("s_lshl_b32", sr(S_U1), sr(S_CG), 7)
            b.salu("s_add_u32", sr(S_U0), sr(S_U0), sr(S_U1))
            b.salu("s_lshl_b32", sr(S_U1), sr(S_R), 5)
            b.salu("s_add_u32", sr(S_U0), sr(S_U0), sr(S_U1))
            b.salu("s_add_u32", sr(S_U0), sr(S_U0), RSG)
            b.valu("v_lshrrev_b32", vr(U1), 1, vr(V_LANE))
            b.wait(lg="non")
            b.salu("s_mov_b32", "exec_lo", 1)
            b.salu("s_mov_b32", "exec_hi", 1)
            b.vmem_store("buffer_store_dwordx4", vr(SU, 4), vr(U1), sr(S_WS, 4), sr(S_U0), mods="sc1")
            b.salu("s_mov_b64", "exec", -1)
            l1 = b.newlabel(lab("cf"))
            b.salu("s_cmp_lg_u32", sr(S_R), 3)
            b.branch("s_cbranch_scc1", l1)
            b.opt_begin()
            b.valu("v_and_b32", vr(U0), 31, vr(V_LANE))
            b.valu("v_lshlrev_b32", vr(U1), 3, vr(U0))
            b.valu("v_add_u32", vr(U1), CP_OFF, vr(U1))
            for w in range(4):
                b.ds_read("ds_read_b64", vr(CD + 2 * w, 2), vr(U1), w * 256)
            if ffn:
                b.valu("v_lshrrev_b32", vr(U1), 3, vr(U0))
                b.valu("v_and_b32", vr(U0), 7, vr(U0))
                b.valu("v_lshl_add_u32", vr(U0), vr(U1), 4, vr(U0))
            b.valu("v_lshlrev_b32", vr(U0), 4, vr(U0))
            b.wait(lg=0)
            for e in range(2):
                b.valu("v_add_f32", vr(SU + e), vr(CD + e), vr(CD + 2 + e))
                b.valu("v_add_f32", vr(CD + 4 + e), vr(CD + 4 + e), vr(CD + 6 + e))
                b.valu("v_add_f32", vr(SU + e), vr(SU + e), vr(CD + 4 + e))
            b.salu("s_mov_b32", "exec_hi", 0)
            b.vmem_store("buffer_store_dwordx4", vr(SU, 4), vr(U0), sr(S_WS, 4), sr(S_CSO), mods="sc1")
            b.salu("s_mov_b32", "exec_hi", -1)
            b.opt_end()
            b.label(l1)
            b.salu("s_lshl_b32", sr(S_U0), sr(S_CG), 13)
            b.salu("s_add_u32", sr(S_U0), sr(S_U0), CSG)
            b.salu("s_lshl_b32", sr(S_U1), sr(S_RB), 11)
            b.salu("s_add_u32", sr(S_U1), sr(S_U1), RSG - 2048)
            b.salu("s_movk_i32", sr(S_U2), 2048)
            b.salu("s_cmp_lt_u32", sr(S_R), 2)
            b.salu("s_cselect_b32", sr(S_U0), sr(S_U0), sr(S_U1))
            b.salu("s_cselect_b64", sr(S_CARE1, 2), -1, 0)
            b.salu("s_cselect_b32", sr(S_U2), sr(S_U2), "0x10000000")
            b.salu("s_lshl_b32", sr(S_U1), sr(S_R), 10)
            b.salu("s_add_u32", sr(S_U0), sr(S_U0), sr(S_U1))
            b.valu("v_lshl_add_u32", vr(G0), vr(V_LANE), 4, sr(S_U0))
            for i in range(1, 4):
                b.valu("v_add_u32", vr(G0 + i), sr(S_U2), vr(G0 + i - 1))

        def gather_issue(tag="ga"):
            for i in range(4):
                b.vmem_load("buffer_load_dwordx4", vr(GA + 4 * i, 4), vr(G0 + i), sr(S_WS, 4), "0", mods="sc1", tag=tag)

        def gather_write():
            lok, lp = b.newlabel(lab("gok")), b.newlabel(lab("gl"))
            b.wait(vm="ga")
            b.label(lp)
            b.valu("v_cmp_ne_u64", sr(S_U0, 2), vr(GA + 6, 2), vr(NON, 2))
            b.valu("v_cmp_ne_u64", "vcc", vr(GA + 10, 2), vr(NON, 2))
            b.salu("s_or_b64", sr(S_U0, 2), sr(S_U0, 2), "vcc")
            b.valu("v_cmp_ne_u64", "vcc", vr(GA + 14, 2), vr(NON, 2))
            b.salu("s_or_b64", sr(S_U0, 2), sr(S_U0, 2), "vcc")
            b.salu("s_and_b64", sr(S_U0, 2), sr(S_U0, 2), sr(S_CARE1, 2))
            b.valu("v_cmp_ne_u64", "vcc", vr(GA + 2, 2), vr(NON, 2))
            b.salu("s_or_b64", sr(S_U0, 2), sr(S_U0, 2), "vcc")
            b.branch("s_cbranch_scc0", lok)
            b.opt_begin()
            b.raw("  s_sleep 4")
            gather_issue(None)
            b.wait(vm=0)
            b.branch("s_branch", lp)
            b.opt_end()
            b.label(lok)
            for e in range(2):
                b.valu("v_add_f32", vr(GA + e), vr(GA + e), vr(GA + 4 + e))
                b.valu("v_add_f32", vr(GA + 8 + e), vr(GA + 8 + e), vr(GA + 12 + e))
                b.valu("v_add_f32", vr(GA + e), vr(GA + e), vr(GA + 8 + e))
            b.salu("s_lshl_b32", sr(S_U0), sr(S_R), 9)
            b.salu("s_add_u32", sr(S_U0), sr(S_U0), MISC)
            b.valu("v_lshl_add_u32", vr(V_T0), vr(V_LANE), 3, sr(S_U0))
            b.ds_write("ds_write_b64", vr(V_T0), vr(GA, 2), 0)

        if p == 1:
            for us in issue[-1][:8]:
                issue_step(us)
            ln = b.newlabel(lab("nl"))
            b.salu("s_or_b32", sr(S_T0), "s2", sr(S_R))
            b.salu("s_cmp_lg_u32", sr(S_T0), 0)
            b.branch("s_cbranch_scc1", ln)
            b.opt_begin()
            b.raw(f"  s_memrealtime s[{S_CARE0}:{S_CARE0+1}]")
            b.raw("  s_waitcnt lgkmcnt(0)")
            b.salu("s_or_b32", sr(S_CARE0 + 1), sr(S_CARE0 + 1), "0x80000000")
            b.valu("v_mov_b32", vr(NON), sr(S_CARE0))
            b.valu("v_mov_b32", vr(NON + 1), sr(S_CARE0 + 1))
            b.salu("s_mov_b64", "exec", 1)
            b.vmem_store("buffer_store_dwordx2", vr(NON, 2), vr(V_ZERO), sr(S_DBG, 4), "0", mods="sc1")
            b.salu("s_mov_b64", "exec", -1)
            b.opt_end()
            b.label(ln)
            if 'early' in OPT:
                b.barrier()
                addr_setup()
                epi_setup()
                if ffn:
                    trb_setup(V_TR)
                b.barrier()
            for us in issue[-1][8:]:
                issue_step(us)
            if 'early' not in OPT:
                addr_setup()

            if 'early' not in OPT:
                epi_setup()
                if ffn:
                    trb_setup(V_TR)
            bar(0, utags(0))
            for t in range(8):
                steps = list(issue[t])
                for us in steps[:2]:
                    issue_step(us)
                for ks in range(4 * t, 4 * t + 4):
                    read_x(ks)
                for us in steps[2:]:
                    issue_step(us)
                bar(t + 1, utags(t + 1))
            if 'prb' in OPT:
                b.raw('  s_setprio 1')
            compute(1)
            stamp(b, 6)
            stats_read()
            ch = quad_chunks()
            ch[0]()
            stats_fin()
            for c in ch[1:]:
                c()
            stamp(b, 7)
            b.branch("s_branch", name + "_ph2")
        else:
            b.label(L_P0)
            addr_setup()
            if 'early' in OPT:
                b.barrier()
                prod_loads()
                b.barrier()
            epi_setup()
            b.valu("v_mov_b32", vr(V_T0), C1_OFF)
            b.ds_write("ds_write_b32", vr(V_T0), vr(V_ZERO), 0)
            b.ds_write("ds_write_b32", vr(V_T0), vr(V_ZERO), 4)
            bar(0)
            FPC, FPE = optval("fpc", 12), optval("fpe", 40)
            pops = prod_ops()
            nper = -(-len(pops) // (FPE - FPC))
            hooks = {}
            for f in range(FPC, FPE):
                hooks[f] = (lambda ops=pops[(f - FPC) * nper:(f - FPC + 1) * nper]: [o() for o in ops])
            hooks[optval("fpu", 44)] = publish
            hooks[optval("fgi", 88)] = gather_issue
            hooks[optval("fgw", 104)] = gather_write
            if 'early' not in OPT:
                hooks[optval("fpl", 4)] = prod_loads
            compute(0, hooks)
            stats_read()
            ch = quad_chunks()
            ch[0]()
            stats_fin()
            ch = ch[1:]
            per = -(-len(ch) // optval("eseg", 8 if ffn else 4))
            A5, F5, CSA = V_RING + 8, V_RING + 24, V_SO
            if ffn:
                trb_setup(V_XB)
                b.valu("v_mov_b32", vr(CSA), 0)
                b.valu("v_mov_b32", vr(V_WO), 0)

            def five_read(ks):
                t, s = divmod(ks, 4)
                for q in range(2):
                    a_, o_ = ldsw(V_XB, slot_of[("W", t)] * SLOT + s * 2560 + q * 640 + 128)
                    b.ds_read("ds_read_b64_tr_b16", vr(F5 + 4 * (ks % 2) + 2 * q, 2), a_, o_, tag=f"s{ks}")

            def five_rd(ks):
                five_read(ks)
                five_read(ks + 1)

            def five_mf(ks):
                b.wait(lg=f"s{ks+1}")
                l1 = b.newlabel(lab("f5"))
                b.salu("s_cmp_lt_u32", sr(S_G), 4)
                b.branch("s_cbranch_scc1", l1)
                b.opt_begin()
                for k_ in ((ks, ks + 1) if 'nom5' not in OPT else ()):
                    mf(A5, F5 + 4 * (k_ % 2), V_X + 4 * (k_ % 32), k_ == 32, ct=True)
                for k_ in ((ks, ks + 1) if 'nod5' not in OPT else ()):
                    l2 = b.newlabel(lab("d5"))
                    b.salu("s_cmp_lg_u32", sr(S_R), k_ % 4)
                    b.branch("s_cbranch_scc1", l2)
                    b.opt_begin()
                    for i in range(4):
                        fr = F5 + 4 * (k_ % 2) + i
                        b.valu("v_lshlrev_b32", vr(V_T0), 16, vr(fr))
                        b.valu("v_and_b32", vr(V_T1), "0xffff0000", vr(fr))
                        b.valu("v_add_f32", vr(CSA), vr(CSA), vr(V_T0))
                        b.valu("v_add_f32", vr(V_WO), vr(V_WO), vr(V_T1))
                    b.opt_end()
                    b.label(l2)
                b.opt_end()
                b.label(l1)
            for t in range(8, 16):
                steps = list(issue[t])
                mine = ch[:per]
                ch = ch[per:]
                if ffn:
                    five_rd(4 * t)
                    for us in steps[:2]:
                        issue_step(us)
                    five_mf(4 * t)
                    five_rd(4 * t + 2)
                    for us in steps[2:3]:
                        issue_step(us)
                    for c in mine:
                        c()
                    five_mf(4 * t + 2)
                    for us in steps[3:]:
                        issue_step(us)
                else:
                    k = -(-len(steps) // (len(mine) + 1))
                    while steps or mine:
                        for us in steps[:k]:
                            issue_step(us)
                        steps = steps[k:]
                        if mine:
                            mine.pop(0)()
                if t == optval("tw2", 9) and 'now2' not in OPT:
                    w2_prefetch(b, lab)
                if t + 1 <= 15:
                    bar(t + 1, utags(t + 1) or None)
            if ffn:
                b.valu("v_add_f32", vr(CSA), vr(CSA), vr(V_WO))
                b.valu("v_and_b32", vr(V_T1), 31, vr(V_LANE))
                b.valu("v_mov_b32", vr(V_T0), vr(CSA))
                b.valu("v_permlane32_swap_b32", vr(V_T0), vr(CSA))
                b.valu("v_add_f32", vr(CSA), vr(CSA), vr(V_T0))
                b.salu("s_lshl_b32", sr(S_T0), sr(S_R), 7)
                b.salu("s_add_u32", sr(S_T0), sr(S_T0), SP_OFF)
                b.valu("v_lshl_add_u32", vr(V_T2), vr(V_T1), 2, sr(S_T0))
                b.ds_write("ds_write_b32", vr(V_T2), vr(CSA), 0)
            bar(16)
            if ffn:
                l1 = b.newlabel(lab("e5"))
                b.salu("s_cmp_lt_u32", sr(S_G), 4)
                b.branch("s_cbranch_scc1", l1)
                b.valu("v_lshlrev_b32", vr(V_T2), 2, vr(V_T1))
                b.valu("v_add_u32", vr(V_T2), SP_OFF, vr(V_T2))
                for w in range(4):
                    b.ds_read("ds_read_b32", vr(V_TMP + w), vr(V_T2), w * 128, tag="sp")
                b.salu("s_add_u32", sr(S_T0), sr(S_T0), (CP_OFF - SP_OFF) & 0xffffffff)
                b.valu("v_lshl_add_u32", vr(V_T2), vr(V_T1), 2, sr(S_T0))
                b.wait(lg="sp")
                b.valu("v_add_f32", vr(V_TMP), vr(V_TMP), vr(V_TMP + 1))
                b.valu("v_add_f32", vr(V_TMP + 2), vr(V_TMP + 2), vr(V_TMP + 3))
                b.valu("v_add_f32", vr(V_TMP), vr(V_TMP), vr(V_TMP + 2))
                b.ds_write("ds_write_b32", vr(V_T2), vr(V_TMP), 0)
                b.valu("v_lshrrev_b32", vr(V_T0), 5, vr(V_LANE))
                b.valu("v_lshl_add_u32", vr(V_T2), vr(V_T0), 4, sr(S_T0))
                for c in pipeline(epi_groups("f", A5, V_T2, 0, S_T3, 4 * 2048, V_STO, V_NM, V_RS)):
                    c()
                b.label(l1)
            stamp(b, 6)
            stamp(b, 7)
            b.branch("s_branch", name + "_ph2")
        print(f"k1 path {typ} p{p}: {b.ninstr} instrs")
        return b.text()

    return txt + make(1) + make(0)


def w2_prefetch(b, lab):
    l1 = b.newlabel(lab("w2"))
    b.salu("s_cmp_lg_u32", sr(S_R), 0)
    b.branch("s_cbranch_scc1", l1)
    b.opt_begin()
    b.salu("s_sub_u32", sr(S_U1), "s2", 172)
    b.salu("s_cmp_lt_u32", "s2", 172)
    b.salu("s_cselect_b32", sr(S_C), "s16", "s8")
    b.salu("s_cselect_b32", sr(S_C + 1), "s17", "s9")
    b.salu("s_cselect_b32", sr(S_U0), "s2", sr(S_U1))
    b.salu("s_mov_b32", sr(S_C + 2), 512 * 1024)
    b.salu("s_cselect_b32", sr(S_C + 2), 1376 * 1024, sr(S_C + 2))
    b.salu("s_lshl_b32", sr(S_U0), sr(S_U0), 13)
    b.valu("v_lshlrev_b32", vr(V_XO0), 7, vr(V_LANE))
    b.vmem_load("buffer_load_dword", vr(V_XO1), vr(V_XO0), sr(S_C, 4), sr(S_U0))
    b.opt_end()
    b.label(l1)


def desc(name, vgpr=256, sgpr=100):
    return f"""
.p2align 6
.amdhsa_kernel {name}
  .amdhsa_next_free_vgpr {vgpr}
  .amdhsa_next_free_sgpr {sgpr}
  .amdhsa_accum_offset {(vgpr + 3) // 4 * 4}
  .amdhsa_group_segment_fixed_size 0
  .amdhsa_kernarg_size 80
  .amdhsa_user_sgpr_count 2
  .amdhsa_user_sgpr_kernarg_segment_ptr 1
  .amdhsa_system_sgpr_workgroup_id_x 1
.end_amdhsa_kernel
"""
```

```python
from asmb import *
import os
import gen_k1 as g1
from gen_k1 import QF, KF, VF, HF, HF_RB, OF, FL, FL2, WS_USED, f32bits, C1_OFF, NC_OFF
OPT = set(os.environ.get('K2OPT', '').split(','))

def optval(name, default):
    for o in OPT:
        if o.startswith(name + "="):
            return int(o.split("=")[1])
    return default


RD = optval("rd", 11)
RING = RD * 2048
WO_OFF = 4 * RING
CNT_OFF = C1_OFF + 4
assert WO_OFF + 65536 <= g1.MISC
NDOWN = 22
RA = optval('ra', 8)
HM = 'sc1'

S_WS, S_H, S_O, S_WD, S_WO, S_XO, S_OUT = 32, 28, 24, 52, 40, 44, 48
S_WV, S_RB, S_CB, S_T0, S_T1, S_T2, S_SO, S_M0B, S_SB = 36, 37, 38, 39, 56, 57, 58, 59, 60
S_NF, S_KA, S_KB = 61, 62, 63
S_MASK = 64
S_ST = 8


def stamp(b, i):
    if g1.STAMPS:
        b.raw(f"  {'s_memtime' if 'cyc' in OPT else 's_memrealtime'} s[{S_ST+2*i}:{S_ST+2*i+1}]")
        b.raw("  s_waitcnt lgkmcnt(0)")


def stamp_out(b, idxs, base, wave):
    if not g1.STAMPS:
        return
    b.raw(f"  s_mov_b32 s{S_WS+2}, 0x1000000")
    b.raw("  s_lshl_b32 s3, s2, 3")
    b.raw(f"  s_add_u32 s3, s3, s{S_WV}")
    b.raw("  s_lshl_b32 s3, s3, 2")
    b.raw(f"  s_add_u32 s3, s3, {0xF00000 + base*8192}")
    b.raw("  v_mov_b32 v1, 0")
    b.raw(f"  s_sub_u32 s6, s3, {base*8192}")
    for i in range(9):
        b.raw(f"  v_readlane_b32 s7, v247, {i}")
        b.raw("  s_nop 3")
        b.raw("  v_mov_b32 v2, s7")
        b.raw(f"  buffer_store_dword v2, v1, s[{S_WS}:{S_WS+3}], s6 offen")
        b.raw("  s_add_u32 s6, s6, 8192")
        b.raw("  s_nop 1")
    for i in idxs:
        b.raw(f"  v_mov_b32 v2, s{S_ST+2*i}")
        b.raw(f"  buffer_store_dword v2, v1, s[{S_WS}:{S_WS+3}], s3 offen")
        b.raw("  s_add_u32 s3, s3, 8192")
        b.raw("  s_nop 1")


def srd(b, s, lo, hi, size, add=None):
    if add is None:
        b.salu("s_mov_b32", sr(s), lo)
        b.salu("s_mov_b32", sr(s + 1), hi)
    else:
        b.salu("s_add_u32", sr(s), lo, add)
        b.salu("s_addc_u32", sr(s + 1), hi, 0)
    b.salu("s_mov_b32", sr(s + 2), size)
    b.salu("s_mov_b32", sr(s + 3), 0x20000)


V_NON = 250


def poll(b, name, vtmp, vaddr, first_issued=False):
    lp, lq = b.newlabel(name + "_poll"), b.newlabel(name + "_pok")
    if not first_issued:
        b.vmem_load("buffer_load_dwordx2", vr(vtmp, 2), vr(vaddr), sr(S_WS, 4), "0", mods="sc1", tag="fl")
    b.wait(vm="fl")
    b.label(lp)
    b.valu("v_cmp_ne_u64", "vcc", vr(vtmp, 2), vr(V_NON, 2))
    b.branch("s_cbranch_vccz", lq)
    b.opt_begin()
    b.raw("  s_sleep 1")
    b.vmem_load("buffer_load_dwordx2", vr(vtmp, 2), vr(vaddr), sr(S_WS, 4), "0", mods="sc1")
    b.wait(vm=0)
    b.branch("s_branch", lp)
    b.opt_end()
    b.label(lq)


def arrive(b, name, cnt_off, last, s_flag, vt):
    b.valu("v_mov_b32", vr(vt), cnt_off)
    b.valu("v_mov_b32", vr(vt + 1), 1)
    b.salu("s_mov_b64", "exec", 1)
    b.raw(f"  ds_add_rtn_u32 {vr(vt+2)}, {vr(vt)}, {vr(vt+1)}")
    b.valu("v_mov_b32", vr(vt), 0)
    b.wait(lg=0)
    b.valu("v_readfirstlane_b32", sr(S_T2), vr(vt + 2))
    ld = b.newlabel(name + "_nf")
    b.salu("s_cmp_lg_u32", sr(S_T2), last)
    b.branch("s_cbranch_scc1", ld)
    b.opt_begin()
    b.vmem_store("buffer_store_dwordx2", vr(V_NON, 2), vr(vt), sr(S_WS, 4), sr(s_flag), mods="sc1")
    b.opt_end()
    b.label(ld)
    b.salu("s_mov_b64", "exec", -1)


S_F1 = 96


def sync1(b, name, role):
    b.wait(vm=0, lg=0)
    if g1.STAMPS:
        g1.stamp(b, 8)
    b.barrier()
    if role == "att":
        ld = b.newlabel(name + "_nf")
        b.salu("s_cmp_lg_u32", sr(S_WV), 4)
        b.branch("s_cbranch_scc1", ld)
        b.opt_begin()
        b.salu("s_mov_b64", "exec", 1)
        b.vmem_store("buffer_store_dwordx2", vr(V_NON, 2), "v253", sr(S_WS, 4), sr(S_F1), mods="sc1")
        b.salu("s_mov_b64", "exec", -1)
        b.opt_end()
        b.label(ld)
    else:
        b.nop(optval("pdel", 16))
    if g1.STAMPS:
        for i in range(9):
            b.raw(f"  v_writelane_b32 v247, s{g1.S_ST+2*i}, {i}")
        b.raw(f"  {'s_memtime' if 'cyc' in OPT else 's_memrealtime'} s[98:99]")
        b.raw("  s_waitcnt lgkmcnt(0)")


def ph2(name):
    b = B(); b.nlabel = 4000
    L_ATT = name + "_att"
    b.label(name + "_ph2")
    b.salu("s_lshl_b32", sr(S_F1), sr(g1.S_RB), 4)
    b.salu("s_add_u32", sr(S_F1), sr(S_F1), sr(g1.S_CG))
    b.salu("s_lshl_b32", sr(S_F1), sr(S_F1), 7)
    b.salu("s_add_u32", sr(S_F1), sr(S_F1), FL)
    b.nop(8)
    b.valu("v_mov_b32", "v252", NC_OFF)
    b.valu("v_mov_b32", "v253", 0)
    b.ds_read("ds_read_b64", vr(V_NON, 2), "v252", 0)
    b.salu("s_cmp_ge_u32", sr(S_WV), 4)
    b.branch("s_cbranch_scc1", L_ATT)
    txt = b.text()
    bg = B(); bg.nlabel = 5000
    gemm(bg, name)
    print("k2 gemm instrs", bg.ninstr)
    ba = B(); ba.nlabel = 6000
    ba.label(L_ATT)
    attn(ba, name)
    print("k2 attn instrs", ba.ninstr)
    return txt + bg.text() + ba.text()


def gemm(b, name):
    V_L = 0
    V_AO, V_BO0, V_BO1, V_TR0, V_TR1, V_T0, V_T1, V_T2, V_OO, V_FO, V_WA, V_RA, V_XOFF = 1, 2, 3, 4, 5, 6, 7, 8, 9, 10, 11, 12, 13
    V_BW0, V_BW1, V_TRW = 14, 15, 1
    V_XR = 16
    V_W = 24
    V_ACC = 40
    V_A = 104
    b.salu("s_and_b32", sr(S_T0), "s2", 7)
    b.salu("s_lshl_b32", sr(S_T0), sr(S_T0), 2)
    b.salu("s_bfe_u32", sr(S_T1), "s2", (2 << 16) | 3)
    b.salu("s_add_u32", sr(S_RB), sr(S_T0), sr(S_T1))
    b.salu("s_lshr_b32", sr(S_CB), "s2", 5)
    b.salu("s_mul_i32", sr(S_T0), sr(S_RB), HF_RB)
    b.salu("s_add_u32", sr(S_T0), sr(S_T0), HF)
    srd(b, S_H, "s22", "s23", HF_RB, add=sr(S_T0))
    srd(b, S_WD, "s16", "s17", 1376 * 1024)
    b.salu("s_mul_i32", sr(S_T0), sr(S_WV), NDOWN * 2048)
    b.valu("v_lshlrev_b32", vr(V_T2), 4, vr(V_L))
    b.valu("v_add_u32", vr(V_AO), sr(S_T0), vr(V_T2))
    b.valu("v_bfe_u32", vr(V_T1), vr(V_L), 4, 1)
    b.valu("v_lshlrev_b32", vr(V_T1), 2, vr(V_T1))
    b.valu("v_xor_b32", vr(V_T1), vr(V_T1), vr(V_L))
    b.valu("v_and_b32", vr(V_T1), 7, vr(V_T1))
    b.valu("v_lshlrev_b32", vr(V_T1), 4, vr(V_T1))
    b.valu("v_lshrrev_b32", vr(V_T0), 3, vr(V_L))
    b.valu("v_lshl_add_u32", vr(V_T0), vr(V_T0), 10, vr(V_T1))
    b.salu("s_lshl_b32", sr(S_T0), sr(S_CB), 7)
    b.salu("s_mul_i32", sr(S_T1), sr(S_WV), NDOWN * 16384)
    b.salu("s_add_u32", sr(S_T1), sr(S_T1), sr(S_T0))
    b.valu("v_add_u32", vr(V_BO0), sr(S_T1), vr(V_T0))
    b.valu("v_add_u32", vr(V_BO1), 8192 - 1024, vr(V_BO0))
    b.salu("s_lshl_b32", sr(S_T1), sr(S_WV), 17)
    b.salu("s_add_u32", sr(S_T1), sr(S_T1), sr(S_T0))
    b.valu("v_add_u32", vr(V_BW0), sr(S_T1), vr(V_T0))
    b.valu("v_add_u32", vr(V_BW1), 8192 - 1024, vr(V_BW0))
    b.salu("s_mul_i32", sr(S_M0B), sr(S_WV), RING)

    def pref_b(t):
        sl = t % RD
        b.salu("s_add_u32", "m0", sr(S_M0B), sl * 2048)
        b.salu("s_mov_b32", sr(S_KB), t * 16384)
        b.vmem_dma(vr(V_BO0), sr(S_WD, 4), sr(S_KB), tag=f"b{t}")
        b.vmem_dma(vr(V_BO1), sr(S_WD, 4), sr(S_KB), mods="offset:1024", tag=f"b{t}")

    def pref_a(t):
        sl = t % RA
        b.salu("s_mov_b32", sr(S_KA), t * 2048)
        for i in range(2):
            b.vmem_load("buffer_load_dwordx4", vr(V_A + 8 * sl + 4 * i, 4), vr(V_AO), sr(S_H, 4), sr(S_KA),
                        mods=("offset:1024 " if i else "") + HM, tag=f"a{t}")

    def pref_wo(i):
        b.salu("s_add_u32", "m0", sr(S_SB), i * 2048)
        if i:
            b.salu("s_mov_b32", sr(S_KB), i * 16384)
        sot = sr(S_KB) if i else "0"
        b.vmem_dma(vr(V_BW0), sr(S_WO, 4), sot, tag="wo")
        b.vmem_dma(vr(V_BW1), sr(S_WO, 4), sot, mods="offset:1024", tag="wo")

    b.salu("s_lshl_b32", sr(S_T0), sr(S_RB), 16)
    b.salu("s_add_u32", sr(S_T1), sr(S_T0), OF)
    srd(b, S_O, "s22", "s23", 65536, add=sr(S_T1))
    srd(b, S_WO, "s8", "s9", 512 * 1024)
    srd(b, S_XO, "s4", "s5", 65536, add=sr(S_T0))
    srd(b, S_OUT, "s18", "s19", 65536, add=sr(S_T0))
    b.salu("s_lshl_b32", sr(S_SB), sr(S_WV), 14)
    b.salu("s_add_u32", sr(S_SB), sr(S_SB), WO_OFF)
    b.valu("v_lshrrev_b32", vr(V_T0), 5, vr(V_L))
    b.valu("v_lshlrev_b32", vr(V_T0), 2, vr(V_T0))
    b.valu("v_bfe_u32", vr(V_T1), vr(V_L), 2, 2)
    b.valu("v_add_u32", vr(V_T0), vr(V_T0), vr(V_T1))
    b.valu("v_and_b32", vr(V_RA), 3, vr(V_L))
    b.valu("v_lshlrev_b32", vr(V_RA), 3, vr(V_RA))
    b.valu("v_lshl_add_u32", vr(V_T0), vr(V_T0), 7, vr(V_RA))
    b.valu("v_lshrrev_b32", vr(V_T1), 1, vr(V_T1))
    b.valu("v_bfe_u32", vr(V_RA), vr(V_L), 4, 1)
    b.valu("v_lshl_add_u32", vr(V_T1), vr(V_T1), 1, vr(V_RA))
    b.valu("v_lshl_add_u32", vr(V_T0), vr(V_T1), 5, vr(V_T0))
    b.valu("v_add_u32", vr(V_TR0), sr(S_M0B), vr(V_T0))
    b.valu("v_xor_b32", vr(V_TR1), 64, vr(V_TR0))
    b.salu("s_and_b32", sr(S_T0), sr(S_WV), 1)
    b.salu("s_lshl_b32", sr(S_T0), sr(S_T0), 6)
    b.valu("v_xor_b32", vr(V_T0), sr(S_T0), vr(V_T0))
    b.salu("s_lshl_b32", sr(S_T1), sr(S_T0), 9)
    b.salu("s_add_u32", sr(S_T1), sr(S_T1), WO_OFF)
    b.valu("v_add_u32", vr(V_XR + 7), sr(S_T1), vr(V_T0))
    b.salu("s_lshl_b32", sr(S_T1), sr(S_T0), 3)
    b.salu("s_lshl_b32", sr(S_T0), sr(S_RB), 10)
    b.salu("s_add_u32", sr(S_T0), sr(S_T0), sr(S_T1))
    b.salu("s_add_u32", sr(S_T0), sr(S_T0), FL2)
    b.valu("v_and_b32", vr(V_T0), 3, vr(V_L))
    b.valu("v_lshlrev_b32", vr(V_T0), 7, vr(V_T0))
    b.valu("v_add_u32", vr(V_FO), sr(S_T0), vr(V_T0))
    b.valu("v_add_u32", vr(V_WA), sr(S_M0B), vr(V_T2))
    b.salu("s_lshl_b32", sr(S_T0), sr(S_WV), 12)
    b.valu("v_add_u32", vr(V_RA), sr(S_T0), vr(V_T2))
    b.salu("s_lshr_b32", sr(S_T0), sr(S_WV), 1)
    b.salu("s_and_b32", sr(S_T1), sr(S_WV), 1)
    b.salu("s_lshl_b32", sr(S_T1), sr(S_T1), 5)
    b.salu("s_add_u32", sr(S_T1), sr(S_T1), sr(S_T0))
    b.salu("s_lshl_b32", sr(S_T1), sr(S_T1), 10)
    b.valu("v_add_u32", vr(V_OO), sr(S_T1), vr(V_T2))
    b.salu("s_lshl_b32", sr(S_T0), sr(S_T0), 15)
    b.salu("s_lshl_b32", sr(S_T1), sr(S_CB), 7)
    b.salu("s_add_u32", sr(S_T0), sr(S_T0), sr(S_T1))
    b.salu("s_and_b32", sr(S_T1), sr(S_WV), 1)
    b.salu("s_lshl_b32", sr(S_T1), sr(S_T1), 6)
    b.salu("s_add_u32", sr(S_T0), sr(S_T0), sr(S_T1))
    b.valu("v_and_b32", vr(V_T0), 31, vr(V_L))
    b.valu("v_lshlrev_b32", vr(V_T0), 10, vr(V_T0))
    b.valu("v_lshrrev_b32", vr(V_T1), 5, vr(V_L))
    b.valu("v_lshl_add_u32", vr(V_T0), vr(V_T1), 4, vr(V_T0))
    b.valu("v_add_u32", vr(V_XOFF), sr(S_T0), vr(V_T0))

    b.salu("s_lshr_b32", sr(S_T0), sr(S_RB), 1)
    b.salu("s_lshl_b32", sr(S_T0), sr(S_T0), 11)
    b.salu("s_add_u32", sr(S_T0), sr(S_T0), FL + 6 * 128)
    b.valu("v_min_u32", vr(V_T0), 9, vr(V_L))
    b.valu("v_lshlrev_b32", vr(V_T0), 7, vr(V_T0))
    b.valu("v_add_u32", vr(V_XR + 6), sr(S_T0), vr(V_T0))
    sync1(b, name, 'gemm')
    NB0 = optval("nb0", RD)
    for t in range(NB0):
        pref_b(t)
    nwo = 0
    while nwo < optval("nwo", 0):
        pref_wo(nwo)
        nwo += 1
    poll(b, name, V_W, V_XR + 6)
    stamp(b, 0)
    for t in range(max(RA, RD)):
        if t < RA:
            pref_a(t)
        if NB0 <= t < RD:
            pref_b(t)

    def read_w(t):
        sl = t % RD
        ws = V_W + 8 * (t % 2)
        b.wait(vm=f"b{t}")
        for j in range(2):
            for q in range(2):
                b.ds_read("ds_read_b64_tr_b16", vr(ws + 4 * j + 2 * q, 2), vr(V_TR0 + j), sl * 2048 + q * 1024, tag=f"w{t}")

    read_w(0)
    for t in range(NDOWN):
        ws = V_W + 8 * (t % 2)
        if t + 1 < NDOWN:
            read_w(t + 1)
        b.wait(vm=f"a{t}", lg=f"w{t}")
        for i in range(2):
            for j in range(2):
                acc = V_ACC + 16 * (2 * i + j)
                b.mfma(vr(acc, 16), vr(ws + 4 * j, 4), vr(V_A + 8 * (t % RA) + 4 * i, 4), "0" if t == 0 else vr(acc, 16))
        if t + RD < NDOWN:
            pref_b(t + RD)
        if t + RA < NDOWN:
            pref_a(t + RA)
        elif nwo < 8:
            pref_wo(nwo)
            nwo += 1
    while nwo < 8:
        pref_wo(nwo)
        nwo += 1
    b.valu("v_mov_b32", vr(V_TRW), vr(V_XR + 7))
    b.vmem_load("buffer_load_dwordx4", vr(V_XR, 4), vr(V_XOFF), sr(S_XO, 4), "0", tag="xr")
    b.vmem_load("buffer_load_dwordx4", vr(V_XR + 4, 4), vr(V_XOFF), sr(S_XO, 4), "0", mods="offset:32", tag="xr")
    stamp(b, 1)
    for blk in range(4):
        for g in range(4):
            b.ds_write("ds_write_b128", vr(V_WA), vr(V_ACC + 16 * blk + 4 * g, 4), blk * 4096 + g * 1024)
    b.wait(vm="wo", lg=0)
    b.barrier()
    V_R = V_A
    b.valu("v_add_u32", vr(V_T0), 2 * RING, vr(V_RA))
    for P in range(4):
        for g in range(4):
            b.ds_read("ds_read_b128", vr(V_R + 16 * P + 4 * g, 4), vr(V_RA if P < 2 else V_T0), (P % 2) * RING + g * 1024, tag=f"r{P}")
    b.vmem_load("buffer_load_dwordx2", vr(V_W, 2), vr(V_FO), sr(S_WS, 4), "0", mods="sc1", tag="fl")
    b.wait(vm="xr")
    X = V_ACC + 16
    for e in range(2):
        for i in range(4):
            b.valu("v_lshlrev_b32", vr(X + 8 * e + 2 * i), 16, vr(V_XR + 4 * e + i))
            b.valu("v_and_b32", vr(X + 8 * e + 2 * i + 1), "0xffff0000", vr(V_XR + 4 * e + i))
    for e in range(2):
        for i in range(4):
            b.valu("v_permlane32_swap_b32", vr(X + 8 * e + i), vr(X + 8 * e + 4 + i))
    b.wait(lg=["r0", "r1"])
    for i in range(16):
        b.valu("v_add_f32", vr(V_ACC + i), vr(V_R + i), vr(V_R + 16 + i))
    b.wait(lg=["r2", "r3"])
    for i in range(16):
        b.valu("v_add_f32", vr(V_R + 32 + i), vr(V_R + 32 + i), vr(V_R + 48 + i))
    for i in range(16):
        b.valu("v_add_f32", vr(V_ACC + i), vr(V_ACC + i), vr(X + i))
    for i in range(16):
        b.valu("v_add_f32", vr(V_ACC + i), vr(V_ACC + i), vr(V_R + 32 + i))

    V_TRW1 = V_BO0
    b.valu("v_xor_b32", vr(V_TRW1), 64, vr(V_TRW))
    V_W2 = V_ACC + 32

    def read_wo(s):
        for j in range(2):
            for q in range(2):
                b.ds_read("ds_read_b64_tr_b16", vr(V_W2 + 8 * (s % 4) + 4 * j + 2 * q, 2), vr(V_TRW1 if j else V_TRW), s * 2048 + q * 1024, tag=f"u{s}")
    for s in range(3):
        read_wo(s)
    b.salu("s_lshl_b32", sr(S_T0), sr(S_WV), 12)
    b.valu("v_xor_b32", vr(V_T0), 4096, vr(V_RA))
    poll(b, name, V_W, V_FO, first_issued=True)
    stamp(b, 2)
    for s in range(16):
        if s % 2 == 0 and s:
            b.salu("s_mov_b32", sr(S_SO), (s // 2) * 4096)
        b.vmem_load("buffer_load_dwordx4", vr(V_A + 4 * s, 4), vr(V_OO), sr(S_O, 4), sr(S_SO) if s >= 2 else "0",
                    mods=("offset:2048 " if s % 2 else "") + "sc1", tag=f"o{s}")
    b.barrier()
    for s in range(16):
        if s + 3 < 16:
            read_wo(s + 3)
        b.wait(vm=f"o{s}", lg=f"u{s}")
        b.mfma(vr(V_ACC + 16, 16), vr(V_W2 + 8 * (s % 4) + 4, 4), vr(V_A + 4 * s, 4), vr(V_ACC + 16, 16) if s else "0")
        b.mfma(vr(V_ACC, 16), vr(V_W2 + 8 * (s % 4), 4), vr(V_A + 4 * s, 4), vr(V_ACC, 16))
    for g in range(4):
        b.ds_write("ds_write_b128", vr(V_RA), vr(V_ACC + 16 + 4 * g, 4), g * 1024)
    b.wait(lg=0)
    b.barrier()
    for g in range(4):
        b.ds_read("ds_read_b128", vr(V_R + 4 * g, 4), vr(V_T0), g * 1024, tag=f"e{g}")
    for g in range(4):
        b.wait(lg=f"e{g}")
        for i in range(4):
            b.valu("v_add_f32", vr(V_ACC + 4 * g + i), vr(V_ACC + 4 * g + i), vr(V_R + 4 * g + i))
    stamp(b, 3)
    for i in range(8):
        b.valu("v_cvt_pk_bf16_f32", vr(X + i), vr(V_ACC + 2 * i), vr(V_ACC + 2 * i + 1))
    for e in range(2):
        for i in range(2):
            b.valu("v_permlane32_swap_b32", vr(X + 4 * e + i), vr(X + 4 * e + 2 + i))
    for e in range(2):
        b.vmem_store("buffer_store_dwordx4", vr(X + 4 * e, 4), vr(V_XOFF), sr(S_OUT, 4), "0", mods="offset:32" if e else "")
    if g1.STAMPS:
        b.raw("  s_waitcnt vmcnt(0)")
        stamp(b, 4)
        b.raw("  s_mov_b32 s18, s98")
        stamp_out(b, [5, 0, 1, 2, 3, 4], 9, 0)
    b.raw("  s_endpgm")


def attn(b, name):
    V_L = 0
    V_QO, V_VO, V_T0, V_T1, V_M0, V_M1, V_BIG = 1, 2, 3, 4, 5, 6, 7
    V_NEG = 8
    V_MSK = 10
    V_Q = 18
    V_K = 26
    V_V = 66
    V_B0, V_B1, V_CN, V_O, V_SM = 146, 162, 178, 194, 210
    S_KO, S_VO = 28, 24
    S_EXV = 40
    sync1(b, name, 'att')
    if 'noprio' not in OPT:
        b.raw("  s_setprio 3")
    b.salu("s_and_b32", sr(S_T0), "s2", 7)
    b.salu("s_lshl_b32", sr(S_T0), sr(S_T0), 2)
    b.salu("s_add_u32", sr(S_T0), sr(S_T0), sr(S_WV))
    b.salu("s_sub_u32", sr(S_CB), sr(S_T0), 4)
    b.salu("s_lshr_b32", sr(S_RB), "s2", 3)
    b.salu("s_lshl_b32", sr(S_T0), sr(S_CB), 16)
    b.salu("s_lshl_b32", sr(S_T1), sr(S_RB), 11)
    b.salu("s_add_u32", sr(S_T0), sr(S_T0), sr(S_T1))
    b.valu("v_lshlrev_b32", vr(V_QO), 4, vr(V_L))
    for grp in range(3):
        b.salu("s_add_u32", sr(S_KO + grp), sr(S_T0), KF - 8192 + 4096 * grp)
        b.salu("s_add_u32", sr(S_VO + grp), sr(S_T0), VF - 8192 + 4096 * grp)

    b.salu("s_cmp_lt_u32", sr(S_RB), 4)
    b.salu("s_cselect_b32", sr(S_VO + 3), sr(S_VO + 2), sr(S_VO))

    def load_k(n):
        off = (n % 4) * 1024
        b.vmem_load("buffer_load_dwordx4", vr(V_K + 4 * n, 4), vr(V_QO), sr(S_WS, 4), sr(S_KO + n // 4),
                    mods=(f"offset:{off} " if off else "") + HM, tag=f"k{n}")

    def load_v(ns):
        b.salu("s_mov_b64", "exec", sr(S_EXV, 2))
        for n in ns:
            for mf in range(2):
                off = (n % 4) * 1024 + mf * 512
                b.vmem_load("buffer_load_dwordx4", vr(V_V + 8 * n + 4 * mf, 4), vr(V_VO), sr(S_WS, 4), sr(S_VO + (3 if n < 2 else n // 4)),
                            mods=(f"offset:{off} " if off else "") + HM, tag=f"v{n}")
        b.salu("s_mov_b64", "exec", -1)
    b.valu("v_and_b32", vr(V_T0), 3, vr(V_L))
    b.valu("v_min_u32", vr(V_T0), 2, vr(V_T0))
    b.valu("v_bfe_u32", vr(V_T1), vr(V_L), 2, 2)
    b.valu("v_min_u32", vr(V_T1), 2, vr(V_T1))
    b.salu("s_lshr_b32", sr(S_T1), sr(S_RB), 1)
    b.valu("v_sub_u32", vr(V_T1), sr(S_T1), vr(V_T1))
    b.valu("v_max_i32", vr(V_T1), 0, vr(V_T1))
    b.valu("v_lshlrev_b32", vr(V_T1), 11, vr(V_T1))
    b.valu("v_lshl_add_u32", vr(V_T0), vr(V_T0), 8, vr(V_T1))
    b.salu("s_bfe_u32", sr(S_T1), "s2", (1 << 16) | 2)
    b.salu("s_lshl_b32", sr(S_T1), sr(S_T1), 7)
    b.salu("s_add_u32", sr(S_T1), sr(S_T1), FL)
    b.valu("v_add_u32", vr(V_B0), sr(S_T1), vr(V_T0))
    b.vmem_load("buffer_load_dwordx2", vr(V_B0 + 2, 2), vr(V_B0), sr(S_WS, 4), "0", mods="sc1", tag="fl")
    b.valu("v_and_b32", vr(V_T0), 15, vr(V_L))
    b.valu("v_lshlrev_b32", vr(V_T0), 4, vr(V_T0))
    b.valu("v_lshrrev_b32", vr(V_T1), 5, vr(V_L))
    b.valu("v_lshl_add_u32", vr(V_VO), vr(V_T1), 8, vr(V_T0))
    b.salu("s_mov_b32", sr(S_EXV), "0xffff")
    b.salu("s_mov_b32", sr(S_EXV + 1), "0xffff")
    b.valu("v_and_b32", vr(V_T0), 31, vr(V_L))
    b.valu("v_lshlrev_b32", vr(V_T1), 2, vr(V_T1))
    b.valu("v_sub_u32", vr(V_T0), vr(V_T0), vr(V_T1))
    for r in range(16):
        c = (r & 3) + 8 * (r >> 2)
        b.valu("v_cmp_le_i32", sr(S_MASK + 2 * r, 2), c, vr(V_T0))
    b.valu("v_mov_b32", vr(V_BIG), hex(f32bits(-1e30)))
    b.valu("v_mov_b32", vr(V_T0), "0xffff")
    b.valu("v_mov_b32", vr(V_T1), "0xffff0000")
    for i in range(8):
        b.valu("v_cndmask_b32", vr(V_MSK + i), 0, vr(V_T0), sr(S_MASK + 4 * i, 2))
        b.valu("v_cndmask_b32", vr(V_M0), 0, vr(V_T1), sr(S_MASK + 4 * i + 2, 2))
        b.valu("v_or_b32", vr(V_MSK + i), vr(V_MSK + i), vr(V_M0))
    b.valu("v_mov_b32", vr(V_NEG), "0x3f803f80")
    b.valu("v_mov_b32", vr(V_NEG + 1), "0x3f803f80")
    for i in range(40):
        b.valu("v_mov_b64", vr(V_V + 2 * i, 2), vr(V_NEG, 2))
    b.salu("s_lshl_b32", sr(S_T1), sr(S_RB), 16)
    b.salu("s_lshl_b32", sr(S_SO), sr(S_CB), 11)
    b.salu("s_add_u32", sr(S_SO), sr(S_SO), sr(S_T1))
    b.salu("s_add_u32", sr(S_SO), sr(S_SO), OF)
    poll(b, name, V_B0 + 2, V_B0, first_issued=True)
    b.vmem_load("buffer_load_dwordx4", vr(V_Q, 4), vr(V_QO), sr(S_WS, 4), sr(S_T0), mods=HM, tag="q0")
    for n in [0, 8, 7, 6, 5, 4, 3, 2, 1]:
        load_k(n)
    load_v([8, 0, 7, 6, 5, 4, 3, 2, 1, 9])
    b.vmem_load("buffer_load_dwordx4", vr(V_Q + 4, 4), vr(V_QO), sr(S_WS, 4), sr(S_T0), mods="offset:1024 " + HM, tag="q1")
    load_k(9)
    stamp(b, 0)
    stubs = []

    for task in range(2):
        q = vr(V_Q + 4 * task, 4)
        Kf = lambda j: vr(V_K + 4 * (8 + task - j), 4)
        Vf = lambda j, mf: vr(V_V + 8 * (8 + task - j) + 4 * mf, 4)
        ktag = lambda j: f"k{8 + task - j}"
        vtag = lambda j: f"v{8 + task - j}"
        b.salu("s_lshl_b32", sr(S_T1), sr(S_RB), 1)
        b.salu("s_add_u32", sr(S_T1), sr(S_T1), task)
        b.salu("s_min_u32", sr(S_NF), sr(S_T1), 7)
        L1, L2 = b.newlabel(name + "_p1"), b.newlabel(name + "_p2")
        bufs = [V_CN, V_O, V_B0, V_B1]
        if task == 1:
            b.wait(vm="k9")
        b.wait(vm=[f"q{task}", ktag(8)])
        b.mfma(vr(V_B0, 16), Kf(8), q, "0")
        b.wait(vm=ktag(0))
        b.mfma(vr(V_B1, 16), Kf(0), q, "0")
        for j in (1, 2):
            b.wait(vm=ktag(j))
            b.mfma(vr(bufs[(j - 1) % 4], 16), Kf(j), q, "0")
        lm1, lm2 = b.newlabel(name + "_m1"), b.newlabel(name + "_m2")
        b.nop(8)
        b.salu("s_cmp_lt_u32", sr(S_T1), 8)
        b.branch("s_cbranch_scc1", lm1)
        for r in range(16):
            b.valu("v_cndmask_b32", vr(V_SM + r), vr(V_B0 + r), vr(V_B1 + r), sr(S_MASK + 2 * r, 2))
        b.label(lm2)
        st = [f"{lm1}:", "  s_nop 7"]
        for r in range(16):
            st.append(f"  v_cndmask_b32 {vr(V_SM + r)}, {vr(V_BIG)}, {vr(V_B1 + r)}, {sr(S_MASK + 2 * r, 2)}")
        st.append(f"  s_branch {lm2}")
        stubs.append("\n".join(st))

        def maxtree(buf, first):
            for i in range(8):
                m = V_M0 + (i % 2)
                if first and i < 2:
                    b.valu("v_max_f32", vr(m), vr(buf + 2 * i), vr(buf + 2 * i + 1))
                else:
                    b.valu("v_max3_f32", vr(m), vr(buf + 2 * i), vr(buf + 2 * i + 1), vr(m))
        maxtree(V_SM, True)
        for j in range(1, 8):
            b.salu("s_cmp_lt_u32", sr(S_NF), j)
            b.branch("s_cbranch_scc1", L1)
            if j + 2 <= 7:
                b.wait(vm=ktag(j + 2))
                b.mfma(vr(bufs[(j + 1) % 4], 16), Kf(j + 2), q, "0")
            maxtree(bufs[(j - 1) % 4], False)
        b.label(L1)
        b.valu("v_max_f32", vr(V_M0), vr(V_M0), vr(V_M1))
        b.valu("v_mov_b32", vr(V_M1), vr(V_M0))
        b.valu("v_permlane32_swap_b32", vr(V_M1), vr(V_M0))
        b.valu("v_max_f32", vr(V_M0), vr(V_M0), vr(V_M1))
        b.valu("v_sub_f32", vr(V_NEG), 0, vr(V_M0))
        b.valu("v_sub_f32", vr(V_NEG + 1), 0, vr(V_M0))
        b.nop(2)
        for i in range(8):
            b.valu("v_mov_b64", vr(V_CN + 2 * i, 2), vr(V_NEG, 2))
        bufs2 = [V_B0, V_B1, V_SM]
        b.mfma(vr(V_B0, 16), Kf(1), q, vr(V_CN, 16))
        for r in range(8):
            b.valu("v_pk_add_f32", vr(V_SM + 2 * r, 2), vr(V_SM + 2 * r, 2), vr(V_NEG, 2))
        b.mfma(vr(V_B1, 16), Kf(2), q, vr(V_CN, 16))

        def expcvt(buf, inserts):
            for r in range(16):
                if r in inserts:
                    inserts[r]()
                b.valu("v_exp_f32", vr(buf + r), vr(buf + r))
                if r % 2 == 1 and r >= 3:
                    i = (r - 3) // 2
                    b.valu("v_cvt_pk_bf16_f32", vr(buf + i), vr(buf + 2 * i), vr(buf + 2 * i + 1))
            b.valu("v_cvt_pk_bf16_f32", vr(buf + 7), vr(buf + 14), vr(buf + 15))
        expcvt(V_SM, {})
        for i in range(8):
            b.valu("v_and_b32", vr(V_SM + 8 + i), vr(V_MSK + i), vr(V_SM + i))
        for i in range(8):
            b.valu("v_xor_b32", vr(V_SM + i), vr(V_SM + i), vr(V_SM + 8 + i))
        b.wait(vm=[vtag(0), vtag(8), "k1"])
        b.mfma(vr(V_O, 16), Vf(0, 0), vr(V_SM + 8, 4), "0")
        pend = [(Vf(0, 1), vr(V_SM + 12, 4)), (Vf(8, 0), vr(V_SM, 4)), (Vf(8, 1), vr(V_SM + 4, 4))]
        for j in range(1, 9):
            if j <= 7:
                lx = b.newlabel(name + "_x")
                b.salu("s_cmp_lt_u32", sr(S_NF), j)
                b.branch("s_cbranch_scc1", lx)
                st = [f"{lx}:", "  s_waitcnt vmcnt(0)", "  s_nop 1"]
                for (a_, p_) in pend:
                    st.append(f"  v_mfma_f32_32x32x16_bf16 {vr(V_O, 16)}, {a_}, {p_}, {vr(V_O, 16)}")
                st.append(f"  s_branch {L2}")
                stubs.append("\n".join(st))
                buf = bufs2[(j - 1) % 3]
                ins = {}
                pos = [0, 4, 8, 12] if len(pend) == 3 else [0, 5, 10]
                if j > 1:
                    b.wait(vm=vtag(j - 1))
                for n_, (a_, p_) in enumerate(pend):
                    ins[pos[n_]] = (lambda a_=a_, p_=p_: b.mfma(vr(V_O, 16), a_, p_, vr(V_O, 16)))
                if j + 2 <= 7:
                    ins[pos[len(pend)]] = (lambda j=j: b.mfma(vr(bufs2[(j + 1) % 3], 16), Kf(j + 2), q, vr(V_CN, 16)))
                expcvt(buf, ins)
                pend = [(Vf(j, 0), vr(buf, 4)), (Vf(j, 1), vr(buf + 4, 4))]
            else:
                b.wait(vm=vtag(7))
                for (a_, p_) in pend:
                    b.mfma(vr(V_O, 16), a_, p_, vr(V_O, 16))
        b.label(L2)
        b.valu("v_rcp_f32", vr(V_NEG), vr(V_O + 8))
        b.valu("v_mov_b32", vr(V_NEG + 1), vr(V_NEG))
        for i in range(4):
            b.valu("v_pk_mul_f32", vr(V_O + 2 * i, 2), vr(V_O + 2 * i, 2), vr(V_NEG, 2))
        for i in range(4):
            b.valu("v_cvt_pk_bf16_f32", vr(V_SM + i), vr(V_O + 2 * i), vr(V_O + 2 * i + 1))
        b.vmem_store("buffer_store_dwordx4", vr(V_SM, 4), vr(V_QO), sr(S_WS, 4), sr(S_SO),
                     mods=(f"offset:{1024*task} " if task else "") + "sc1", tag="ost")
        stamp(b, 1 + task)
    b.salu("s_lshl_b32", sr(S_T1), "s2", 7)
    b.salu("s_add_u32", sr(S_T1), sr(S_T1), FL2)
    b.wait(vm=0)
    arrive(b, name, CNT_OFF, 3, S_T1, 252)
    if g1.STAMPS:
        stamp(b, 3)
        b.raw("  s_mov_b32 s18, s98")
        stamp_out(b, [5, 0, 1, 2, 3, 3], 9, 4)
    b.raw("  s_endpgm")
    for s_ in stubs:
        b.raw(s_)
```

```python
import sys
import gen_k1 as g1
if "stamps" in sys.argv:
    g1.STAMPS = True
import gen_k2 as g2
g1.PH2 = g2.ph2
NAME = "parallel_sum__sliding_block__glu_gated_reglu__prompt_kernel"
hdr = open("parallel_sum__sliding_block__glu_gated_reglu__prompt.s.ref").read().split("; Override launch")[0]
s = hdr
s += "; @launch grid=(256,1,1) block=(512,1,1) lds=163840\n"
s += '.amdgcn_target "amdgcn-amd-amdhsa--gfx950"\n.text\n'
s += g1.k1(name="K").replace(".globl K\n.p2align 8\n.type K,@function\nK:", f".globl {NAME}\n.p2align 8\n.type {NAME},@function\n{NAME}:")
s += '.section .rodata,"a"\n' + g1.desc(NAME)
open(sys.argv[1], "w").write(s)
```

```python
from asmb import *
import os, sys, struct
OPT = set(os.environ.get('OPT', '').split(','))
STAMPS = "stamps" in sys.argv


def optval(name, default):
    for o in OPT:
        if o.startswith(name + "="):
            return int(o.split("=")[1])
    return default


def f32bits(x):
    return struct.unpack("<I", struct.pack("<f", x))[0]


QF, KF, VF, HF, OF = 0x000000, 0x200000, 0x400000, 0x600000, 0xC00000
HF_RB = 86 * 2048
F0, F1, F2 = 0xE00000, 0xE08000, 0xE10000
RSG = 0xE18000
CSG = 0xE20000
WS_USED = 0xE60000

PA = 28672
SB = 24704
S1B = 12288 + 32
UB_SLOT = {8: 4, 9: 5, 10: 3, 11: 0, 12: 1, 13: 2, 14: 4, 15: 5}
WINB = 2 * SB
RD = 9
RING = RD * 2048
WO_OFF = 4 * RING
EX_OFF = WO_OFF + 65536
MISC = 159744
assert EX_OFF + 16384 <= MISC
CS_OFF = MISC
ST_OFF = MISC + 1536
CP_OFF = MISC + 2560
NC_OFF = MISC + 2560
SY_OFF = MISC + 4096 - 128
LAND, CONS, WOL, CNT, LAND1 = SY_OFF, SY_OFF + 16, SY_OFF + 32, SY_OFF + 48, SY_OFF + 64
NC_OFF = SY_OFF - 16
CP_OFF = EX_OFF + 16384
assert CP_OFF + 2048 <= MISC and CP_OFF >= 6 * SB
QSCALE = 0.25 * 1.4426950408889634
NDOWN = 22

S_X, S_WA, S_WS, S_WB, S_DBG, S_C = 24, 28, 32, 52, 56, 44
S_WV, S_R, S_P, S_RB, S_CC = 36, 37, 38, 39, 40
S_SOFF, S_T0, S_T1 = 41, 42, 43
S_T2, S_T3, S_U0, S_U1 = 48, 49, 50, 51
S_R4K, S_R3K, S_R6K, S_FS = 60, 61, 62, 63
S_MASK = 64
S_CSO, S_CARE, S_E = 96, 64, 97
S_ST = 98

V_L = 0
V_NON = 252
V_Z = 254
V_STP = 255


def stamp(b, i):
    if STAMPS:
        b.raw(f"  {'s_memtime' if 'cyc' in OPT else 's_memrealtime'} s[{S_ST}:{S_ST+1}]")
        b.raw("  s_waitcnt lgkmcnt(0)")
        b.raw(f"  v_writelane_b32 v{V_STP}, s{S_ST}, {i}")


def stamp_out(b, n=15):
    if not STAMPS:
        return
    b.raw("  s_mov_b64 exec, -1")
    b.raw(f"  s_mov_b32 s{S_WS+2}, 0x1000000")
    b.raw("  s_lshl_b32 s3, s2, 3")
    b.raw(f"  s_add_u32 s3, s3, s{S_WV}")
    b.raw("  s_lshl_b32 s3, s3, 2")
    b.raw("  s_add_u32 s3, s3, 0xF00000")
    b.raw("  v_lshlrev_b32 v1, 13, v0")
    b.raw(f"  s_mov_b64 exec, {(1 << n) - 1}")
    b.raw(f"  buffer_store_dword v{V_STP}, v1, s[{S_WS}:{S_WS+3}], s3 offen")


def srd(b, s, lo, hi, size, add=None):
    if add is None:
        b.salu("s_mov_b32", sr(s), lo)
        b.salu("s_mov_b32", sr(s + 1), hi)
    else:
        b.salu("s_add_u32", sr(s), lo, add)
        b.salu("s_addc_u32", sr(s + 1), hi, 0)
    b.salu("s_mov_b32", sr(s + 2), size)
    b.salu("s_mov_b32", sr(s + 3), 0x20000)


def guard(b, exit_label):
    b.salu("s_add_u32", "s3", "s3", 1)
    b.salu("s_cmp_gt_u32", "s3", 0x40000)
    b.branch("s_cbranch_scc1", exit_label)


def poll(b, vtmp, vaddr, first_issued=False, slp=None):
    lp, lq = b.newlabel("poll"), b.newlabel("pok")
    if not first_issued:
        b.vmem_load("buffer_load_dwordx2", vr(vtmp, 2), vr(vaddr), sr(S_WS, 4), "0", mods="sc1", tag="fl")
    b.wait(vm="fl")
    b.label(lp)
    b.valu("v_cmp_ne_u64", "vcc", vr(vtmp, 2), vr(V_NON, 2))
    b.branch("s_cbranch_vccz", lq)
    b.opt_begin()
    guard(b, lq)
    b.raw(f"  s_sleep {slp if slp is not None else optval('slp', 8)}")
    b.vmem_load("buffer_load_dwordx2", vr(vtmp, 2), vr(vaddr), sr(S_WS, 4), "0", mods="sc1")
    b.wait(vm=0)
    b.branch("s_branch", lp)
    b.opt_end()
    b.label(lq)


def arrive(b, cnt_off, s_flag, vt):
    b.valu("v_mov_b32", vr(vt), cnt_off)
    b.valu("v_mov_b32", vr(vt + 1), 1)
    b.salu("s_mov_b64", "exec", 1)
    b.raw(f"  ds_add_rtn_u32 {vr(vt+2)}, {vr(vt)}, {vr(vt+1)}")
    b.wait(lg=0)
    b.valu("v_readfirstlane_b32", sr(S_T2), vr(vt + 2))
    ld = b.newlabel("nf")
    b.salu("s_cmp_lg_u32", sr(S_T2), 3)
    b.branch("s_cbranch_scc1", ld)
    b.opt_begin()
    b.vmem_store("buffer_store_dwordx2", vr(V_NON, 2), vr(V_Z), sr(S_WS, 4), sr(s_flag), mods="sc1")
    b.opt_end()
    b.label(ld)
    b.salu("s_mov_b64", "exec", -1)


def lds_signal(b, word, val, vt):
    b.salu("s_lshl_b32", sr(S_T2), sr(S_R), 2)
    b.salu("s_add_u32", sr(S_T2), sr(S_T2), word)
    b.valu("v_mov_b32", vr(vt), sr(S_T2))
    b.valu("v_mov_b32", vr(vt + 1), val)
    b.ds_write("ds_write_b32", vr(vt), vr(vt + 1), 0)


def lds_check_issue(b, word, va, vt, tag):
    b.ds_read("ds_read_b128", vr(vt, 4), vr(va), word - SY_OFF, tag=tag)


def lds_check(b, word, val, va, vt, tag):
    lp, lq = b.newlabel("lsp"), b.newlabel("lok")
    b.wait(lg=tag)
    b.label(lp)
    b.valu("v_min3_u32", vr(vt), vr(vt), vr(vt + 1), vr(vt + 2))
    b.valu("v_min_u32", vr(vt), vr(vt), vr(vt + 3))
    b.valu("v_cmp_gt_u32", "vcc", val, vr(vt))
    b.branch("s_cbranch_vccz", lq)
    b.opt_begin()
    guard(b, lq)
    b.ds_read("ds_read_b128", vr(vt, 4), vr(va), word - SY_OFF)
    b.wait(lg=0)
    b.branch("s_branch", lp)
    b.opt_end()
    b.label(lq)


def w2_touch_mall(b, sc, va, vd):
    l1 = b.newlabel("w2")
    b.salu("s_cmp_lg_u32", sr(S_R), 1)
    b.branch("s_cbranch_scc1", l1)
    b.opt_begin()
    b.salu("s_sub_u32", sr(S_U1), "s2", 172)
    b.salu("s_cmp_lt_u32", "s2", 172)
    b.salu("s_cselect_b32", sr(sc), "s16", "s8")
    b.salu("s_cselect_b32", sr(sc + 1), "s17", "s9")
    b.salu("s_cselect_b32", sr(S_U0), "s2", sr(S_U1))
    b.salu("s_mov_b32", sr(sc + 2), 512 * 1024)
    b.salu("s_cselect_b32", sr(sc + 2), 1376 * 1024, sr(sc + 2))
    b.salu("s_mov_b32", sr(sc + 3), 0x20000)
    b.salu("s_lshl_b32", sr(S_U0), sr(S_U0), 13)
    b.valu("v_lshlrev_b32", vr(va), 7, vr(V_L))
    b.vmem_load("buffer_load_dword", vr(vd), vr(va), sr(sc, 4), sr(S_U0))
    b.opt_end()
    b.label(l1)


def w2_touch_l2(b, sc, va, vd):
    b.salu("s_lshr_b32", sr(S_U0), "s2", 3)
    b.salu("s_sub_u32", sr(S_U1), sr(S_U0), 22)
    b.salu("s_cmp_lt_u32", sr(S_U0), 22)
    b.salu("s_cselect_b32", sr(sc), "s16", "s8")
    b.salu("s_cselect_b32", sr(sc + 1), "s17", "s9")
    b.salu("s_cselect_b32", sr(S_U0), sr(S_U0), sr(S_U1))
    b.salu("s_mov_b32", sr(sc + 2), 512 * 1024)
    b.salu("s_cselect_b32", sr(sc + 2), 1376 * 1024, sr(sc + 2))
    b.salu("s_mov_b32", sr(sc + 3), 0x20000)
    b.salu("s_lshl_b32", sr(S_U0), sr(S_U0), 16)
    b.salu("s_lshl_b32", sr(S_U1), sr(S_R), 14)
    b.salu("s_add_u32", sr(S_U0), sr(S_U0), sr(S_U1))
    b.valu("v_lshlrev_b32", vr(va), 7, vr(V_L))
    b.vmem_load("buffer_load_dword", vr(vd), vr(va), sr(sc, 4), sr(S_U0), tag="pf")
    b.salu("s_add_u32", sr(S_U0), sr(S_U0), 8192)
    b.vmem_load("buffer_load_dword", vr(vd + 1), vr(va), sr(sc, 4), sr(S_U0), tag="pf")


def bf16r(b, reg):
    b.valu("v_cvt_pk_bf16_f32", vr(reg), vr(reg), vr(reg))
    b.valu("v_lshlrev_b32", vr(reg), 16, vr(reg))


def rows12_offsets(b, dst, n, stride, s_base, t0, t1):
    for i in range(n):
        b.valu("v_add_u32", vr(t0), 64 * i, vr(V_L))
        b.valu("v_mul_u32_u24", vr(t1), 5462, vr(t0))
        b.valu("v_lshrrev_b32", vr(t1), 16, vr(t1))
        b.valu("v_mul_u32_u24", vr(t1), stride - 192, vr(t1))
        b.valu("v_lshl_add_u32", vr(t1), vr(t0), 4, vr(t1))
        b.salu("s_sub_u32", sr(S_T2), sr(s_base), 1024 * (i % 4))
        b.valu("v_add_u32", vr(dst + i), sr(S_T2), vr(t1))


def ub_setup(b, dst, t0, t1):
    b.salu("s_cmp_lt_u32", sr(S_R), 2)
    b.salu("s_cselect_b32", sr(S_WB), "s12", "s14")
    b.salu("s_cselect_b32", sr(S_WB + 1), "s13", "s15")
    b.salu("s_mov_b32", sr(S_WB + 2), 512 * 2752)
    b.salu("s_mov_b32", sr(S_WB + 3), 0x20000)
    b.salu("s_and_b32", sr(S_U0), sr(S_R), 1)
    b.salu("s_mul_i32", sr(S_R6K), sr(S_U0), 6144)
    b.salu("s_lshr_b32", sr(S_U1), sr(S_R), 1)
    b.salu("s_mul_i32", sr(S_U1), sr(S_U1), S1B)
    b.salu("s_add_u32", sr(S_R6K), sr(S_R6K), sr(S_U1))
    b.salu("s_mul_i32", sr(S_U0), sr(S_U0), 32 * 2752)
    b.salu("s_lshl_b32", sr(S_U1), sr(S_FS), 5)
    b.salu("s_add_u32", sr(S_U0), sr(S_U0), sr(S_U1))
    rows12_offsets(b, dst, 6, 2752, S_U0, t0, t1)


def ub_step(b, vq, t, n):
    if n % 4 == 0:
        b.salu("s_add_u32", "m0", sr(S_R6K), UB_SLOT[t] * SB + 1024 * n)
    if n == 0:
        b.salu("s_mov_b32", sr(S_SOFF), (t - 8) * 64 * 2752)
    b.vmem_dma(vr(vq + n), sr(S_WB, 4), sr(S_SOFF), mods=f"offset:{1024*(n%4)}" if n % 4 else "", tag=f"U{t}")


def xread_setup(b, vxb, t0, t1, t2):
    b.valu("v_and_b32", vr(t0), 31, vr(V_L))
    b.salu("s_lshl_b32", sr(S_T0), sr(S_R), 5)
    b.valu("v_add_u32", vr(t0), sr(S_T0), vr(t0))
    b.valu("v_lshrrev_b32", vr(t1), 1, vr(t0))
    b.valu("v_lshrrev_b32", vr(t2), 5, vr(V_L))
    b.valu("v_xor_b32", vr(t1), vr(t1), vr(t2))
    b.valu("v_and_b32", vr(t1), 7, vr(t1))
    b.valu("v_lshlrev_b32", vr(t1), 4, vr(t1))
    b.valu("v_lshl_add_u32", vr(vxb), vr(t0), 7, vr(t1))
    for s in range(1, 4):
        b.valu("v_xor_b32", vr(vxb + s), 32 * s, vr(vxb))


def tr192(b, dst, chmul, t0, t1):
    b.valu("v_lshrrev_b32", vr(t0), 5, vr(V_L))
    b.valu("v_lshlrev_b32", vr(t0), 3, vr(t0))
    b.valu("v_bfe_u32", vr(t1), vr(V_L), 2, 2)
    b.valu("v_add_u32", vr(t0), vr(t0), vr(t1))
    b.valu("v_mul_u32_u24", vr(t0), 192, vr(t0))
    b.valu("v_and_b32", vr(t1), 3, vr(V_L))
    b.valu("v_lshl_add_u32", vr(t0), vr(t1), 3, vr(t0))
    b.valu("v_bfe_u32", vr(t1), vr(V_L), 4, 1)
    b.valu("v_mul_u32_u24", vr(t1), chmul, vr(t1))
    b.valu("v_add_u32", vr(dst), vr(t0), vr(t1))


def kernel(name):
    b = B()
    b.raw(f".globl {name}\n.p2align 8\n.type {name},@function\n{name}:")
    b.salu("s_cmp_ge_u32", "s2", 256)
    b.branch("s_cbranch_scc1", "L_END")
    stamp(b, 0)
    b.raw("  s_load_dwordx16 s[4:19], s[0:1], 0")
    b.raw("  s_load_dwordx4 s[20:23], s[0:1], 64")
    b.raw(f"  s_getpc_b64 s[{S_U0}:{S_U0+1}]")
    b.label("L_PC")
    b.valu("v_lshlrev_b32", "v2", 7, "v0")
    b.valu("v_min_u32", "v2", "L_END-L_PC", "v2")
    b.raw(f"  global_load_dword v251, v2, s[{S_U0}:{S_U0+1}]")
    b.valu("v_lshrrev_b32", "v1", 6, "v0")
    b.valu("v_and_b32", "v0", 63, "v0")
    b.valu("v_readfirstlane_b32", sr(S_WV), "v1")
    b.salu("s_and_b32", sr(S_T0), "s2", 1)
    b.salu("s_lshl_b32", sr(S_T0), sr(S_T0), 3)
    b.salu("s_bfe_u32", sr(S_T1), "s2", (3 << 16) | 3)
    b.salu("s_add_u32", sr(S_RB), sr(S_T0), sr(S_T1))
    b.salu("s_bfe_u32", sr(S_T0), "s2", (2 << 16) | 1)
    b.salu("s_lshl_b32", sr(S_T0), sr(S_T0), 2)
    b.salu("s_lshr_b32", sr(S_T1), "s2", 6)
    b.salu("s_add_u32", sr(S_CC), sr(S_T0), sr(S_T1))
    b.salu("s_and_b32", sr(S_R), sr(S_WV), 3)
    b.salu("s_lshr_b32", sr(S_P), sr(S_WV), 2)
    b.salu("s_mul_i32", sr(S_FS), sr(S_CC), 6)
    b.salu("s_min_u32", sr(S_FS), sr(S_FS), 80)
    b.valu("v_mov_b32", vr(V_Z), 0)
    b.salu("s_mov_b32", "s3", 0)
    b.salu("s_cmp_eq_u32", sr(S_P), 0)
    b.branch("s_cbranch_scc1", "L_P0")
    t1 = p1()
    t0 = p0()
    return b.text() + t1 + t0 + "L_END:\n  s_endpgm\n"


def common_srds(b):
    b.wait(lg=0)
    b.salu("s_lshl_b32", sr(S_T0), sr(S_RB), 17)
    srd(b, S_X, "s4", "s5", 0x20000, add=sr(S_T0))
    srd(b, S_WA, "s6", "s7", 512 * 3072)
    srd(b, S_WS, "s22", "s23", WS_USED)
    srd(b, S_DBG, "s20", "s21", 256)


def p1():
    b = B(); b.nlabel = 1000
    V_XO0, V_XO1, V_T0, V_T1, V_T2 = 1, 2, 3, 4, 5
    V_TRB = 1
    V_SY, V_CK = 4, 8
    V_RING = 8
    V_ACC = 32
    V_X = 128
    V_WA = 32
    V_UB, V_XB = 36, 44
    S_PS = 64

    def pstamp(i):
        if STAMPS:
            b.raw(f"  {'s_memtime' if 'cyc' in OPT else 's_memrealtime'} s[{S_ST}:{S_ST+1}]")
            b.raw("  s_waitcnt lgkmcnt(0)")
            b.raw(f"  s_mov_b32 s{S_PS+i}, s{S_ST}")
    if STAMPS:
        b.raw(f"  s_mov_b32 s{S_PS}, s{S_ST}")
    b.salu("s_lshl_b32", sr(S_R4K), sr(S_R), 12)
    b.valu("v_lshrrev_b32", vr(V_T0), 3, vr(V_L))
    b.salu("s_lshl_b32", sr(S_T0), sr(S_R), 5)
    b.valu("v_add_u32", vr(V_T1), sr(S_T0), vr(V_T0))
    b.valu("v_lshrrev_b32", vr(V_T2), 1, vr(V_T1))
    b.valu("v_xor_b32", vr(V_T2), vr(V_T2), vr(V_L))
    b.valu("v_and_b32", vr(V_T2), 7, vr(V_T2))
    b.valu("v_lshlrev_b32", vr(V_T2), 4, vr(V_T2))
    b.valu("v_lshl_add_u32", vr(V_XO0), vr(V_T1), 10, vr(V_T2))
    b.valu("v_xor_b32", vr(V_XO1), 64, vr(V_XO0))
    b.valu("v_add_u32", vr(V_XO1), 8192 - 1024, vr(V_XO1))
    b.salu("s_mul_i32", sr(S_R3K), sr(S_R), 3072)
    b.salu("s_mul_i32", sr(S_U0), sr(S_R), 16 * 3072)
    b.salu("s_mul_i32", sr(S_U1), sr(S_CC), 192)
    b.salu("s_add_u32", sr(S_U0), sr(S_U0), sr(S_U1))
    rows12_offsets(b, V_WA, 3, 3072, S_U0, V_T0, V_T1)
    common_srds(b)

    def a_steps(t):
        st = []
        base = (t % 3) * PA

        def xs(n):
            if n == 0:
                b.salu("s_add_u32", "m0", sr(S_R4K), base)
                b.salu("s_mov_b32", sr(S_SOFF), t * 128)
            if n == 2:
                b.salu("s_add_u32", sr(S_SOFF), sr(S_SOFF), 16384 - 2048)
            b.vmem_dma(vr(V_XO1 if n % 2 else V_XO0), sr(S_X, 4), sr(S_SOFF), mods=f"offset:{1024*n}" if n else "", tag=f"A{t}")

        def ws_(n):
            if n == 0:
                b.salu("s_add_u32", "m0", sr(S_R3K), base + 16384)
                b.salu("s_mov_b32", sr(S_SOFF), t * 64 * 3072)
            b.vmem_dma(vr(V_WA + n), sr(S_WA, 4), sr(S_SOFF), mods=f"offset:{1024*n}" if n else "", tag=f"A{t}")
        return [lambda n=n: xs(n) for n in range(4)] + [lambda n=n: ws_(n) for n in range(3)]
    for f in a_steps(0):
        f()
    b.salu("s_or_b32", sr(S_T0), "s2", sr(S_R))
    b.salu("s_cmp_lg_u32", sr(S_T0), 0)
    b.branch("s_cbranch_scc1", "L_NL")
    b.opt_begin()
    b.raw(f"  s_memrealtime s[{S_T2}:{S_T2+1}]")
    b.raw("  s_waitcnt lgkmcnt(0)")
    b.salu("s_or_b32", sr(S_T2 + 1), sr(S_T2 + 1), "0x80000000")
    b.valu("v_mov_b32", vr(V_NON), sr(S_T2))
    b.valu("v_mov_b32", vr(V_NON + 1), sr(S_T2 + 1))
    b.salu("s_mov_b64", "exec", 1)
    b.vmem_store("buffer_store_dwordx2", vr(V_NON, 2), vr(V_Z), sr(S_DBG, 4), "0", mods="sc1")
    b.salu("s_mov_b64", "exec", -1)
    b.opt_end()
    b.label("L_NL")
    for f in a_steps(1):
        f()
    xread_setup(b, V_XB, V_T0, V_T1, V_T2)
    ub_setup(b, V_UB, V_T0, V_T1)
    b.wait(vm="A0", lg=0)
    b.barrier()
    pstamp(1)
    UBP1 = {6: [8, 9], 7: [10, 11]} if 'ubl' not in OPT else {6: [8], 7: [9]}
    for t in range(8):
        steps = a_steps(t + 2) if t + 2 < 8 else []
        for u in UBP1.get(t, []):
            steps += [lambda n=n, u=u: ub_step(b, V_UB, u, n) for n in range(6)]
        for f in steps[:2]:
            f()
        for s in range(4):
            ks = 4 * t + s
            b.ds_read("ds_read_b128", vr(V_X + 4 * ks, 4), vr(V_XB + s), (t % 3) * PA, tag=f"x{ks}")
        for f in steps[2:]:
            f()
        if t == 7:
            tr192(b, V_TRB, S1B, V_T1 + 2, V_T1 + 3)
            b.valu("v_add_u32", vr(V_TRB + 1), WINB, vr(V_TRB))
            b.valu("v_add_u32", vr(V_TRB + 2), 2 * WINB, vr(V_TRB))
            b.valu("v_mov_b32", vr(V_SY), SY_OFF)
            b.salu("s_lshl_b32", sr(S_T0), sr(S_R), 2)
            b.salu("s_add_u32", sr(S_T0), sr(S_T0), CONS)
            b.valu("v_mov_b32", "v5", sr(S_T0))
        b.wait(vm=f"A{t+1}" if t < 7 else "U8", lg=0)
        b.barrier()
        if t + 1 in (2, 4, 8):
            pstamp({2: 2, 4: 3, 8: 4}[t + 1])
    LA = 4
    NF = 6 * 32

    def read_w(f):
        ks, blk = divmod(f, 6)
        t, s = 8 + ks // 4, ks % 4
        r0 = V_RING + 4 * (f % 5)
        for q in range(2):
            off = UB_SLOT[t] * SB + s * 3072 + q * 768 + blk * 32
            b.ds_read("ds_read_b64_tr_b16", vr(r0 + 2 * q, 2), vr(V_TRB + off // WINB), off % WINB, tag=f"w{f}")
    V_CKT = V_RING + 20
    b.raw(f"  s_setprio {optval('pr1', 2)}")
    for f in range(LA):
        read_w(f)
    for f in range(NF):
        nf = f + LA
        tn = 8 + nf // 24
        if nf % 24 == 8 and tn + 1 <= 11:
            b.wait(vm=f"U{tn+1}")
            b.valu("v_mov_b32", "v6", tn + 1)
            b.ds_write("ds_write_b32", "v5", "v6", LAND1 - CONS)
        if nf % 24 == 18 and tn + 1 <= 15:
            lds_check_issue(b, LAND1 if tn + 1 <= 11 else LAND, V_SY, V_CKT, f"L{tn+1}")
        if nf % 24 == 0 and 9 <= tn <= 15:
            lds_check(b, LAND1 if tn <= 11 else LAND, tn, V_SY, V_CKT, f"L{tn}")
        if nf < NF:
            read_w(nf)
        ks, blk = divmod(f, 6)
        b.wait(lg=f"w{f}")
        acc = V_ACC + 16 * blk
        b.mfma(vr(acc, 16), vr(V_RING + 4 * (f % 5), 4), vr(V_X + 4 * ks, 4), "0" if ks == 0 else vr(acc, 16))
        if f % 24 == 23 and (8 + f // 24) in (8, 9, 15):
            b.valu("v_mov_b32", "v6", 8 + f // 24)
            b.ds_write("ds_write_b32", "v5", "v6", 0)
        if f == 95:
            pstamp(5)
    pstamp(6)
    V_NM, V_RS, V_CSRD, V_STO, V_A1 = 128, 129, 130, 131, 132
    TS = [136, 144]
    b.valu("v_mov_b32", vr(V_Z), 0)
    b.valu("v_mov_b32", vr(V_A1), NC_OFF)
    b.ds_read("ds_read_b64", vr(V_NON, 2), vr(V_A1), 0)
    b.valu("v_and_b32", vr(V_A1), 31, vr(V_L))
    b.salu("s_lshl_b32", sr(S_T0), sr(S_R), 8)
    b.salu("s_add_u32", sr(S_T0), sr(S_T0), ST_OFF)
    b.valu("v_lshl_add_u32", vr(V_A1), vr(V_A1), 3, sr(S_T0))
    b.ds_read("ds_read_b64", vr(V_NM, 2), vr(V_A1), 0, tag="str")
    b.valu("v_lshrrev_b32", vr(V_CSRD), 5, vr(V_L))
    b.valu("v_lshlrev_b32", vr(V_CSRD), 4, vr(V_CSRD))
    b.valu("v_add_u32", vr(V_CSRD), CS_OFF + 384, vr(V_CSRD))
    b.valu("v_lshlrev_b32", vr(V_STO), 4, vr(V_L))

    def csrd(n):
        blk, g = divmod(n, 2)
        T = TS[n % 2]
        b.ds_read("ds_read_b128", vr(T, 4), vr(V_CSRD), blk * 128 + g * 32, tag=f"c{n}")
        b.ds_read("ds_read_b128", vr(T + 4, 4), vr(V_CSRD), blk * 128 + 64 + g * 32, tag=f"c{n}")
    csrd(0)
    b.salu("s_lshl_b32", sr(S_T0), sr(S_RB), 1)
    b.salu("s_lshr_b32", sr(S_T1), sr(S_R), 1)
    b.salu("s_add_u32", sr(S_T0), sr(S_T0), sr(S_T1))
    b.salu("s_mul_i32", sr(S_T3), sr(S_T0), HF_RB)
    b.salu("s_and_b32", sr(S_T1), sr(S_R), 1)
    b.salu("s_lshl_b32", sr(S_T1), sr(S_T1), 10)
    b.salu("s_add_u32", sr(S_T3), sr(S_T3), sr(S_T1))
    b.salu("s_lshl_b32", sr(S_T1), sr(S_FS), 11)
    b.salu("s_add_u32", sr(S_T3), sr(S_T3), sr(S_T1))
    b.salu("s_add_u32", sr(S_T3), sr(S_T3), HF)
    b.wait(lg="str")
    b.valu("v_mul_f32", vr(V_RS), vr(V_RS), vr(V_RS))
    for n in range(12):
        blk, g = divmod(n, 2)
        acc = V_ACC + 16 * blk
        T = TS[n % 2]
        if n + 1 < 12:
            csrd(n + 1)
        b.wait(lg=f"c{n}")
        for i in range(4):
            b.valu("v_fmac_f32", vr(acc + 4 * g + i), vr(V_NM), vr(T + i))
        for i in range(4):
            b.valu("v_fmac_f32", vr(acc + 8 + 4 * g + i), vr(V_NM), vr(T + 4 + i))
        for i in range(4):
            b.valu("v_max_f32", vr(acc + 4 * g + i), 0, vr(acc + 4 * g + i))
        for i in range(4):
            b.valu("v_mul_f32", vr(acc + 8 + 4 * g + i), vr(V_RS), vr(acc + 8 + 4 * g + i))
        for i in range(4):
            b.valu("v_mul_f32", vr(acc + 4 * g + i), vr(acc + 4 * g + i), vr(acc + 8 + 4 * g + i))
        if g == 1:
            for i in range(4):
                b.valu("v_cvt_pk_bf16_f32", vr(acc + i), vr(acc + 2 * i), vr(acc + 2 * i + 1))
            b.salu("s_add_u32", sr(S_T0), sr(S_T3), (blk // 2) * 4096)
            b.vmem_store("buffer_store_dwordx4", vr(acc, 4), vr(V_STO), sr(S_WS, 4), sr(S_T0),
                         mods=("offset:2048 " if blk % 2 else "") + "sc1", tag="st")
    b.raw(f"  s_setprio {optval('pr1b', 0)}")
    pstamp(7)
    if STAMPS:
        for i in range(8):
            b.raw(f"  v_writelane_b32 v{V_STP}, s{S_PS+i}, {i}")
    S_H, S_WD, S_WO = 64, 68, 72
    S_RB2, S_CB, S_M0B, S_KA, S_KB, S_F = 76, 77, 78, 79, 80, 81
    V_AO, V_BO0, V_BO1, V_TR0, V_TR1, V_BW0, V_BW1, V_FO, V_WR, V_U0, V_U1, V_U2 = 132, 133, 134, 135, 136, 137, 138, 139, 140, 141, 142, 143
    V_W = 144
    V_A = 160
    V_C = 224
    RA = 8
    b.salu("s_lshl_b32", sr(S_F), sr(S_RB), 4)
    b.salu("s_add_u32", sr(S_F), sr(S_F), sr(S_CC))
    b.salu("s_lshl_b32", sr(S_F), sr(S_F), 7)
    b.salu("s_add_u32", sr(S_F), sr(S_F), F1)
    b.salu("s_and_b32", sr(S_T0), "s2", 7)
    b.salu("s_lshl_b32", sr(S_T0), sr(S_T0), 2)
    b.salu("s_bfe_u32", sr(S_T1), "s2", (2 << 16) | 3)
    b.salu("s_add_u32", sr(S_RB2), sr(S_T0), sr(S_T1))
    b.salu("s_lshr_b32", sr(S_CB), "s2", 5)
    b.salu("s_mul_i32", sr(S_T0), sr(S_RB2), HF_RB)
    b.salu("s_add_u32", sr(S_T0), sr(S_T0), HF)
    srd(b, S_H, "s22", "s23", HF_RB, add=sr(S_T0))
    srd(b, S_WD, "s16", "s17", 1376 * 1024)
    srd(b, S_WO, "s8", "s9", 512 * 1024)
    b.salu("s_mul_i32", sr(S_T0), sr(S_R), NDOWN * 2048)
    b.valu("v_add_u32", vr(V_AO), sr(S_T0), vr(V_STO))
    b.valu("v_bfe_u32", vr(V_U1), vr(V_L), 4, 1)
    b.valu("v_lshlrev_b32", vr(V_U1), 2, vr(V_U1))
    b.valu("v_xor_b32", vr(V_U1), vr(V_U1), vr(V_L))
    b.valu("v_and_b32", vr(V_U1), 7, vr(V_U1))
    b.valu("v_lshlrev_b32", vr(V_U1), 4, vr(V_U1))
    b.valu("v_lshrrev_b32", vr(V_U0), 3, vr(V_L))
    b.valu("v_lshl_add_u32", vr(V_U0), vr(V_U0), 10, vr(V_U1))
    b.salu("s_lshl_b32", sr(S_T0), sr(S_CB), 7)
    b.salu("s_mul_i32", sr(S_T1), sr(S_R), NDOWN * 16384)
    b.salu("s_add_u32", sr(S_T1), sr(S_T1), sr(S_T0))
    b.valu("v_add_u32", vr(V_BO0), sr(S_T1), vr(V_U0))
    b.valu("v_add_u32", vr(V_BO1), 8192 - 1024, vr(V_BO0))
    b.salu("s_lshl_b32", sr(S_T1), sr(S_R), 17)
    b.salu("s_add_u32", sr(S_T1), sr(S_T1), sr(S_T0))
    b.valu("v_add_u32", vr(V_BW0), sr(S_T1), vr(V_U0))
    b.valu("v_add_u32", vr(V_BW1), 8192 - 1024, vr(V_BW0))
    b.salu("s_mul_i32", sr(S_M0B), sr(S_R), RING)
    b.valu("v_lshrrev_b32", vr(V_U0), 5, vr(V_L))
    b.valu("v_lshlrev_b32", vr(V_U0), 2, vr(V_U0))
    b.valu("v_bfe_u32", vr(V_U1), vr(V_L), 2, 2)
    b.valu("v_add_u32", vr(V_U0), vr(V_U0), vr(V_U1))
    b.valu("v_and_b32", vr(V_U2), 3, vr(V_L))
    b.valu("v_lshlrev_b32", vr(V_U2), 3, vr(V_U2))
    b.valu("v_lshl_add_u32", vr(V_U0), vr(V_U0), 7, vr(V_U2))
    b.valu("v_lshrrev_b32", vr(V_U1), 1, vr(V_U1))
    b.valu("v_bfe_u32", vr(V_U2), vr(V_L), 4, 1)
    b.valu("v_lshl_add_u32", vr(V_U1), vr(V_U1), 1, vr(V_U2))
    b.valu("v_lshl_add_u32", vr(V_U0), vr(V_U1), 5, vr(V_U0))
    b.valu("v_add_u32", vr(V_TR0), sr(S_M0B), vr(V_U0))
    b.valu("v_xor_b32", vr(V_TR1), 64, vr(V_TR0))
    b.valu("v_add_u32", vr(V_WR), sr(S_M0B), vr(V_STO))
    b.salu("s_lshr_b32", sr(S_T0), sr(S_RB2), 1)
    b.salu("s_lshl_b32", sr(S_T0), sr(S_T0), 11)
    b.salu("s_add_u32", sr(S_T0), sr(S_T0), F1)
    b.salu("s_mul_i32", sr(S_T1), sr(S_R), 11)
    b.salu("s_mul_i32", sr(S_T1), sr(S_T1), 21846)
    b.salu("s_lshr_b32", sr(S_T1), sr(S_T1), 16)
    b.valu("v_min_u32", vr(V_U0), 4, vr(V_L))
    b.valu("v_add_u32", vr(V_U0), sr(S_T1), vr(V_U0))
    b.valu("v_min_u32", vr(V_U0), 14, vr(V_U0))
    b.valu("v_lshlrev_b32", vr(V_U0), 7, vr(V_U0))
    b.valu("v_add_u32", vr(V_FO), sr(S_T0), vr(V_U0))
    lds_check_issue(b, CONS, V_SY, V_C, "cz")
    b.wait(vm=0)
    stamp(b, 8)
    arrive(b, CNT + 4, S_F, V_U0)
    lds_check(b, CONS, 15, V_SY, V_C, "cz")

    def pref_b(t):
        b.salu("s_add_u32", "m0", sr(S_M0B), (t % RD) * 2048)
        b.salu("s_mov_b32", sr(S_KB), t * 16384)
        b.vmem_dma(vr(V_BO0), sr(S_WD, 4), sr(S_KB), tag=f"b{t}")
        b.vmem_dma(vr(V_BO1), sr(S_WD, 4), sr(S_KB), mods="offset:1024", tag=f"b{t}")

    def pref_a(t):
        b.salu("s_mov_b32", sr(S_KA), t * 2048)
        for i in range(2):
            b.vmem_load("buffer_load_dwordx4", vr(V_A + 8 * (t % RA) + 4 * i, 4), vr(V_AO), sr(S_H, 4), sr(S_KA),
                        mods=("offset:1024 " if i else "") + "sc1", tag=f"a{t}")

    def pref_wo(i):
        if i == 0:
            b.salu("s_lshl_b32", sr(S_T3), sr(S_R), 14)
        b.salu("s_add_u32", "m0", sr(S_T3), WO_OFF + i * 2048)
        b.salu("s_mov_b32", sr(S_KB), i * 16384)
        b.vmem_dma(vr(V_BW0), sr(S_WO, 4), sr(S_KB), tag="wo")
        b.vmem_dma(vr(V_BW1), sr(S_WO, 4), sr(S_KB), mods="offset:1024", tag="wo")
    for t in range(RD):
        pref_b(t)
    nwo = 0
    while nwo < optval("nwo", 8):
        pref_wo(nwo)
        nwo += 1
    poll(b, V_W, V_FO)
    stamp(b, 9)
    for t in range(RA):
        pref_a(t)
        if nwo < 8:
            pref_wo(nwo)
            nwo += 1

    def rdw(t):
        ws = V_W + 8 * (t % 2)
        b.wait(vm=f"b{t}")
        for j in range(2):
            for q in range(2):
                b.ds_read("ds_read_b64_tr_b16", vr(ws + 4 * j + 2 * q, 2), vr(V_TR0 + j), (t % RD) * 2048 + q * 1024, tag=f"d{t}")
    rdw(0)
    for t in range(NDOWN):
        ws = V_W + 8 * (t % 2)
        if t + 1 < NDOWN:
            rdw(t + 1)
        b.wait(vm=f"a{t}", lg=f"d{t}")
        for i in range(2):
            for j in range(2):
                acc = V_ACC + 16 * (2 * i + j)
                b.mfma(vr(acc, 16), vr(ws + 4 * j, 4), vr(V_A + 8 * (t % RA) + 4 * i, 4), "0" if t == 0 else vr(acc, 16))
        if t == RA - 1:
            b.wait(vm="wo")
            lds_signal(b, WOL, 1, V_U0)
        if t + RD < NDOWN:
            pref_b(t + RD)
        if t + RA < NDOWN:
            pref_a(t + RA)
    stamp(b, 10)
    for blk in range(4):
        for g in range(4):
            b.ds_write("ds_write_b128", vr(V_WR), vr(V_ACC + 16 * blk + 4 * g, 4), blk * 4096 + g * 1024)
    b.wait(lg=0)
    stamp(b, 11)
    stamp_out(b)
    b.raw("  s_endpgm")
    print("p1 instrs", b.ninstr)
    return b.text()


def p0():
    b = B(); b.nlabel = 3000
    b.label("L_P0")
    DPP = "row_mask:0xf bank_mask:0xf"
    V_T0, V_T1, V_T2 = 1, 2, 3
    V_XB = 4
    V_TRA = 8
    V_SY = 9
    V_NM, V_RS = 10, 11
    V_CSRD, V_STO, V_STV, V_RSS = 12, 13, 14, 15
    V_ID = 16
    V_XF = 24
    V_RING = 36
    V_ACC = 72
    V_D2 = 120
    TS = [136, 144]
    RD_, CD, CA, U0, U1 = 152, 160, 192, 200, 201
    SU, SQ = 250, 251
    GA, G0 = 204, 236
    V_UB = 244
    xread_setup(b, V_XB, V_T0, V_T1, V_T2)
    tr192(b, V_TRA, 32, V_T0, V_T1)
    b.valu("v_add_u32", vr(V_TRA), 16384, vr(V_TRA))
    b.valu("v_lshlrev_b32", vr(V_T0), 2, vr(V_L))
    b.valu("v_min_u32", vr(V_T0), 124, vr(V_T0))
    b.valu("v_add_u32", vr(V_T0), SY_OFF, vr(V_T0))
    b.ds_write("ds_write_b32", vr(V_T0), vr(V_Z), 0)
    b.valu("v_mov_b32", vr(V_SY), SY_OFF)
    b.valu("v_and_b32", vr(V_T0), 31, vr(V_L))
    b.valu("v_lshrrev_b32", vr(V_T1), 5, vr(V_L))
    b.valu("v_lshlrev_b32", vr(V_T1), 2, vr(V_T1))
    b.valu("v_sub_u32", vr(V_T0), vr(V_T0), vr(V_T1))
    b.valu("v_mov_b32", vr(V_T1), "0x3f80")
    b.valu("v_mov_b32", vr(V_T2), "0x3f800000")
    for hf in range(2):
        for i in range(4):
            d = 16 * hf + ((2 * i) & 3) + 8 * (i >> 1)
            b.valu("v_cmp_eq_u32", "vcc", d, vr(V_T0))
            b.valu("v_cndmask_b32", vr(V_ID + 4 * hf + i), 0, vr(V_T1))
            b.valu("v_cmp_eq_u32", "vcc", d + 1, vr(V_T0))
            b.valu("v_cndmask_b32", vr(V_ID + 4 * hf + i), vr(V_ID + 4 * hf + i), vr(V_T2))
    b.valu("v_lshlrev_b32", vr(V_STO), 4, vr(V_L))
    b.valu("v_and_b32", vr(V_T0), 15, vr(V_L))
    b.valu("v_lshlrev_b32", vr(V_T0), 4, vr(V_T0))
    b.valu("v_lshrrev_b32", vr(V_T1), 5, vr(V_L))
    b.valu("v_lshl_add_u32", vr(V_T0), vr(V_T1), 8, vr(V_T0))
    b.valu("v_bfe_u32", vr(V_T2), vr(V_L), 4, 1)
    b.valu("v_lshl_add_u32", vr(V_STV), vr(V_T2), 16, vr(V_T0))
    b.valu("v_lshlrev_b32", vr(V_CSRD), 4, vr(V_T1))
    b.valu("v_add_u32", vr(V_CSRD), CS_OFF, vr(V_CSRD))
    common_srds(b)
    ub_setup(b, V_UB, V_T0, V_T1)

    def prod_loads():
        l1 = b.newlabel("np")
        b.salu("s_cmp_lg_u32", sr(S_R), 0)
        b.branch("s_cbranch_scc1", l1)
        b.opt_begin()
        b.vmem_load("buffer_load_dwordx2", vr(V_NON, 2), vr(V_Z), sr(S_DBG, 4), "0", mods="sc1")
        b.opt_end()
        b.label(l1)
        b.salu("s_lshl_b32", sr(S_T0), sr(S_CC), 13)
        b.salu("s_lshl_b32", sr(S_T1), sr(S_R), 11)
        b.salu("s_add_u32", sr(S_T0), sr(S_T0), sr(S_T1))
        b.valu("v_lshlrev_b32", vr(U0), 5, vr(V_L))
        b.vmem_load("buffer_load_dwordx4", vr(RD_, 4), vr(U0), sr(S_X, 4), sr(S_T0), tag="rl")
        b.vmem_load("buffer_load_dwordx4", vr(RD_ + 4, 4), vr(U0), sr(S_X, 4), sr(S_T0), mods="offset:16", tag="rl")
        b.salu("s_lshr_b32", sr(S_T0), sr(S_RB), 2)
        b.salu("s_and_b32", sr(S_T1), sr(S_RB), 3)
        b.salu("s_cmp_eq_u32", sr(S_T0), 1)
        b.salu("s_cselect_b32", sr(S_C), "s12", "s14")
        b.salu("s_cselect_b32", sr(S_C + 1), "s13", "s15")
        b.salu("s_movk_i32", sr(S_T3), 2752)
        b.salu("s_lshl_b32", sr(S_U0), sr(S_FS), 5)
        b.salu("s_mul_i32", sr(S_U1), sr(S_CC), 192)
        b.salu("s_cmp_eq_u32", sr(S_T0), 0)
        b.salu("s_cselect_b32", sr(S_C), "s6", sr(S_C))
        b.salu("s_cselect_b32", sr(S_C + 1), "s7", sr(S_C + 1))
        b.salu("s_cselect_b32", sr(S_T3), 3072, sr(S_T3))
        b.salu("s_cselect_b32", sr(S_U0), sr(S_U1), sr(S_U0))
        b.salu("s_lshl_b32", sr(S_C + 2), sr(S_T3), 9)
        b.salu("s_cmp_eq_u32", sr(S_T0), 3)
        b.salu("s_cselect_b32", sr(S_C + 2), 0, sr(S_C + 2))
        b.salu("s_mov_b32", sr(S_C + 3), 0x20000)
        b.salu("s_lshl_b32", sr(S_U1), sr(S_T1), 2)
        b.salu("s_add_u32", sr(S_U1), sr(S_U1), sr(S_R))
        b.salu("s_lshl_b32", sr(S_U1), sr(S_U1), 5)
        b.salu("s_mul_i32", sr(S_U1), sr(S_U1), sr(S_T3))
        b.salu("s_add_u32", sr(S_U0), sr(S_U0), sr(S_U1))
        b.valu("v_lshrrev_b32", vr(U0), 4, vr(V_L))
        b.valu("v_mul_u32_u24", vr(U0), sr(S_T3), vr(U0))
        b.valu("v_and_b32", vr(U1), 15, vr(V_L))
        b.valu("v_lshl_add_u32", vr(U0), vr(U1), 4, vr(U0))
        b.valu("v_cmp_gt_u32", "vcc", 12, vr(U1))
        b.valu("v_mov_b32", vr(U1), "0x40000000")
        b.valu("v_cndmask_b32", vr(U0), vr(U1), vr(U0))
        b.salu("s_lshl_b32", sr(S_T3), sr(S_T3), 2)
        for i in range(8):
            b.vmem_load("buffer_load_dwordx4", vr(CD + 4 * i, 4), vr(U0), sr(S_C, 4), sr(S_U0), tag="cl")
            if i < 7:
                b.salu("s_add_u32", sr(S_U0), sr(S_U0), sr(S_T3))
        b.salu("s_lshl_b32", sr(S_CSO), sr(S_CC), 2)
        b.salu("s_add_u32", sr(S_CSO), sr(S_CSO), sr(S_T1))
        b.salu("s_lshl_b32", sr(S_CSO), sr(S_CSO), 12)
        b.salu("s_lshl_b32", sr(S_U0), sr(S_T0), 7)
        b.salu("s_add_u32", sr(S_U0), sr(S_U0), 640)
        b.salu("s_cmp_eq_u32", sr(S_T0), 0)
        b.salu("s_cselect_b32", sr(S_U0), 0, sr(S_U0))
        b.salu("s_add_u32", sr(S_CSO), sr(S_CSO), sr(S_U0))
        b.salu("s_add_u32", sr(S_CSO), sr(S_CSO), CSG)

    def prod_ops():
        ops = []
        Vv = lambda *a, **k: ops.append(lambda: b.valu(*a, **k))
        A = ops.append
        A(lambda: b.wait(vm="rl"))
        if 'pdot' in OPT:
            A(lambda: (b.salu("s_mov_b32", sr(S_T0), "0x3f803f80"), b.salu("s_mov_b32", sr(S_T1), "0x3f80"), b.salu("s_mov_b32", sr(S_T3), "0x3f800000")))
            Vv("v_mov_b32", vr(SU), 0)
            Vv("v_mov_b32", vr(SQ), 0)
            for i in range(8):
                Vv("v_dot2c_f32_bf16", vr(SU), sr(S_T0), vr(RD_ + i))
                Vv("v_dot2c_f32_bf16", vr(SQ), vr(RD_ + i), vr(RD_ + i))
        for i in range(8 if 'pdot' not in OPT else 0):
            Vv("v_lshlrev_b32", vr(U0), 16, vr(RD_ + i))
            Vv("v_and_b32", vr(U1), "0xffff0000", vr(RD_ + i))
            if i == 0:
                Vv("v_add_f32", vr(SU), vr(U0), vr(U1))
                Vv("v_mul_f32", vr(SQ), vr(U0), vr(U0))
            else:
                Vv("v_add_f32", vr(SU), vr(SU), vr(U0))
                Vv("v_fmac_f32", vr(SQ), vr(U0), vr(U0))
                Vv("v_add_f32", vr(SU), vr(SU), vr(U1))
            Vv("v_fmac_f32", vr(SQ), vr(U1), vr(U1))
        Vv("v_permlane16_swap_b32", vr(SU), vr(SQ))
        Vv("v_add_f32", vr(SU), vr(SU), vr(SQ))
        for r in (8, 4, 2, 1):
            Vv("v_add_f32_dpp", vr(SU), vr(SU), vr(SU), mods=f"row_ror:{r} {DPP}")
        Vv("v_mov_b32", vr(SQ), vr(SU))
        Vv("v_permlane16_swap_b32", vr(SU), vr(SQ))
        Vv("v_mul_f32", vr(SU), hex(f32bits(1.0 / 512)), vr(SU))
        Vv("v_mul_f32", vr(SQ), hex(f32bits(1.0 / 512)), vr(SQ))
        Vv("v_fma_f32", vr(SQ), f"-{vr(SU)}", vr(SU), vr(SQ))
        Vv("v_max_f32", vr(SQ), 0, vr(SQ))
        A(lambda: bf16r(b, SQ))
        Vv("v_add_f32", vr(SQ), hex(f32bits(1e-5)), vr(SQ))
        A(lambda: bf16r(b, SQ))
        Vv("v_sqrt_f32", vr(SQ), vr(SQ))
        A(lambda: bf16r(b, SQ))
        Vv("v_rcp_f32", vr(SQ), vr(SQ))
        A(lambda: bf16r(b, SU))
        Vv("v_sub_f32", vr(SU), 0, vr(SU))
        A(lambda: b.wait(vm="cl"))
        for i in range(8):
            for j in range(4):
                src = CD + 4 * i + j
                if i == 0:
                    Vv("v_lshlrev_b32", vr(CA + 2 * j), 16, vr(src))
                    Vv("v_and_b32", vr(CA + 2 * j + 1), "0xffff0000", vr(src))
                elif 'pdot' in OPT:
                    Vv("v_dot2c_f32_bf16", vr(CA + 2 * j), sr(S_T1), vr(src))
                    Vv("v_dot2c_f32_bf16", vr(CA + 2 * j + 1), sr(S_T3), vr(src))
                else:
                    Vv("v_lshlrev_b32", vr(U0), 16, vr(src))
                    Vv("v_and_b32", vr(U1), "0xffff0000", vr(src))
                    Vv("v_add_f32", vr(CA + 2 * j), vr(CA + 2 * j), vr(U0))
                    Vv("v_add_f32", vr(CA + 2 * j + 1), vr(CA + 2 * j + 1), vr(U1))
        for i in range(4):
            Vv("v_permlane32_swap_b32", vr(CA + 2 * i), vr(CA + 2 * i + 1))
        for i in range(4):
            Vv("v_add_f32", vr(CA + 2 * i), vr(CA + 2 * i), vr(CA + 2 * i + 1))
        for i in range(2):
            Vv("v_permlane16_swap_b32", vr(CA + 4 * i), vr(CA + 4 * i + 2))
        for i in range(2):
            Vv("v_add_f32", vr(CA + 4 * i), vr(CA + 4 * i), vr(CA + 4 * i + 2))
        Vv("v_and_b32", vr(U0), 15, vr(V_L))
        Vv("v_lshlrev_b32", vr(U0), 5, vr(U0))
        Vv("v_bfe_u32", vr(U1), vr(V_L), 4, 1)
        Vv("v_lshl_add_u32", vr(U0), vr(U1), 3, vr(U0))
        Vv("v_lshrrev_b32", vr(U1), 5, vr(V_L))
        Vv("v_lshl_add_u32", vr(U0), vr(U1), 2, vr(U0))
        A(lambda: (b.salu("s_lshl_b32", sr(S_U0), sr(S_R), 9), b.salu("s_add_u32", sr(S_U0), sr(S_U0), CP_OFF)))
        Vv("v_add_u32", vr(U0), sr(S_U0), vr(U0))
        A(lambda: (b.ds_write("ds_write_b32", vr(U0), vr(CA), 0), b.ds_write("ds_write_b32", vr(U0), vr(CA + 4), 16)))

        def nonce():
            lok, lp, lsk = b.newlabel("nok"), b.newlabel("nlp"), b.newlabel("nsk")
            b.salu("s_cmp_lg_u32", sr(S_R), 0)
            b.branch("s_cbranch_scc1", lsk)
            b.opt_begin()
            b.label(lp)
            b.valu("v_cmp_eq_u32", "vcc", 0, vr(V_NON + 1))
            b.branch("s_cbranch_vccz", lok)
            b.opt_begin()
            guard(b, lok)
            b.raw("  s_sleep 4")
            b.vmem_load("buffer_load_dwordx2", vr(V_NON, 2), vr(V_Z), sr(S_DBG, 4), "0", mods="sc1")
            b.wait(vm=0)
            b.branch("s_branch", lp)
            b.opt_end()
            b.label(lok)
            b.valu("v_mov_b32", vr(U0), NC_OFF)
            b.ds_write("ds_write_b64", vr(U0), vr(V_NON, 2), 0)
            b.opt_end()
            b.label(lsk)
        A(nonce)
        return ops

    def publish():
        b.valu("v_mov_b32", vr(U0), NC_OFF)
        b.ds_read("ds_read_b64", vr(V_NON, 2), vr(U0), 0, tag="non")
        b.salu("s_lshl_b32", sr(S_U0), sr(S_RB), 11)
        b.salu("s_lshl_b32", sr(S_U1), sr(S_CC), 7)
        b.salu("s_add_u32", sr(S_U0), sr(S_U0), sr(S_U1))
        b.salu("s_lshl_b32", sr(S_U1), sr(S_R), 5)
        b.salu("s_add_u32", sr(S_U0), sr(S_U0), sr(S_U1))
        b.salu("s_add_u32", sr(S_U0), sr(S_U0), RSG)
        b.valu("v_lshrrev_b32", vr(U1), 1, vr(V_L))
        b.wait(lg="non")
        b.salu("s_mov_b32", "exec_lo", 1)
        b.salu("s_mov_b32", "exec_hi", 1)
        b.vmem_store("buffer_store_dwordx4", vr(SU, 4), vr(U1), sr(S_WS, 4), sr(S_U0), mods="sc1")
        b.salu("s_mov_b64", "exec", -1)
        l1 = b.newlabel("cf")
        b.salu("s_cmp_lg_u32", sr(S_R), 3)
        b.branch("s_cbranch_scc1", l1)
        b.opt_begin()
        b.salu("s_cmp_ge_u32", sr(S_RB), 12)
        b.branch("s_cbranch_scc1", l1)
        b.valu("v_lshlrev_b32", vr(U1), 3, vr(V_L))
        b.valu("v_add_u32", vr(U1), CP_OFF, vr(U1))
        for w in range(4):
            b.ds_read("ds_read_b64", vr(CD + 2 * w, 2), vr(U1), w * 512)
        b.valu("v_lshrrev_b32", vr(U1), 3, vr(V_L))
        b.valu("v_lshlrev_b32", vr(U1), 3, vr(U1))
        b.salu("s_cmp_lt_u32", sr(S_RB), 4)
        b.salu("s_cselect_b32", sr(S_U0), 0, -1)
        b.valu("v_and_b32", vr(U1), sr(S_U0), vr(U1))
        b.valu("v_add_u32", vr(U0), vr(V_L), vr(U1))
        b.valu("v_lshlrev_b32", vr(U0), 4, vr(U0))
        b.wait(lg=0)
        for e in range(2):
            b.valu("v_add_f32", vr(SU + e), vr(CD + e), vr(CD + 2 + e))
            b.valu("v_add_f32", vr(CD + 4 + e), vr(CD + 4 + e), vr(CD + 6 + e))
            b.valu("v_add_f32", vr(SU + e), vr(SU + e), vr(CD + 4 + e))
        b.salu("s_mov_b32", "exec_hi", "0xffff")
        b.vmem_store("buffer_store_dwordx4", vr(SU, 4), vr(U0), sr(S_WS, 4), sr(S_CSO), mods="sc1")
        b.salu("s_mov_b32", "exec_hi", -1)
        b.opt_end()
        b.label(l1)
        b.salu("s_lshl_b32", sr(S_U0), sr(S_R), 6)
        b.valu("v_add_u32", vr(U0), sr(S_U0), vr(V_L))
        b.valu("v_mov_b32", vr(U1), 144)
        b.valu("v_cmp_lt_u32", sr(S_CARE, 2), vr(U0), vr(U1))
        b.salu("s_lshl_b32", sr(S_U0), sr(S_CC), 14)
        b.salu("s_add_u32", sr(S_U0), sr(S_U0), CSG)
        b.valu("v_lshl_add_u32", vr(U0), vr(U0), 4, sr(S_U0))
        b.valu("v_mov_b32", vr(U1), "0x40000000")
        b.valu("v_cndmask_b32", vr(G0), vr(U1), vr(U0), sr(S_CARE, 2))
        for i in range(1, 4):
            b.valu("v_add_u32", vr(G0 + i), 4096 * i, vr(G0))
        b.salu("s_lshl_b32", sr(S_U0), sr(S_RB), 11)
        b.salu("s_lshl_b32", sr(S_U1), sr(S_R), 9)
        b.salu("s_add_u32", sr(S_U0), sr(S_U0), sr(S_U1))
        b.salu("s_add_u32", sr(S_U0), sr(S_U0), RSG)
        b.valu("v_and_b32", vr(U0), 31, vr(V_L))
        b.valu("v_lshl_add_u32", vr(G0 + 4), vr(U0), 4, sr(S_U0))

    def gather_issue(tag="ga"):
        for i in range(5):
            b.vmem_load("buffer_load_dwordx4", vr(GA + 4 * i, 4), vr(G0 + i), sr(S_WS, 4), "0", mods="sc1", tag=tag)

    def gather_write():
        lok, lp = b.newlabel("gok"), b.newlabel("gl")
        b.wait(vm="ga")
        b.label(lp)
        b.valu("v_cmp_ne_u64", sr(S_U0, 2), vr(GA + 2, 2), vr(V_NON, 2))
        for i in range(1, 4):
            b.valu("v_cmp_ne_u64", "vcc", vr(GA + 4 * i + 2, 2), vr(V_NON, 2))
            b.salu("s_or_b64", sr(S_U0, 2), sr(S_U0, 2), "vcc")
        b.salu("s_and_b64", sr(S_U0, 2), sr(S_U0, 2), sr(S_CARE, 2))
        b.valu("v_cmp_ne_u64", "vcc", vr(GA + 18, 2), vr(V_NON, 2))
        b.salu("s_or_b64", sr(S_U0, 2), sr(S_U0, 2), "vcc")
        b.branch("s_cbranch_scc0", lok)
        b.opt_begin()
        guard(b, lok)
        b.raw("  s_sleep 4")
        gather_issue(None)
        b.wait(vm=0)
        b.branch("s_branch", lp)
        b.opt_end()
        b.label(lok)
        for e in range(2):
            b.valu("v_add_f32", vr(GA + e), vr(GA + e), vr(GA + 4 + e))
            b.valu("v_add_f32", vr(GA + 8 + e), vr(GA + 8 + e), vr(GA + 12 + e))
            b.valu("v_add_f32", vr(GA + e), vr(GA + e), vr(GA + 8 + e))
        b.valu("v_mov_b32", vr(V_NM), vr(GA + 16))
        b.valu("v_mov_b32", vr(V_RS), vr(GA + 17))
        b.salu("s_min_u32", sr(S_U0), sr(S_R), 2)
        b.salu("s_lshl_b32", sr(S_U0), sr(S_U0), 9)
        b.salu("s_add_u32", sr(S_U0), sr(S_U0), CS_OFF)
        b.valu("v_lshl_add_u32", vr(U0), vr(V_L), 3, sr(S_U0))
        b.salu("s_mov_b64", "exec", sr(S_CARE, 2))
        b.ds_write("ds_write_b64", vr(U0), vr(GA, 2), 0)
        b.salu("s_mov_b64", "exec", -1)
        b.salu("s_lshl_b32", sr(S_U0), sr(S_R), 8)
        b.salu("s_add_u32", sr(S_U0), sr(S_U0), ST_OFF)
        b.valu("v_and_b32", vr(U0), 31, vr(V_L))
        b.valu("v_lshl_add_u32", vr(U0), vr(U0), 3, sr(S_U0))
        b.ds_write("ds_write_b64", vr(U0), vr(V_NM, 2), 0)

    LA = 6
    NFA = 96

    def read_a(f):
        ks, blk = divmod(f, 3)
        t, s = divmod(ks, 4)
        if blk == 0:
            b.ds_read("ds_read_b128", vr(V_XF + 4 * (ks % 3), 4), vr(V_XB + s), (t % 3) * PA, tag=f"x{ks}")
        r0 = V_RING + 4 * (f % 9)
        for q in range(2):
            off = (t % 3) * PA + s * 3072 + q * 768 + blk * 64
            if off >= 65536:
                a_, off = V_TRA2, off - 2 * PA
            else:
                a_ = V_TRA
            b.ds_read("ds_read_b64_tr_b16", vr(r0 + 2 * q, 2), vr(a_), off, tag=f"w{f}")
    V_TRA2 = V_RSS
    b.valu("v_add_u32", vr(V_TRA2), 2 * PA, vr(V_TRA))
    FPC, FPE = optval("fpc", 9), optval("fpe", 41)
    pops = prod_ops()
    nper = -(-len(pops) // (FPE - FPC))
    hooks = {}
    for f in range(FPC, FPE):
        hooks[f] = (lambda ops=pops[(f - FPC) * nper:(f - FPC + 1) * nper]: [o() for o in ops])
    hooks[optval("fpl", 2)] = prod_loads
    hooks[optval("fpu", 44)] = publish
    if 'nomall' not in OPT:
        hooks[optval("fml", 50)] = lambda: w2_touch_mall(b, S_C, U0, 242)
    hooks[optval("fgi", 72)] = gather_issue
    hooks[optval("fgw", 88)] = gather_write
    ubq = [(t, n) for t in range(12, 14) for n in range(6)]

    def ub_issue(k):
        for _ in range(k):
            if ubq:
                t, n = ubq.pop(0)
                ub_step(b, V_UB, t, n)
    b.wait(lg=0)
    b.barrier()
    stamp(b, 1)
    for f in range(LA):
        read_a(f)
    for f in range(NFA):
        nf = f + LA
        if nf % 12 == 0:
            b.wait(lg=0)
            b.barrier()
            if nf // 12 in (2, 4, 8):
                stamp(b, {2: 2, 4: 3, 8: 4}[nf // 12])
        if nf < NFA:
            read_a(nf)
        ks, blk = divmod(f, 3)
        b.wait(lg=[f"w{f}", f"x{ks}"])
        acc = V_ACC + 16 * blk
        b.mfma(vr(acc, 16), vr(V_RING + 4 * (f % 9), 4), vr(V_XF + 4 * (ks % 3), 4), "0" if ks == 0 else vr(acc, 16))
        if f in hooks:
            hooks[f]()

    def csrd(n):
        blk, hf = divmod(n, 2)
        T = TS[n % 2]
        b.ds_read("ds_read_b128", vr(T, 4), vr(V_CSRD), blk * 128 + hf * 64, tag=f"c{n}")
        b.ds_read("ds_read_b128", vr(T + 4, 4), vr(V_CSRD), blk * 128 + hf * 64 + 32, tag=f"c{n}")
    b.raw("  s_setprio 3")
    csrd(0)
    b.salu("s_mul_i32", sr(S_T3), sr(S_CC), 3)
    b.salu("s_lshl_b32", sr(S_T0), sr(S_RB), 2)
    b.salu("s_add_u32", sr(S_T0), sr(S_T0), sr(S_R))
    b.salu("s_lshl_b32", sr(S_E), sr(S_T0), 10)
    for blk in range(3):
        acc = V_ACC + 16 * blk
        b.salu("s_add_u32", sr(S_T0), sr(S_T3), blk)
        b.salu("s_cmp_lt_u32", sr(S_T0), 16)
        b.salu("s_cselect_b32", sr(S_T1), hex(f32bits(QSCALE)), "1.0")
        b.valu("v_mul_f32", vr(V_T0), sr(S_T1), vr(V_RS))
        b.salu("s_lshl_b32", sr(S_U0), sr(S_T0), 17)
        b.salu("s_add_u32", sr(S_U0), sr(S_U0), sr(S_E))
        b.salu("s_add_u32", sr(S_U1), sr(S_U0), 65536)
        for hf in range(2):
            n = 2 * blk + hf
            T = TS[n % 2]
            if n + 1 < 6:
                csrd(n + 1)
            b.wait(lg=f"c{n}")
            for i in range(8):
                b.valu("v_fmac_f32", vr(acc + 8 * hf + i), vr(V_NM), vr(T + i))
            for i in range(8):
                b.valu("v_mul_f32", vr(acc + 8 * hf + i), vr(V_T0), vr(acc + 8 * hf + i))
            for i in range(4):
                b.valu("v_cvt_pk_bf16_f32", vr(acc + 8 * hf + i), vr(acc + 8 * hf + 2 * i), vr(acc + 8 * hf + 2 * i + 1))
        lv, lj = b.newlabel("ev"), b.newlabel("ej")
        b.salu("s_cmp_ge_u32", sr(S_T0), 32)
        b.branch("s_cbranch_scc1", lv)
        b.opt_begin()
        b.par = list(range(8))
        b.vmem_store("buffer_store_dwordx4", vr(acc, 4), vr(V_STO), sr(S_WS, 4), sr(S_U0), mods="sc1", tag="st")
        b.vmem_store("buffer_store_dwordx4", vr(acc + 8, 4), vr(V_STO), sr(S_WS, 4), sr(S_U1), mods="sc1", tag="st")
        b.par = None
        b.branch("s_branch", lj)
        b.opt_end()
        b.label(lv)
        b.opt_begin()
        b.par = []
        b.mfma(vr(V_D2, 16), vr(acc, 4), vr(V_ID, 4), "0")
        b.mfma(vr(V_D2, 16), vr(acc + 8, 4), vr(V_ID + 4, 4), vr(V_D2, 16))
        for i in range(8):
            b.valu("v_cvt_pk_bf16_f32", vr(acc + i), vr(V_D2 + 2 * i), vr(V_D2 + 2 * i + 1))
        b.vmem_store("buffer_store_dwordx4", vr(acc, 4), vr(V_STV), sr(S_WS, 4), sr(S_U0), mods="sc1", tag="st")
        b.vmem_store("buffer_store_dwordx4", vr(acc + 4, 4), vr(V_STV), sr(S_WS, 4), sr(S_U0), mods="offset:512 sc1", tag="st")
        b.par = None
        b.opt_end()
        b.label(lj)
    stamp(b, 5)
    b.salu("s_lshl_b32", sr(S_T3), sr(S_RB), 4)
    b.salu("s_add_u32", sr(S_T3), sr(S_T3), sr(S_CC))
    b.salu("s_lshl_b32", sr(S_T3), sr(S_T3), 7)
    b.salu("s_add_u32", sr(S_T3), sr(S_T3), F0)
    b.wait(vm=0)
    arrive(b, CNT, S_T3, V_T0)
    b.raw(f"  s_setprio {optval('pr0', 1)}")
    stamp(b, 6)
    attn(b, ub_issue, V_UB, V_SY)
    print("p0 instrs", b.ninstr)
    return b.text()


def attn(b, ub_issue, V_UB, V_SY):
    V_QO, V_VO, V_T0, V_T1, V_M0, V_M1, V_BIG = 1, 2, 3, 4, 5, 6, 7
    V_NEG = 10
    V_MSK = 12
    V_Q = 20
    V_K = 28
    V_V = 68
    V_B0, V_B1, V_CN, V_O, V_SM = 148, 164, 180, 196, 212
    V_C = 228
    S_KO, S_VO, S_EXV = 24, 28, 44
    S_RQ, S_HD, S_SO, S_NF, S_QB = 46, 47, 60, 61, 96
    ub_issue(6)
    b.salu("s_and_b32", sr(S_T0), "s2", 7)
    b.salu("s_lshl_b32", sr(S_HD), sr(S_T0), 2)
    b.salu("s_add_u32", sr(S_HD), sr(S_HD), sr(S_R))
    b.salu("s_lshr_b32", sr(S_RQ), "s2", 3)
    b.valu("v_and_b32", vr(V_T0), 3, vr(V_L))
    b.valu("v_min_u32", vr(V_T0), 2, vr(V_T0))
    b.valu("v_bfe_u32", vr(V_T1), vr(V_L), 2, 1)
    b.valu("v_lshl_add_u32", vr(V_T0), vr(V_T0), 4, vr(V_T1))
    b.salu("s_lshl_b32", sr(S_T0), sr(S_T0), 1)
    b.valu("v_add_u32", vr(V_T0), sr(S_T0), vr(V_T0))
    b.valu("v_mul_u32_u24", vr(V_T0), 21846, vr(V_T0))
    b.valu("v_lshrrev_b32", vr(V_T0), 16, vr(V_T0))
    b.valu("v_bfe_u32", vr(V_T1), vr(V_L), 3, 2)
    b.valu("v_min_u32", vr(V_T1), 2, vr(V_T1))
    b.salu("s_lshr_b32", sr(S_T1), sr(S_RQ), 1)
    b.valu("v_sub_u32", vr(V_T1), sr(S_T1), vr(V_T1))
    b.valu("v_max_i32", vr(V_T1), 0, vr(V_T1))
    b.valu("v_lshl_add_u32", vr(V_T0), vr(V_T1), 4, vr(V_T0))
    b.valu("v_lshlrev_b32", vr(V_T0), 7, vr(V_T0))
    b.valu("v_add_u32", vr(V_B0), F0, vr(V_T0))
    b.salu("s_lshl_b32", sr(S_QB), sr(S_HD), 16)
    b.salu("s_lshl_b32", sr(S_T1), sr(S_RQ), 11)
    b.salu("s_add_u32", sr(S_QB), sr(S_QB), sr(S_T1))
    b.valu("v_lshlrev_b32", vr(V_QO), 4, vr(V_L))
    for grp in range(3):
        b.salu("s_add_u32", sr(S_KO + grp), sr(S_QB), KF - 8192 + 4096 * grp)
        b.salu("s_add_u32", sr(S_VO + grp), sr(S_QB), VF - 8192 + 4096 * grp)
    b.salu("s_cmp_lt_u32", sr(S_RQ), 4)
    b.salu("s_cselect_b32", sr(S_VO + 3), sr(S_VO + 2), sr(S_VO))
    b.valu("v_and_b32", vr(V_T0), 15, vr(V_L))
    b.valu("v_lshlrev_b32", vr(V_T0), 4, vr(V_T0))
    b.valu("v_lshrrev_b32", vr(V_T1), 5, vr(V_L))
    b.valu("v_lshl_add_u32", vr(V_VO), vr(V_T1), 8, vr(V_T0))
    b.salu("s_mov_b32", sr(S_EXV), "0xffff")
    b.salu("s_mov_b32", sr(S_EXV + 1), "0xffff")
    ub_issue(6)
    b.valu("v_and_b32", vr(V_T0), 31, vr(V_L))
    b.valu("v_lshlrev_b32", vr(V_T1), 2, vr(V_T1))
    b.valu("v_sub_u32", vr(V_T0), vr(V_T0), vr(V_T1))
    for r in range(16):
        b.valu("v_cmp_le_i32", sr(S_MASK + 2 * r, 2), (r & 3) + 8 * (r >> 2), vr(V_T0))
    b.valu("v_mov_b32", vr(V_BIG), hex(f32bits(-1e30)))
    b.valu("v_mov_b32", vr(V_T0), "0xffff")
    b.valu("v_mov_b32", vr(V_T1), "0xffff0000")
    for i in range(8):
        b.valu("v_cndmask_b32", vr(V_MSK + i), 0, vr(V_T0), sr(S_MASK + 4 * i, 2))
        b.valu("v_cndmask_b32", vr(V_M0), 0, vr(V_T1), sr(S_MASK + 4 * i + 2, 2))
        b.valu("v_or_b32", vr(V_MSK + i), vr(V_MSK + i), vr(V_M0))
    b.wait(vm="U12")
    lds_signal(b, LAND, 12, V_T0)
    b.valu("v_mov_b32", vr(V_NEG), "0x3f803f80")
    b.valu("v_mov_b32", vr(V_NEG + 1), "0x3f803f80")
    for i in range(40):
        b.valu("v_mov_b64", vr(V_V + 2 * i, 2), vr(V_NEG, 2))
    b.salu("s_lshl_b32", sr(S_T1), sr(S_RQ), 16)
    b.salu("s_lshl_b32", sr(S_SO), sr(S_HD), 11)
    b.salu("s_add_u32", sr(S_SO), sr(S_SO), sr(S_T1))
    b.salu("s_add_u32", sr(S_SO), sr(S_SO), OF)
    for t in (14, 15):
        lds_check_issue(b, CONS, V_SY, V_C, f"k{t}")
        lds_check(b, CONS, t - 6, V_SY, V_C, f"k{t}")
        for n in range(6):
            ub_step(b, V_UB, t, n)
        b.wait(vm=f"U{t-1}")
        lds_signal(b, LAND, t - 1, V_T0)
    b.vmem_load("buffer_load_dwordx2", vr(V_B0 + 2, 2), vr(V_B0), sr(S_WS, 4), "0", mods="sc1", tag="fl")
    if 'nol2pf0' not in OPT:
        w2_touch_l2(b, S_DBG, 232, 233)
    b.wait(vm="U15")
    lds_signal(b, LAND, 15, V_T0)
    poll(b, V_B0 + 2, V_B0, first_issued=True)
    stamp(b, 7)

    def load_k(n):
        off = (n % 4) * 1024
        b.vmem_load("buffer_load_dwordx4", vr(V_K + 4 * n, 4), vr(V_QO), sr(S_WS, 4), sr(S_KO + n // 4),
                    mods=(f"offset:{off} " if off else "") + "sc1", tag=f"k{n}")

    def load_v(ns):
        b.salu("s_mov_b64", "exec", sr(S_EXV, 2))
        for n in ns:
            for mf in range(2):
                off = (n % 4) * 1024 + mf * 512
                b.vmem_load("buffer_load_dwordx4", vr(V_V + 8 * n + 4 * mf, 4), vr(V_VO), sr(S_WS, 4), sr(S_VO + (3 if n < 2 else n // 4)),
                            mods=(f"offset:{off} " if off else "") + "sc1", tag=f"v{n}")
        b.salu("s_mov_b64", "exec", -1)
    b.vmem_load("buffer_load_dwordx4", vr(V_Q, 4), vr(V_QO), sr(S_WS, 4), sr(S_QB), mods="sc1", tag="q0")
    for n in [0, 8, 7, 6, 5, 4, 3, 2, 1]:
        load_k(n)
    load_v([8, 0, 7, 6, 5, 4, 3, 2, 1, 9])
    b.vmem_load("buffer_load_dwordx4", vr(V_Q + 4, 4), vr(V_QO), sr(S_WS, 4), sr(S_QB), mods="offset:1024 sc1", tag="q1")
    load_k(9)
    if 'l2pf' in OPT:
        w2_touch_l2(b, S_DBG, 232, 233)
    stamp(b, 8)
    stubs = []
    for task in range(2):
        q = vr(V_Q + 4 * task, 4)
        Kf = lambda j: vr(V_K + 4 * (8 + task - j), 4)
        Vf = lambda j, mf: vr(V_V + 8 * (8 + task - j) + 4 * mf, 4)
        ktag = lambda j: f"k{8 + task - j}"
        vtag = lambda j: f"v{8 + task - j}"
        b.salu("s_lshl_b32", sr(S_T1), sr(S_RQ), 1)
        b.salu("s_add_u32", sr(S_T1), sr(S_T1), task)
        b.salu("s_min_u32", sr(S_NF), sr(S_T1), 7)
        L1, L2 = b.newlabel("p1"), b.newlabel("p2")
        bufs = [V_CN, V_O, V_B0, V_B1]
        if task == 1:
            b.wait(vm="k9")
        b.wait(vm=[f"q{task}", ktag(8)])
        b.mfma(vr(V_B0, 16), Kf(8), q, "0")
        b.wait(vm=ktag(0))
        b.mfma(vr(V_B1, 16), Kf(0), q, "0")
        for j in (1, 2):
            b.wait(vm=ktag(j))
            b.mfma(vr(bufs[(j - 1) % 4], 16), Kf(j), q, "0")
        lm1, lm2 = b.newlabel("m1"), b.newlabel("m2")
        b.nop(8)
        b.salu("s_cmp_lt_u32", sr(S_T1), 8)
        b.branch("s_cbranch_scc1", lm1)
        for r in range(16):
            b.valu("v_cndmask_b32", vr(V_SM + r), vr(V_B0 + r), vr(V_B1 + r), sr(S_MASK + 2 * r, 2))
        b.label(lm2)
        st = [f"{lm1}:", "  s_nop 7"]
        for r in range(16):
            st.append(f"  v_cndmask_b32 {vr(V_SM + r)}, {vr(V_BIG)}, {vr(V_B1 + r)}, {sr(S_MASK + 2 * r, 2)}")
        st.append(f"  s_branch {lm2}")
        stubs.append("\n".join(st))

        def maxtree(buf, first):
            for i in range(8):
                m = V_M0 + (i % 2)
                if first and i < 2:
                    b.valu("v_max_f32", vr(m), vr(buf + 2 * i), vr(buf + 2 * i + 1))
                else:
                    b.valu("v_max3_f32", vr(m), vr(buf + 2 * i), vr(buf + 2 * i + 1), vr(m))
        maxtree(V_SM, True)
        for j in range(1, 8):
            b.salu("s_cmp_lt_u32", sr(S_NF), j)
            b.branch("s_cbranch_scc1", L1)
            if j + 2 <= 7:
                b.wait(vm=ktag(j + 2))
                b.mfma(vr(bufs[(j + 1) % 4], 16), Kf(j + 2), q, "0")
            maxtree(bufs[(j - 1) % 4], False)
        b.label(L1)
        b.valu("v_max_f32", vr(V_M0), vr(V_M0), vr(V_M1))
        b.valu("v_mov_b32", vr(V_M1), vr(V_M0))
        b.valu("v_permlane32_swap_b32", vr(V_M1), vr(V_M0))
        b.valu("v_max_f32", vr(V_M0), vr(V_M0), vr(V_M1))
        b.valu("v_sub_f32", vr(V_NEG), 0, vr(V_M0))
        b.valu("v_sub_f32", vr(V_NEG + 1), 0, vr(V_M0))
        b.nop(2)
        for i in range(8):
            b.valu("v_mov_b64", vr(V_CN + 2 * i, 2), vr(V_NEG, 2))
        bufs2 = [V_B0, V_B1, V_SM]
        b.mfma(vr(V_B0, 16), Kf(1), q, vr(V_CN, 16))
        for r in range(8):
            b.valu("v_pk_add_f32", vr(V_SM + 2 * r, 2), vr(V_SM + 2 * r, 2), vr(V_NEG, 2))
        b.mfma(vr(V_B1, 16), Kf(2), q, vr(V_CN, 16))

        def expcvt(buf, inserts):
            for r in range(16):
                if r in inserts:
                    inserts[r]()
                b.valu("v_exp_f32", vr(buf + r), vr(buf + r))
                if r % 2 == 1 and r >= 3:
                    i = (r - 3) // 2
                    b.valu("v_cvt_pk_bf16_f32", vr(buf + i), vr(buf + 2 * i), vr(buf + 2 * i + 1))
            b.valu("v_cvt_pk_bf16_f32", vr(buf + 7), vr(buf + 14), vr(buf + 15))
        expcvt(V_SM, {})
        for i in range(8):
            b.valu("v_and_b32", vr(V_SM + 8 + i), vr(V_MSK + i), vr(V_SM + i))
        for i in range(8):
            b.valu("v_xor_b32", vr(V_SM + i), vr(V_SM + i), vr(V_SM + 8 + i))
        b.wait(vm=[vtag(0), vtag(8), "k1"])
        b.mfma(vr(V_O, 16), Vf(0, 0), vr(V_SM + 8, 4), "0")
        pend = [(Vf(0, 1), vr(V_SM + 12, 4)), (Vf(8, 0), vr(V_SM, 4)), (Vf(8, 1), vr(V_SM + 4, 4))]
        for j in range(1, 9):
            if j <= 7:
                lx = b.newlabel("x")
                b.salu("s_cmp_lt_u32", sr(S_NF), j)
                b.branch("s_cbranch_scc1", lx)
                st = [f"{lx}:", "  s_waitcnt vmcnt(0)", "  s_nop 1"]
                for (a_, p_) in pend:
                    st.append(f"  v_mfma_f32_32x32x16_bf16 {vr(V_O, 16)}, {a_}, {p_}, {vr(V_O, 16)}")
                st.append(f"  s_branch {L2}")
                stubs.append("\n".join(st))
                buf = bufs2[(j - 1) % 3]
                ins = {}
                pos = [0, 4, 8, 12] if len(pend) == 3 else [0, 5, 10]
                if j > 1:
                    b.wait(vm=vtag(j - 1))
                for n_, (a_, p_) in enumerate(pend):
                    ins[pos[n_]] = (lambda a_=a_, p_=p_: b.mfma(vr(V_O, 16), a_, p_, vr(V_O, 16)))
                if j + 2 <= 7:
                    ins[pos[len(pend)]] = (lambda j=j: b.mfma(vr(bufs2[(j + 1) % 3], 16), Kf(j + 2), q, vr(V_CN, 16)))
                expcvt(buf, ins)
                pend = [(Vf(j, 0), vr(buf, 4)), (Vf(j, 1), vr(buf + 4, 4))]
            else:
                b.wait(vm=vtag(7))
                for (a_, p_) in pend:
                    b.mfma(vr(V_O, 16), a_, p_, vr(V_O, 16))
        b.label(L2)
        b.valu("v_rcp_f32", vr(V_NEG), vr(V_O + 8))
        b.valu("v_mov_b32", vr(V_NEG + 1), vr(V_NEG))
        for i in range(4):
            b.valu("v_pk_mul_f32", vr(V_O + 2 * i, 2), vr(V_O + 2 * i, 2), vr(V_NEG, 2))
        for i in range(4):
            b.valu("v_cvt_pk_bf16_f32", vr(V_SM + i), vr(V_O + 2 * i), vr(V_O + 2 * i + 1))
        b.vmem_store("buffer_store_dwordx4", vr(V_SM, 4), vr(V_QO), sr(S_WS, 4), sr(S_SO),
                     mods=(f"offset:{1024*task} " if task else "") + "sc1", tag="ost")
        stamp(b, 9 + task)
    S_O, S_XO, S_OUT = 64, 68, 72
    S_RB2, S_CB, S_F = 76, 77, 78
    V_FO, V_OO, V_XOFF, V_TW0, V_TW1, V_EW, V_ER, V_RA, V_RA2 = 12, 13, 14, 15, 16, 17, 18, 19, 8
    V_XR = 20
    V_A = 28
    V_W2 = 92
    V_AC = 124
    V_R = 156
    X = 236
    b.salu("s_lshl_b32", sr(S_F), "s2", 7)
    b.salu("s_add_u32", sr(S_F), sr(S_F), F2)
    b.salu("s_and_b32", sr(S_T0), "s2", 7)
    b.salu("s_lshl_b32", sr(S_T0), sr(S_T0), 2)
    b.salu("s_bfe_u32", sr(S_T1), "s2", (2 << 16) | 3)
    b.salu("s_add_u32", sr(S_RB2), sr(S_T0), sr(S_T1))
    b.salu("s_lshr_b32", sr(S_CB), "s2", 5)
    b.salu("s_lshl_b32", sr(S_T0), sr(S_RB2), 16)
    b.salu("s_add_u32", sr(S_T1), sr(S_T0), OF)
    srd(b, S_O, "s22", "s23", 65536, add=sr(S_T1))
    srd(b, S_XO, "s4", "s5", 65536, add=sr(S_T0))
    srd(b, S_OUT, "s18", "s19", 65536, add=sr(S_T0))
    b.valu("v_lshrrev_b32", vr(V_T0), 5, vr(V_L))
    b.valu("v_lshlrev_b32", vr(V_T0), 2, vr(V_T0))
    b.valu("v_bfe_u32", vr(V_T1), vr(V_L), 2, 2)
    b.valu("v_add_u32", vr(V_T0), vr(V_T0), vr(V_T1))
    b.valu("v_and_b32", vr(V_M0), 3, vr(V_L))
    b.valu("v_lshlrev_b32", vr(V_M0), 3, vr(V_M0))
    b.valu("v_lshl_add_u32", vr(V_T0), vr(V_T0), 7, vr(V_M0))
    b.valu("v_lshrrev_b32", vr(V_T1), 1, vr(V_T1))
    b.valu("v_bfe_u32", vr(V_M0), vr(V_L), 4, 1)
    b.valu("v_lshl_add_u32", vr(V_T1), vr(V_T1), 1, vr(V_M0))
    b.valu("v_lshl_add_u32", vr(V_T0), vr(V_T1), 5, vr(V_T0))
    b.salu("s_and_b32", sr(S_T0), sr(S_R), 1)
    b.salu("s_lshl_b32", sr(S_T0), sr(S_T0), 6)
    b.valu("v_xor_b32", vr(V_T0), sr(S_T0), vr(V_T0))
    b.salu("s_lshl_b32", sr(S_T1), sr(S_T0), 9)
    b.salu("s_add_u32", sr(S_T1), sr(S_T1), WO_OFF)
    b.valu("v_add_u32", vr(V_TW0), sr(S_T1), vr(V_T0))
    b.valu("v_xor_b32", vr(V_TW1), 64, vr(V_TW0))
    b.salu("s_lshl_b32", sr(S_T1), sr(S_T0), 3)
    b.salu("s_lshl_b32", sr(S_T0), sr(S_RB2), 10)
    b.salu("s_add_u32", sr(S_T0), sr(S_T0), sr(S_T1))
    b.salu("s_add_u32", sr(S_T0), sr(S_T0), F2)
    b.valu("v_and_b32", vr(V_T0), 3, vr(V_L))
    b.valu("v_lshlrev_b32", vr(V_T0), 7, vr(V_T0))
    b.valu("v_add_u32", vr(V_FO), sr(S_T0), vr(V_T0))
    b.salu("s_lshl_b32", sr(S_T0), sr(S_R), 12)
    b.valu("v_add_u32", vr(V_RA), sr(S_T0), vr(V_QO))
    b.valu("v_add_u32", vr(V_RA2), 2 * RING, vr(V_RA))
    b.valu("v_add_u32", vr(V_EW), EX_OFF, vr(V_RA))
    b.valu("v_xor_b32", vr(V_ER), 4096, vr(V_RA))
    b.valu("v_add_u32", vr(V_ER), EX_OFF, vr(V_ER))
    b.salu("s_lshr_b32", sr(S_T0), sr(S_R), 1)
    b.salu("s_and_b32", sr(S_T1), sr(S_R), 1)
    b.salu("s_lshl_b32", sr(S_T1), sr(S_T1), 5)
    b.salu("s_add_u32", sr(S_T1), sr(S_T1), sr(S_T0))
    b.salu("s_lshl_b32", sr(S_T1), sr(S_T1), 10)
    b.valu("v_add_u32", vr(V_OO), sr(S_T1), vr(V_QO))
    b.salu("s_lshl_b32", sr(S_T0), sr(S_T0), 15)
    b.salu("s_lshl_b32", sr(S_T1), sr(S_CB), 7)
    b.salu("s_add_u32", sr(S_T0), sr(S_T0), sr(S_T1))
    b.salu("s_and_b32", sr(S_T1), sr(S_R), 1)
    b.salu("s_lshl_b32", sr(S_T1), sr(S_T1), 6)
    b.salu("s_add_u32", sr(S_T0), sr(S_T0), sr(S_T1))
    b.valu("v_and_b32", vr(V_T0), 31, vr(V_L))
    b.valu("v_lshlrev_b32", vr(V_T0), 10, vr(V_T0))
    b.valu("v_lshrrev_b32", vr(V_T1), 5, vr(V_L))
    b.valu("v_lshl_add_u32", vr(V_T0), vr(V_T1), 4, vr(V_T0))
    b.valu("v_add_u32", vr(V_XOFF), sr(S_T0), vr(V_T0))
    b.wait(vm=0)
    arrive(b, CNT + 8, S_F, V_T0)
    b.raw("  s_setprio 0")
    stamp(b, 11)
    b.vmem_load("buffer_load_dwordx4", vr(V_XR, 4), vr(V_XOFF), sr(S_XO, 4), "0", tag="xr")
    b.vmem_load("buffer_load_dwordx4", vr(V_XR + 4, 4), vr(V_XOFF), sr(S_XO, 4), "0", mods="offset:32", tag="xr")
    b.vmem_load("buffer_load_dwordx2", vr(V_R, 2), vr(V_FO), sr(S_WS, 4), "0", mods="sc1", tag="fl")
    lds_check_issue(b, WOL, V_SY, V_R + 4, "wl")
    b.wait(vm="xr")
    for e in range(2):
        for i in range(4):
            b.valu("v_lshlrev_b32", vr(V_AC + 8 * e + 2 * i), 16, vr(V_XR + 4 * e + i))
            b.valu("v_and_b32", vr(V_AC + 8 * e + 2 * i + 1), "0xffff0000", vr(V_XR + 4 * e + i))
    for e in range(2):
        for i in range(4):
            b.valu("v_permlane32_swap_b32", vr(V_AC + 8 * e + i), vr(V_AC + 8 * e + 4 + i))
    poll(b, V_R, V_FO, first_issued=True)
    stamp(b, 12)
    for s in range(16):
        if s % 2 == 0 and s:
            b.salu("s_mov_b32", sr(S_SO), (s // 2) * 4096)
        b.vmem_load("buffer_load_dwordx4", vr(V_A + 4 * s, 4), vr(V_OO), sr(S_O, 4), sr(S_SO) if s >= 2 else "0",
                    mods=("offset:2048 " if s % 2 else "") + "sc1", tag=f"o{s}")
    lds_check(b, WOL, 1, V_SY, V_R + 4, "wl")

    def read_wo(s):
        for j in range(2):
            for q in range(2):
                b.ds_read("ds_read_b64_tr_b16", vr(V_W2 + 8 * (s % 4) + 4 * j + 2 * q, 2), vr(V_TW1 if j else V_TW0), s * 2048 + q * 1024, tag=f"u{s}")
    for s in range(3):
        read_wo(s)
    for s in range(16):
        if s + 3 < 16:
            read_wo(s + 3)
        b.wait(vm=f"o{s}", lg=f"u{s}")
        b.mfma(vr(V_AC + 16, 16), vr(V_W2 + 8 * (s % 4) + 4, 4), vr(V_A + 4 * s, 4), vr(V_AC + 16, 16) if s else "0")
        b.mfma(vr(V_AC, 16), vr(V_W2 + 8 * (s % 4), 4), vr(V_A + 4 * s, 4), vr(V_AC, 16))
    for g in range(4):
        b.ds_write("ds_write_b128", vr(V_EW), vr(V_AC + 16 + 4 * g, 4), g * 1024)
    b.wait(lg=0)
    stamp(b, 13)
    b.barrier()
    for g in range(4):
        for P in range(4):
            b.ds_read("ds_read_b128", vr(V_R + 20 * g + 4 * P, 4), vr(V_RA if P < 2 else V_RA2), (P % 2) * RING + g * 1024, tag=f"r{g}")
        b.ds_read("ds_read_b128", vr(V_R + 20 * g + 16, 4), vr(V_ER), g * 1024, tag=f"r{g}")
    for g in range(4):
        R = V_R + 20 * g
        b.wait(lg=f"r{g}")
        for i in range(4):
            b.valu("v_add_f32", vr(R + i), vr(R + i), vr(R + 4 + i))
            b.valu("v_add_f32", vr(R + 8 + i), vr(R + 8 + i), vr(R + 12 + i))
            b.valu("v_add_f32", vr(V_AC + 4 * g + i), vr(V_AC + 4 * g + i), vr(R + 16 + i))
        for i in range(4):
            b.valu("v_add_f32", vr(R + i), vr(R + i), vr(R + 8 + i))
        for i in range(4):
            b.valu("v_add_f32", vr(V_AC + 4 * g + i), vr(V_AC + 4 * g + i), vr(R + i))
        for i in range(2):
            b.valu("v_cvt_pk_bf16_f32", vr(X + 2 * g + i), vr(V_AC + 4 * g + 2 * i), vr(V_AC + 4 * g + 2 * i + 1))
        if g % 2 == 1:
            e = g // 2
            for i in range(2):
                b.valu("v_permlane32_swap_b32", vr(X + 4 * e + i), vr(X + 4 * e + 2 + i))
            b.vmem_store("buffer_store_dwordx4", vr(X + 4 * e, 4), vr(V_XOFF), sr(S_OUT, 4), "0",
                         mods=("offset:32 " if e else "") + ("sc1" if 'osc1' in OPT else ""))
    if STAMPS:
        b.raw("  s_waitcnt vmcnt(0)")
        stamp(b, 14)
        stamp_out(b)
    b.raw("  s_endpgm")
    for s_ in stubs:
        b.raw(s_)


NAME = "parallel_sum__sliding_block__glu_gated_reglu__prompt_kernel"
if __name__ == "__main__":
    hdr = open("parallel_sum__sliding_block__glu_gated_reglu__prompt.s.ref").read().split("; Override launch")[0]
    s = hdr + "; @launch grid=(256,1,1) block=(512,1,1) lds=163840\n"
    s += '.amdgcn_target "amdgcn-amd-amdhsa--gfx950"\n.text\n'
    s += kernel(NAME)
    s += f'''.section .rodata,"a"
.p2align 6
.amdhsa_kernel {NAME}
  .amdhsa_next_free_vgpr 256
  .amdhsa_next_free_sgpr 100
  .amdhsa_accum_offset 256
  .amdhsa_group_segment_fixed_size 0
  .amdhsa_kernarg_size 80
  .amdhsa_user_sgpr_count 2
  .amdhsa_user_sgpr_kernarg_segment_ptr 1
  .amdhsa_system_sgpr_workgroup_id_x 1
.end_amdhsa_kernel
'''
    open(sys.argv[1], "w").write(s)
```

```python
from asmb import *
import os, sys, struct
OPT = set(os.environ.get('OPT', '').split(','))
STAMPS = "stamps" in sys.argv


def optval(name, default):
    for o in OPT:
        if o.startswith(name + "="):
            return int(o.split("=")[1])
    return default


def f32bits(x):
    return struct.unpack("<I", struct.pack("<f", x))[0]


QF, KF, VF, HF, OF = 0x000000, 0x200000, 0x400000, 0x600000, 0xC00000
HF_RB = 86 * 2048
F0, F1, F2 = 0xE00000, 0xE08000, 0xE10000
RSG = 0xE18000
CSG = 0xE20000
WS_USED = 0xE60000

PA = 28672
SB = 24704
S1B = 12288 + 32
UB_SLOT = {8: 4, 9: 5, 10: 3, 11: 0, 12: 1, 13: 2, 14: 4, 15: 5}
WINB = 2 * SB
RD = 9
RING = RD * 2048
WO_OFF = 4 * RING
EX_OFF = WO_OFF + 65536
MISC = 159744
assert EX_OFF + 16384 <= MISC
CS_OFF = MISC
ST_OFF = MISC + 1536
CP_OFF = MISC + 2560
NC_OFF = MISC + 2560
SY_OFF = MISC + 4096 - 128
LAND, CONS, WOL, CNT, LAND1 = SY_OFF, SY_OFF + 16, SY_OFF + 32, SY_OFF + 48, SY_OFF + 64
NC_OFF = SY_OFF - 16
CP_OFF = EX_OFF + 16384
assert CP_OFF + 2048 <= MISC and CP_OFF >= 6 * SB
QSCALE = 0.25 * 1.4426950408889634
NDOWN = 22

S_X, S_WA, S_WS, S_WB, S_DBG, S_C = 24, 28, 32, 52, 56, 44
S_WV, S_R, S_P, S_RB, S_CC = 36, 37, 38, 39, 40
S_SOFF, S_T0, S_T1 = 41, 42, 43
S_T2, S_T3, S_U0, S_U1 = 48, 49, 50, 51
S_R4K, S_R3K, S_R6K, S_FS = 60, 61, 62, 63
S_MASK = 64
S_CSO, S_CARE, S_E = 96, 64, 97
S_ST = 98

V_L = 0
V_NON = 252
V_Z = 254
V_STP = 255


def stamp(b, i):
    if STAMPS:
        b.raw(f"  {'s_memtime' if 'cyc' in OPT else 's_memrealtime'} s[{S_ST}:{S_ST+1}]")
        b.raw("  s_waitcnt lgkmcnt(0)")
        b.raw(f"  v_writelane_b32 v{V_STP}, s{S_ST}, {i}")


def stamp_out(b, n=15):
    if not STAMPS:
        return
    b.raw("  s_mov_b64 exec, -1")
    b.raw(f"  s_mov_b32 s{S_WS+2}, 0x1000000")
    b.raw("  s_lshl_b32 s3, s2, 3")
    b.raw(f"  s_add_u32 s3, s3, s{S_WV}")
    b.raw("  s_lshl_b32 s3, s3, 2")
    b.raw("  s_add_u32 s3, s3, 0xF00000")
    b.raw("  v_lshlrev_b32 v1, 13, v0")
    b.raw(f"  s_mov_b64 exec, {(1 << n) - 1}")
    b.raw(f"  buffer_store_dword v{V_STP}, v1, s[{S_WS}:{S_WS+3}], s3 offen")


def srd(b, s, lo, hi, size, add=None):
    if add is None:
        b.salu("s_mov_b32", sr(s), lo)
        b.salu("s_mov_b32", sr(s + 1), hi)
    else:
        b.salu("s_add_u32", sr(s), lo, add)
        b.salu("s_addc_u32", sr(s + 1), hi, 0)
    b.salu("s_mov_b32", sr(s + 2), size)
    b.salu("s_mov_b32", sr(s + 3), 0x20000)


def guard(b, exit_label):
    b.salu("s_add_u32", "s3", "s3", 1)
    b.salu("s_cmp_gt_u32", "s3", 0x40000)
    b.branch("s_cbranch_scc1", exit_label)


def poll(b, vtmp, vaddr, first_issued=False, slp=None):
    lp, lq = b.newlabel("poll"), b.newlabel("pok")
    if not first_issued:
        b.vmem_load("buffer_load_dwordx2", vr(vtmp, 2), vr(vaddr), sr(S_WS, 4), "0", mods="sc1", tag="fl")
    b.wait(vm="fl")
    b.label(lp)
    b.valu("v_cmp_ne_u64", "vcc", vr(vtmp, 2), vr(V_NON, 2))
    b.branch("s_cbranch_vccz", lq)
    b.opt_begin()
    guard(b, lq)
    b.raw(f"  s_sleep {slp if slp is not None else optval('slp', 8)}")
    b.vmem_load("buffer_load_dwordx2", vr(vtmp, 2), vr(vaddr), sr(S_WS, 4), "0", mods="sc1")
    b.wait(vm=0)
    b.branch("s_branch", lp)
    b.opt_end()
    b.label(lq)


def arrive(b, cnt_off, s_flag, vt):
    b.valu("v_mov_b32", vr(vt), cnt_off)
    b.valu("v_mov_b32", vr(vt + 1), 1)
    b.salu("s_mov_b64", "exec", 1)
    b.raw(f"  ds_add_rtn_u32 {vr(vt+2)}, {vr(vt)}, {vr(vt+1)}")
    b.wait(lg=0)
    b.valu("v_readfirstlane_b32", sr(S_T2), vr(vt + 2))
    ld = b.newlabel("nf")
    b.salu("s_cmp_lg_u32", sr(S_T2), 3)
    b.branch("s_cbranch_scc1", ld)
    b.opt_begin()
    b.vmem_store("buffer_store_dwordx2", vr(V_NON, 2), vr(V_Z), sr(S_WS, 4), sr(s_flag), mods="sc1")
    b.opt_end()
    b.label(ld)
    b.salu("s_mov_b64", "exec", -1)


def lds_signal(b, word, val, vt):
    b.salu("s_lshl_b32", sr(S_T2), sr(S_R), 2)
    b.salu("s_add_u32", sr(S_T2), sr(S_T2), word)
    b.valu("v_mov_b32", vr(vt), sr(S_T2))
    b.valu("v_mov_b32", vr(vt + 1), val)
    b.ds_write("ds_write_b32", vr(vt), vr(vt + 1), 0)


def lds_check_issue(b, word, va, vt, tag):
    b.ds_read("ds_read_b128", vr(vt, 4), vr(va), word - SY_OFF, tag=tag)


def lds_check(b, word, val, va, vt, tag, slp=0):
    lp, lq = b.newlabel("lsp"), b.newlabel("lok")
    b.wait(lg=tag)
    b.label(lp)
    b.valu("v_min3_u32", vr(vt), vr(vt), vr(vt + 1), vr(vt + 2))
    b.valu("v_min_u32", vr(vt), vr(vt), vr(vt + 3))
    b.valu("v_cmp_gt_u32", "vcc", val, vr(vt))
    b.branch("s_cbranch_vccz", lq)
    b.opt_begin()
    guard(b, lq)
    if slp:
        b.raw(f"  s_sleep {slp}")
    b.ds_read("ds_read_b128", vr(vt, 4), vr(va), word - SY_OFF)
    b.wait(lg=0)
    b.branch("s_branch", lp)
    b.opt_end()
    b.label(lq)


def w2_touch_mall(b, sc, va, vd):
    l1 = b.newlabel("w2")
    b.salu("s_cmp_lg_u32", sr(S_R), 1)
    b.branch("s_cbranch_scc1", l1)
    b.opt_begin()
    b.salu("s_sub_u32", sr(S_U1), "s2", 172)
    b.salu("s_cmp_lt_u32", "s2", 172)
    b.salu("s_cselect_b32", sr(sc), "s16", "s8")
    b.salu("s_cselect_b32", sr(sc + 1), "s17", "s9")
    b.salu("s_cselect_b32", sr(S_U0), "s2", sr(S_U1))
    b.salu("s_mov_b32", sr(sc + 2), 512 * 1024)
    b.salu("s_cselect_b32", sr(sc + 2), 1376 * 1024, sr(sc + 2))
    b.salu("s_mov_b32", sr(sc + 3), 0x20000)
    b.salu("s_lshl_b32", sr(S_U0), sr(S_U0), 13)
    b.valu("v_lshlrev_b32", vr(va), 7, vr(V_L))
    b.vmem_load("buffer_load_dword", vr(vd), vr(va), sr(sc, 4), sr(S_U0))
    b.opt_end()
    b.label(l1)


def w2_touch_l2(b, sc, va, vd):
    b.salu("s_lshr_b32", sr(S_U0), "s2", 3)
    b.salu("s_sub_u32", sr(S_U1), sr(S_U0), 22)
    b.salu("s_cmp_lt_u32", sr(S_U0), 22)
    b.salu("s_cselect_b32", sr(sc), "s16", "s8")
    b.salu("s_cselect_b32", sr(sc + 1), "s17", "s9")
    b.salu("s_cselect_b32", sr(S_U0), sr(S_U0), sr(S_U1))
    b.salu("s_mov_b32", sr(sc + 2), 512 * 1024)
    b.salu("s_cselect_b32", sr(sc + 2), 1376 * 1024, sr(sc + 2))
    b.salu("s_mov_b32", sr(sc + 3), 0x20000)
    b.salu("s_lshl_b32", sr(S_U0), sr(S_U0), 16)
    b.salu("s_lshl_b32", sr(S_U1), sr(S_R), 14)
    b.salu("s_add_u32", sr(S_U0), sr(S_U0), sr(S_U1))
    b.valu("v_lshlrev_b32", vr(va), 7, vr(V_L))
    b.vmem_load("buffer_load_dword", vr(vd), vr(va), sr(sc, 4), sr(S_U0), tag="pf")
    b.salu("s_add_u32", sr(S_U0), sr(S_U0), 8192)
    b.vmem_load("buffer_load_dword", vr(vd + 1), vr(va), sr(sc, 4), sr(S_U0), tag="pf")


def bf16r(b, reg):
    b.valu("v_cvt_pk_bf16_f32", vr(reg), vr(reg), vr(reg))
    b.valu("v_lshlrev_b32", vr(reg), 16, vr(reg))


def rows12_offsets(b, dst, n, stride, s_base, t0, t1):
    for i in range(n):
        b.valu("v_add_u32", vr(t0), 64 * i, vr(V_L))
        b.valu("v_mul_u32_u24", vr(t1), 5462, vr(t0))
        b.valu("v_lshrrev_b32", vr(t1), 16, vr(t1))
        b.valu("v_mul_u32_u24", vr(t1), stride - 192, vr(t1))
        b.valu("v_lshl_add_u32", vr(t1), vr(t0), 4, vr(t1))
        b.salu("s_sub_u32", sr(S_T2), sr(s_base), 1024 * (i % 4))
        b.valu("v_add_u32", vr(dst + i), sr(S_T2), vr(t1))


def ub_setup(b, dst, t0, t1):
    b.salu("s_cmp_lt_u32", sr(S_R), 2)
    b.salu("s_cselect_b32", sr(S_WB), "s12", "s14")
    b.salu("s_cselect_b32", sr(S_WB + 1), "s13", "s15")
    b.salu("s_cmp_lt_u32", sr(S_CC), 15)
    b.salu("s_cselect_b32", sr(S_WB + 2), 512 * 2752, 0)
    b.salu("s_mov_b32", sr(S_WB + 3), 0x20000)
    b.salu("s_and_b32", sr(S_U0), sr(S_R), 1)
    b.salu("s_mul_i32", sr(S_R6K), sr(S_U0), 6144)
    b.salu("s_lshr_b32", sr(S_U1), sr(S_R), 1)
    b.salu("s_mul_i32", sr(S_U1), sr(S_U1), S1B)
    b.salu("s_add_u32", sr(S_R6K), sr(S_R6K), sr(S_U1))
    b.salu("s_mul_i32", sr(S_U0), sr(S_U0), 32 * 2752)
    b.salu("s_lshl_b32", sr(S_U1), sr(S_FS), 5)
    b.salu("s_add_u32", sr(S_U0), sr(S_U0), sr(S_U1))
    rows12_offsets(b, dst, 6, 2752, S_U0, t0, t1)


def ub_step(b, vq, t, n):
    if n % 4 == 0:
        b.salu("s_add_u32", "m0", sr(S_R6K), UB_SLOT[t] * SB + 1024 * n)
    if n == 0:
        b.salu("s_mov_b32", sr(S_SOFF), (t - 8) * 64 * 2752)
    b.vmem_dma(vr(vq + n), sr(S_WB, 4), sr(S_SOFF), mods=f"offset:{1024*(n%4)}" if n % 4 else "", tag=f"U{t}")


def xread_setup(b, vxb, t0, t1, t2):
    b.valu("v_and_b32", vr(t0), 31, vr(V_L))
    b.salu("s_lshl_b32", sr(S_T0), sr(S_R), 5)
    b.valu("v_add_u32", vr(t0), sr(S_T0), vr(t0))
    b.valu("v_lshrrev_b32", vr(t1), 1, vr(t0))
    b.valu("v_lshrrev_b32", vr(t2), 5, vr(V_L))
    b.valu("v_xor_b32", vr(t1), vr(t1), vr(t2))
    b.valu("v_and_b32", vr(t1), 7, vr(t1))
    b.valu("v_lshlrev_b32", vr(t1), 4, vr(t1))
    b.valu("v_lshl_add_u32", vr(vxb), vr(t0), 7, vr(t1))
    for s in range(1, 4):
        b.valu("v_xor_b32", vr(vxb + s), 32 * s, vr(vxb))


def tr192(b, dst, chmul, t0, t1):
    b.valu("v_lshrrev_b32", vr(t0), 5, vr(V_L))
    b.valu("v_lshlrev_b32", vr(t0), 3, vr(t0))
    b.valu("v_bfe_u32", vr(t1), vr(V_L), 2, 2)
    b.valu("v_add_u32", vr(t0), vr(t0), vr(t1))
    b.valu("v_mul_u32_u24", vr(t0), 192, vr(t0))
    b.valu("v_and_b32", vr(t1), 3, vr(V_L))
    b.valu("v_lshl_add_u32", vr(t0), vr(t1), 3, vr(t0))
    b.valu("v_bfe_u32", vr(t1), vr(V_L), 4, 1)
    b.valu("v_mul_u32_u24", vr(t1), chmul, vr(t1))
    b.valu("v_add_u32", vr(dst), vr(t0), vr(t1))


def kernel(name):
    b = B()
    b.raw(f".globl {name}\n.p2align 8\n.type {name},@function\n{name}:")
    b.salu("s_cmp_ge_u32", "s2", 256)
    b.branch("s_cbranch_scc1", "L_END")
    stamp(b, 0)
    b.raw("  s_load_dwordx16 s[4:19], s[0:1], 0")
    b.raw("  s_load_dwordx4 s[20:23], s[0:1], 64")
    b.raw(f"  s_getpc_b64 s[{S_U0}:{S_U0+1}]")
    b.label("L_PC")
    b.valu("v_lshlrev_b32", "v2", 7, "v0")
    b.valu("v_min_u32", "v2", "L_END-L_PC", "v2")
    b.raw(f"  global_load_dword v251, v2, s[{S_U0}:{S_U0+1}]")
    b.valu("v_lshrrev_b32", "v1", 6, "v0")
    b.valu("v_and_b32", "v0", 63, "v0")
    b.valu("v_readfirstlane_b32", sr(S_WV), "v1")
    b.salu("s_and_b32", sr(S_T0), "s2", 1)
    b.salu("s_lshl_b32", sr(S_T0), sr(S_T0), 3)
    b.salu("s_bfe_u32", sr(S_T1), "s2", (3 << 16) | 3)
    b.salu("s_add_u32", sr(S_RB), sr(S_T0), sr(S_T1))
    b.salu("s_bfe_u32", sr(S_T0), "s2", (2 << 16) | 1)
    b.salu("s_lshl_b32", sr(S_T0), sr(S_T0), 2)
    b.salu("s_lshr_b32", sr(S_T1), "s2", 6)
    b.salu("s_add_u32", sr(S_CC), sr(S_T0), sr(S_T1))
    b.salu("s_and_b32", sr(S_R), sr(S_WV), 3)
    b.salu("s_lshr_b32", sr(S_P), sr(S_WV), 2)
    b.salu("s_mul_i32", sr(S_FS), sr(S_CC), 6)
    b.salu("s_min_u32", sr(S_FS), sr(S_FS), 80)
    b.valu("v_mov_b32", vr(V_Z), 0)
    b.salu("s_mov_b32", "s3", 0)
    b.salu("s_cmp_eq_u32", sr(S_P), 0)
    b.branch("s_cbranch_scc1", "L_P0")
    t1 = p1()
    t0 = p0()
    return b.text() + t1 + t0 + "L_END:\n  s_endpgm\n"


def common_srds(b):
    b.wait(lg=0)
    b.salu("s_lshl_b32", sr(S_T0), sr(S_RB), 17)
    srd(b, S_X, "s4", "s5", 0x20000, add=sr(S_T0))
    srd(b, S_WA, "s6", "s7", 512 * 3072)
    srd(b, S_WS, "s22", "s23", WS_USED)
    srd(b, S_DBG, "s20", "s21", 256)


def p1():
    b = B(); b.nlabel = 1000
    V_XO0, V_XO1, V_T0, V_T1, V_T2 = 1, 2, 3, 4, 5
    V_TRB = 1
    V_SY, V_CK = 4, 8
    V_RING = 8
    V_ACC = 32
    V_X = 128
    V_WA = 32
    V_UB, V_XB = 36, 44
    S_H, S_WD, S_WO = 72, 76, 80
    S_RB2, S_CB, S_M0B, S_KA, S_KB, S_F = 84, 85, 86, 87, 88, 89

    def pref_b(t, half=None):
        if half in (None, 0):
            b.salu("s_add_u32", "m0", sr(S_M0B), (t % RD) * 2048)
            b.salu("s_mov_b32", sr(S_KB), t * 16384)
            b.vmem_dma("v7", sr(S_WD, 4), sr(S_KB), tag=f"b{t}")
        if half in (None, 1):
            b.salu("s_mov_b32", sr(S_KB), t * 16384 + 8192 - 1024)
            b.vmem_dma("v7", sr(S_WD, 4), sr(S_KB), mods="offset:1024", tag=f"b{t}")
    S_PS = 64

    def pstamp(i):
        if STAMPS:
            b.raw(f"  {'s_memtime' if 'cyc' in OPT else 's_memrealtime'} s[{S_ST}:{S_ST+1}]")
            b.raw("  s_waitcnt lgkmcnt(0)")
            b.raw(f"  s_mov_b32 s{S_PS+i}, s{S_ST}")
    if STAMPS:
        b.raw(f"  s_mov_b32 s{S_PS}, s{S_ST}")
    b.salu("s_lshl_b32", sr(S_R4K), sr(S_R), 12)
    b.valu("v_lshrrev_b32", vr(V_T0), 3, vr(V_L))
    b.salu("s_lshl_b32", sr(S_T0), sr(S_R), 5)
    b.valu("v_add_u32", vr(V_T1), sr(S_T0), vr(V_T0))
    b.valu("v_lshrrev_b32", vr(V_T2), 1, vr(V_T1))
    b.valu("v_xor_b32", vr(V_T2), vr(V_T2), vr(V_L))
    b.valu("v_and_b32", vr(V_T2), 7, vr(V_T2))
    b.valu("v_lshlrev_b32", vr(V_T2), 4, vr(V_T2))
    b.valu("v_lshl_add_u32", vr(V_XO0), vr(V_T1), 10, vr(V_T2))
    b.valu("v_xor_b32", vr(V_XO1), 64, vr(V_XO0))
    b.valu("v_add_u32", vr(V_XO1), 8192 - 1024, vr(V_XO1))
    b.salu("s_mul_i32", sr(S_R3K), sr(S_R), 3072)
    b.salu("s_mul_i32", sr(S_U0), sr(S_R), 16 * 3072)
    b.salu("s_mul_i32", sr(S_U1), sr(S_CC), 192)
    b.salu("s_add_u32", sr(S_U0), sr(S_U0), sr(S_U1))
    rows12_offsets(b, V_WA, 3, 3072, S_U0, V_T0, V_T1)
    common_srds(b)

    def a_steps(t):
        st = []
        base = (t % 3) * PA

        def xs(n):
            if n == 0:
                b.salu("s_add_u32", "m0", sr(S_R4K), base)
                b.salu("s_mov_b32", sr(S_SOFF), t * 128)
            if n == 2:
                b.salu("s_add_u32", sr(S_SOFF), sr(S_SOFF), 16384 - 2048)
            b.vmem_dma(vr(V_XO1 if n % 2 else V_XO0), sr(S_X, 4), sr(S_SOFF), mods=f"offset:{1024*n}" if n else "", tag=f"A{t}")

        def ws_(n):
            if n == 0:
                b.salu("s_add_u32", "m0", sr(S_R3K), base + 16384)
                b.salu("s_mov_b32", sr(S_SOFF), t * 64 * 3072)
            b.vmem_dma(vr(V_WA + n), sr(S_WA, 4), sr(S_SOFF), mods=f"offset:{1024*n}" if n else "", tag=f"A{t}")
        return [lambda n=n: xs(n) for n in range(4)] + [lambda n=n: ws_(n) for n in range(3)]
    for f in a_steps(0):
        f()
    b.salu("s_or_b32", sr(S_T0), "s2", sr(S_R))
    b.salu("s_cmp_lg_u32", sr(S_T0), 0)
    b.branch("s_cbranch_scc1", "L_NL")
    b.opt_begin()
    b.raw(f"  s_memrealtime s[{S_T2}:{S_T2+1}]")
    b.raw("  s_waitcnt lgkmcnt(0)")
    b.salu("s_or_b32", sr(S_T2 + 1), sr(S_T2 + 1), "0x80000000")
    b.valu("v_mov_b32", vr(V_NON), sr(S_T2))
    b.valu("v_mov_b32", vr(V_NON + 1), sr(S_T2 + 1))
    b.salu("s_mov_b64", "exec", 1)
    b.vmem_store("buffer_store_dwordx2", vr(V_NON, 2), vr(V_Z), sr(S_DBG, 4), "0", mods="sc1")
    b.salu("s_mov_b64", "exec", -1)
    b.opt_end()
    b.label("L_NL")
    for f in a_steps(1):
        f()
    xread_setup(b, V_XB, V_T0, V_T1, V_T2)
    ub_setup(b, V_UB, V_T0, V_T1)
    b.wait(vm="A0", lg=0)
    b.barrier()
    pstamp(1)
    UBP1 = {6: [8, 9], 7: [10, 11]} if 'ubl' not in OPT else {6: [8], 7: [9]}
    for t in range(8):
        steps = a_steps(t + 2) if t + 2 < 8 else []
        for u in UBP1.get(t, []):
            steps += [lambda n=n, u=u: ub_step(b, V_UB, u, n) for n in range(6)]
        for f in steps[:2]:
            f()
        for s in range(4):
            ks = 4 * t + s
            b.ds_read("ds_read_b128", vr(V_X + 4 * ks, 4), vr(V_XB + s), (t % 3) * PA, tag=f"x{ks}")
        for f in steps[2:]:
            f()
        if t == 7:
            tr192(b, V_TRB, S1B, V_T1 + 2, V_T1 + 3)
            b.valu("v_add_u32", vr(V_TRB + 1), WINB, vr(V_TRB))
            b.valu("v_add_u32", vr(V_TRB + 2), 2 * WINB, vr(V_TRB))
            b.valu("v_mov_b32", vr(V_SY), SY_OFF)
            b.salu("s_lshl_b32", sr(S_T0), sr(S_R), 2)
            b.salu("s_add_u32", sr(S_T0), sr(S_T0), CONS)
            b.valu("v_mov_b32", "v5", sr(S_T0))
            srd(b, S_WD, "s16", "s17", 1376 * 1024)
            b.valu("v_bfe_u32", "v6", vr(V_L), 4, 1)
            b.valu("v_lshlrev_b32", "v6", 2, "v6")
            b.valu("v_xor_b32", "v6", "v6", vr(V_L))
            b.valu("v_and_b32", "v6", 7, "v6")
            b.valu("v_lshlrev_b32", "v6", 4, "v6")
            b.valu("v_lshrrev_b32", "v7", 3, vr(V_L))
            b.valu("v_lshl_add_u32", "v7", "v7", 10, "v6")
            b.salu("s_lshr_b32", sr(S_T0), "s2", 5)
            b.salu("s_lshl_b32", sr(S_T0), sr(S_T0), 7)
            b.salu("s_mul_i32", sr(S_T1), sr(S_R), NDOWN * 16384)
            b.salu("s_add_u32", sr(S_T1), sr(S_T1), sr(S_T0))
            b.valu("v_add_u32", "v7", sr(S_T1), "v7")
            b.salu("s_mul_i32", sr(S_M0B), sr(S_R), RING)
        b.wait(vm=f"A{t+1}" if t < 7 else "U8", lg=0)
        b.barrier()
        if t + 1 in (2, 4, 8):
            pstamp({2: 2, 4: 3, 8: 4}[t + 1])
    LA = 4
    NF = 6 * 32
    EARLY = False
    KT = optval("kt", 28)
    order = [(ks, blk) for ks in range(KT) for blk in range(6)] + [(ks, blk) for blk in range(6) for ks in range(KT, 32)]

    def read_w(f):
        ks, blk = order[f]
        t, s = 8 + ks // 4, ks % 4
        r0 = V_RING + 4 * (f % 5)
        for q in range(2):
            off = UB_SLOT[t] * SB + s * 3072 + q * 768 + blk * 32
            b.ds_read("ds_read_b64_tr_b16", vr(r0 + 2 * q, 2), vr(V_TRB + off // WINB), off % WINB, tag=f"w{f}")
    V_CKT = V_RING + 20
    b.raw(f"  s_setprio {optval('pr1', 2)}")
    V_NM, V_RS, V_CSRD, V_STO, V_A1 = 128, 129, 130, 131, 132
    TS = [136, 144]

    def csrd(n):
        blk, g = divmod(n, 2)
        T = TS[n % 2]
        b.ds_read("ds_read_b128", vr(T, 4), vr(V_CSRD), blk * 128 + g * 32, tag=f"c{n}")
        b.ds_read("ds_read_b128", vr(T + 4, 4), vr(V_CSRD), blk * 128 + 64 + g * 32, tag=f"c{n}")

    def epi_setup_ops():
        ops = []
        Vv = lambda *a, **k: ops.append(lambda: b.valu(*a, **k))
        S = lambda *a: ops.append(lambda: b.salu(*a))
        Vv("v_and_b32", vr(V_A1), 31, vr(V_L))
        S("s_lshl_b32", sr(S_T0), sr(S_R), 8)
        S("s_add_u32", sr(S_T0), sr(S_T0), ST_OFF)
        Vv("v_lshl_add_u32", vr(V_A1), vr(V_A1), 3, sr(S_T0))
        ops.append(lambda: b.ds_read("ds_read_b64", vr(V_NM, 2), vr(V_A1), 0, tag="str"))
        Vv("v_lshrrev_b32", vr(V_CSRD), 5, vr(V_L))
        Vv("v_lshlrev_b32", vr(V_CSRD), 4, vr(V_CSRD))
        Vv("v_add_u32", vr(V_CSRD), CS_OFF + 384, vr(V_CSRD))
        Vv("v_lshlrev_b32", vr(V_STO), 4, vr(V_L))
        ops.append(lambda: csrd(0))
        S("s_lshl_b32", sr(S_T0), sr(S_RB), 1)
        S("s_lshr_b32", sr(S_T1), sr(S_R), 1)
        S("s_add_u32", sr(S_T0), sr(S_T0), sr(S_T1))
        S("s_mul_i32", sr(S_T3), sr(S_T0), HF_RB)
        S("s_and_b32", sr(S_T1), sr(S_R), 1)
        S("s_lshl_b32", sr(S_T1), sr(S_T1), 10)
        S("s_add_u32", sr(S_T3), sr(S_T3), sr(S_T1))
        S("s_lshl_b32", sr(S_T1), sr(S_FS), 11)
        S("s_add_u32", sr(S_T3), sr(S_T3), sr(S_T1))
        S("s_add_u32", sr(S_T3), sr(S_T3), HF)
        ops.append(lambda: (b.salu("s_cmp_lt_u32", sr(S_CC), 15), b.salu("s_cselect_b32", sr(S_T3), sr(S_T3), "0x40000000")))
        ops.append(lambda: b.wait(lg="str"))
        Vv("v_mul_f32", vr(V_RS), vr(V_RS), vr(V_RS))
        return ops

    def epi_ops(blk):
        ops = []
        Vv = lambda *a, **k: ops.append(lambda: b.valu(*a, **k))
        acc = V_ACC + 16 * blk
        for g in range(2):
            n = 2 * blk + g
            T = TS[n % 2]
            if n + 1 < 12:
                ops.append(lambda n=n: csrd(n + 1))
            ops.append(lambda n=n: b.wait(lg=f"c{n}"))
            for i in range(4):
                Vv("v_fmac_f32", vr(acc + 4 * g + i), vr(V_NM), vr(T + i))
            for i in range(4):
                Vv("v_fmac_f32", vr(acc + 8 + 4 * g + i), vr(V_NM), vr(T + 4 + i))
            for i in range(4):
                Vv("v_max_f32", vr(acc + 4 * g + i), 0, vr(acc + 4 * g + i))
            for i in range(4):
                Vv("v_mul_f32", vr(acc + 8 + 4 * g + i), vr(V_RS), vr(acc + 8 + 4 * g + i))
            for i in range(4):
                Vv("v_mul_f32", vr(acc + 4 * g + i), vr(acc + 4 * g + i), vr(acc + 8 + 4 * g + i))
        for i in range(4):
            Vv("v_cvt_pk_bf16_f32", vr(acc + i), vr(acc + 2 * i), vr(acc + 2 * i + 1))

        def st():
            b.salu("s_add_u32", sr(S_T0), sr(S_T3), (blk // 2) * 4096)
            b.vmem_store("buffer_store_dwordx4", vr(acc, 4), vr(V_STO), sr(S_WS, 4), sr(S_T0),
                         mods=("offset:2048 " if blk % 2 else "") + "sc1", tag="st")
        ops.append(st)
        return ops
    first_use = {}
    last_use = {}
    for f, (ks, blk) in enumerate(order):
        first_use.setdefault(8 + ks // 4, f)
        last_use[8 + ks // 4] = f
    fu_inv = {v: k for k, v in first_use.items()}
    chk_issue = {}
    for t in range(9, 16):
        chk_issue[max(first_use[t] - 6, first_use[t - 1])] = t
    fill = []
    NK = 32 - KT
    for f in range(LA):
        read_w(f)
    for f in range(NF):
        nf = f + LA
        for t in (9, 10, 11):
            if nf == first_use[t] - 16:
                b.wait(vm=f"U{t}")
                b.valu("v_mov_b32", "v6", t)
                b.ds_write("ds_write_b32", "v5", "v6", LAND1 - CONS)
        if nf in fu_inv and fu_inv[nf] >= 9:
            t = fu_inv[nf]
            lds_check(b, LAND1 if t <= 11 else LAND, t, V_SY, V_CKT, f"L{t}")
        if nf in chk_issue:
            t = chk_issue[nf]
            lds_check_issue(b, LAND1 if t <= 11 else LAND, V_SY, V_CKT, f"L{t}")
        if nf < NF:
            read_w(nf)
        ks, blk = order[f]
        b.wait(lg=f"w{f}")
        acc = V_ACC + 16 * blk
        b.mfma(vr(acc, 16), vr(V_RING + 4 * (f % 5), 4), vr(V_X + 4 * ks, 4), "0" if ks == 0 else vr(acc, 16))
        for t in (8, 9, 15):
            if f == last_use[t]:
                b.valu("v_mov_b32", "v6", t)
                b.ds_write("ds_write_b32", "v5", "v6", 0)
        if f == 6 * KT - 12:
            fill += epi_setup_ops()
        if f >= 6 * KT + NK + 1 and (f - 6 * KT - 1) % NK == 0:
            fill += epi_ops((f - 6 * KT - 1) // NK - 1)
        for _ in range(optval("fre", 7)):
            if fill:
                fill.pop(0)()
        if f == 95:
            pstamp(5)
    pstamp(6)
    fill += epi_ops(5)
    b.valu("v_mov_b32", vr(V_Z), 0)
    b.valu("v_mov_b32", vr(V_A1), NC_OFF)
    b.ds_read("ds_read_b64", vr(V_NON, 2), vr(V_A1), 0)
    while fill:
        fill.pop(0)()
    b.raw(f"  s_setprio {optval('pr1b', 0)}")
    pstamp(7)
    if STAMPS:
        for i in range(8):
            b.raw(f"  v_writelane_b32 v{V_STP}, s{S_PS+i}, {i}")
    V_AO, V_BO0, V_BO1, V_TR0, V_TR1, V_BW0, V_BW1, V_FO, V_WR, V_U0, V_U1, V_U2 = 132, 133, 134, 135, 136, 137, 138, 139, 140, 141, 142, 143
    V_W = 144
    V_A = 160
    V_C = 8
    RA = optval('ra', 5)
    IL = 'noil' not in OPT
    b.salu("s_lshl_b32", sr(S_F), sr(S_RB), 4)
    b.salu("s_add_u32", sr(S_F), sr(S_F), sr(S_CC))
    b.salu("s_lshl_b32", sr(S_F), sr(S_F), 7)
    b.salu("s_add_u32", sr(S_F), sr(S_F), F1)
    b.salu("s_and_b32", sr(S_T0), "s2", 7)
    b.salu("s_lshl_b32", sr(S_T0), sr(S_T0), 2)
    b.salu("s_bfe_u32", sr(S_T1), "s2", (2 << 16) | 3)
    b.salu("s_add_u32", sr(S_RB2), sr(S_T0), sr(S_T1))
    b.salu("s_lshr_b32", sr(S_CB), "s2", 5)
    b.salu("s_mul_i32", sr(S_T0), sr(S_RB2), HF_RB)
    b.salu("s_add_u32", sr(S_T0), sr(S_T0), HF)
    srd(b, S_H, "s22", "s23", HF_RB, add=sr(S_T0))
    if 'fakea' in OPT:
        srd(b, S_H, "s16", "s17", HF_RB)
    srd(b, S_WO, "s8", "s9", 512 * 1024)
    b.salu("s_mul_i32", sr(S_T0), sr(S_R), NDOWN * 2048)
    b.valu("v_add_u32", vr(V_AO), sr(S_T0), vr(V_STO))
    b.valu("v_bfe_u32", vr(V_U1), vr(V_L), 4, 1)
    b.valu("v_lshlrev_b32", vr(V_U1), 2, vr(V_U1))
    b.valu("v_xor_b32", vr(V_U1), vr(V_U1), vr(V_L))
    b.valu("v_and_b32", vr(V_U1), 7, vr(V_U1))
    b.valu("v_lshlrev_b32", vr(V_U1), 4, vr(V_U1))
    b.valu("v_lshrrev_b32", vr(V_U0), 3, vr(V_L))
    b.valu("v_lshl_add_u32", vr(V_U0), vr(V_U0), 10, vr(V_U1))
    b.salu("s_lshl_b32", sr(S_T0), sr(S_CB), 7)
    b.salu("s_mul_i32", sr(S_T1), sr(S_R), NDOWN * 16384)
    b.salu("s_add_u32", sr(S_T1), sr(S_T1), sr(S_T0))
    b.salu("s_lshl_b32", sr(S_T1), sr(S_R), 17)
    b.salu("s_add_u32", sr(S_T1), sr(S_T1), sr(S_T0))
    b.valu("v_add_u32", vr(V_BW0), sr(S_T1), vr(V_U0))
    b.valu("v_add_u32", vr(V_BW1), 8192 - 1024, vr(V_BW0))
    b.valu("v_lshrrev_b32", vr(V_U0), 5, vr(V_L))
    b.valu("v_lshlrev_b32", vr(V_U0), 2, vr(V_U0))
    b.valu("v_bfe_u32", vr(V_U1), vr(V_L), 2, 2)
    b.valu("v_add_u32", vr(V_U0), vr(V_U0), vr(V_U1))
    b.valu("v_and_b32", vr(V_U2), 3, vr(V_L))
    b.valu("v_lshlrev_b32", vr(V_U2), 3, vr(V_U2))
    b.valu("v_lshl_add_u32", vr(V_U0), vr(V_U0), 7, vr(V_U2))
    b.valu("v_lshrrev_b32", vr(V_U1), 1, vr(V_U1))
    b.valu("v_bfe_u32", vr(V_U2), vr(V_L), 4, 1)
    b.valu("v_lshl_add_u32", vr(V_U1), vr(V_U1), 1, vr(V_U2))
    b.valu("v_lshl_add_u32", vr(V_U0), vr(V_U1), 5, vr(V_U0))
    b.valu("v_add_u32", vr(V_TR0), sr(S_M0B), vr(V_U0))
    b.valu("v_xor_b32", vr(V_TR1), 64, vr(V_TR0))
    b.valu("v_add_u32", vr(V_WR), sr(S_M0B), vr(V_STO))
    b.salu("s_lshr_b32", sr(S_T0), sr(S_RB2), 1)
    b.salu("s_lshl_b32", sr(S_T0), sr(S_T0), 11)
    b.salu("s_add_u32", sr(S_T0), sr(S_T0), F1)
    b.salu("s_mul_i32", sr(S_T1), sr(S_R), 11)
    b.salu("s_mul_i32", sr(S_T1), sr(S_T1), 21846)
    b.salu("s_lshr_b32", sr(S_T1), sr(S_T1), 16)
    b.valu("v_min_u32", vr(V_U0), 4, vr(V_L))
    b.valu("v_add_u32", vr(V_U0), sr(S_T1), vr(V_U0))
    b.valu("v_min_u32", vr(V_U0), 14, vr(V_U0))
    b.valu("v_lshlrev_b32", vr(V_U0), 7, vr(V_U0))
    b.valu("v_add_u32", vr(V_FO), sr(S_T0), vr(V_U0))
    lds_check_issue(b, CONS, V_SY, V_C, "cz")
    b.wait(vm=0)
    stamp(b, 8)
    arrive(b, CNT + 4, S_F, V_U0)
    lds_check(b, CONS, 15, V_SY, V_C, "cz")

    def pref_a(t, half=None):
        for i in range(2):
            if half is not None and half != i:
                continue
            if i == 0:
                b.salu("s_mov_b32", sr(S_KA), t * 2048)
            b.vmem_load("buffer_load_dwordx4", vr(V_A + 8 * (t % RA) + 4 * i, 4), vr(V_AO), sr(S_H, 4), sr(S_KA),
                        mods=("offset:1024 " if i else "") + "sc1", tag=f"a{t}")

    def pref_wo(i):
        if i == 0:
            b.salu("s_lshl_b32", sr(S_T3), sr(S_R), 14)
        b.salu("s_add_u32", "m0", sr(S_T3), WO_OFF + i * 2048)
        b.salu("s_mov_b32", sr(S_KB), i * 16384)
        b.vmem_dma(vr(V_BW0), sr(S_WO, 4), sr(S_KB), tag="wo")
        b.vmem_dma(vr(V_BW1), sr(S_WO, 4), sr(S_KB), mods="offset:1024", tag="wo")
    for t in range(RD if not EARLY else 0):
        pref_b(t)
    nwo = 0
    while nwo < optval("nwo", 8):
        pref_wo(nwo)
        nwo += 1
    if 'ht' in OPT:
        b.valu("v_min_u32", vr(V_U0), 43, vr(V_L))
        b.salu("s_mul_i32", sr(S_T0), sr(S_CB), 44)
        b.valu("v_add_u32", vr(V_U0), sr(S_T0), vr(V_U0))
        b.valu("v_lshlrev_b32", vr(V_U0), 7, vr(V_U0))
        b.salu("s_mul_i32", sr(S_T0), sr(S_R), NDOWN * 2048)
    poll(b, V_W, V_FO)
    stamp(b, 9)
    if 'ht' in OPT:
        b.vmem_load("buffer_load_dword", vr(V_U1), vr(V_U0), sr(S_H, 4), sr(S_T0), mods="sc1", tag="ht")
        if 'htw' in OPT:
            b.wait(vm="ht")
    for t in range(RA):
        pref_a(t)
        if nwo < 8:
            pref_wo(nwo)
            nwo += 1

    def rdw(t):
        ws = V_W + 8 * (t % 2)
        b.wait(vm=f"b{t}")
        for j in range(2):
            for q in range(2):
                b.ds_read("ds_read_b64_tr_b16", vr(ws + 4 * j + 2 * q, 2), vr(V_TR0 + j), (t % RD) * 2048 + q * 1024, tag=f"d{t}")
    def rdw1(t, n):
        ws = V_W + 8 * (t % 2)
        if n == 0:
            b.wait(vm=f"b{t}")
        j, q = divmod(n, 2)
        b.ds_read("ds_read_b64_tr_b16", vr(ws + 4 * j + 2 * q, 2), vr(V_TR0 + j), (t % RD) * 2048 + q * 1024, tag=f"d{t}")
    rdw(0)
    for t in range(NDOWN):
        ws = V_W + 8 * (t % 2)
        b.wait(vm=f"a{t}", lg=f"d{t}")
        lds = []
        if t + RD < NDOWN:
            lds += [lambda: pref_b(t + RD, 0), lambda: pref_b(t + RD, 1)]
        if t >= 1 and t - 1 + RA < NDOWN:
            lds = [lambda: pref_a(t - 1 + RA, 0), lambda: pref_a(t - 1 + RA, 1)] + lds
        for i in range(2):
            for j in range(2):
                acc = V_ACC + 16 * (2 * i + j)
                b.mfma(vr(acc, 16), vr(ws + 4 * j, 4), vr(V_A + 8 * (t % RA) + 4 * i, 4), "0" if t == 0 else vr(acc, 16))
                if t + 1 < NDOWN and 2 * i + j < 2:
                    rdw1(t + 1, 2 * (2 * i + j))
                    rdw1(t + 1, 2 * (2 * i + j) + 1)
                if lds:
                    lds.pop(0)()
        if t == optval("twol", 13):
            b.wait(vm="wo")
            lds_signal(b, WOL, 1, V_U0)
    stamp(b, 10)
    for blk in range(4):
        for g in range(4):
            b.ds_write("ds_write_b128", vr(V_WR), vr(V_ACC + 16 * blk + 4 * g, 4), blk * 4096 + g * 1024)
    b.wait(lg=0)
    stamp(b, 11)
    stamp_out(b)
    b.raw("  s_endpgm")
    print("p1 instrs", b.ninstr)
    return b.text()


def p0():
    b = B(); b.nlabel = 3000
    b.label("L_P0")
    DPP = "row_mask:0xf bank_mask:0xf"
    V_T0, V_T1, V_T2 = 1, 2, 3
    V_XB = 4
    V_TRA = 8
    V_SY = 9
    V_NM, V_RS = 10, 11
    V_CSRD, V_STO, V_STV, V_RSS = 12, 13, 14, 15
    V_ID = 16
    V_XF = 24
    V_RING = 36
    V_ACC = 72
    V_D2 = 120
    TS = [136, 144]
    RD_, CD, CA, U0, U1 = 152, 160, 192, 200, 201
    SU, SQ = 250, 251
    GA, G0 = 204, 236
    V_UB = 244
    if 'ct' in OPT:
        b.valu("v_lshlrev_b32", vr(V_T0), 7, vr(V_L))
        b.salu("s_lshl_b32", sr(S_T0), "s2", 13)
        b.wait(lg=0)
        b.salu("s_cmp_eq_u32", sr(S_R), 2)
        b.salu("s_cselect_b32", sr(S_C), "s12", "s14")
        b.salu("s_cselect_b32", sr(S_C + 1), "s13", "s15")
        b.salu("s_mov_b32", sr(S_C + 2), 512 * 2752)
        b.salu("s_cmp_eq_u32", sr(S_R), 1)
        b.salu("s_cselect_b32", sr(S_C), "s6", sr(S_C))
        b.salu("s_cselect_b32", sr(S_C + 1), "s7", sr(S_C + 1))
        b.salu("s_cselect_b32", sr(S_C + 2), 512 * 3072, sr(S_C + 2))
        b.salu("s_cmp_eq_u32", sr(S_R), 0)
        b.salu("s_cselect_b32", sr(S_C), "s4", sr(S_C))
        b.salu("s_cselect_b32", sr(S_C + 1), "s5", sr(S_C + 1))
        b.salu("s_cselect_b32", sr(S_C + 2), 0x200000, sr(S_C + 2))
        b.salu("s_mov_b32", sr(S_C + 3), 0x20000)
        if optval("ctd", 0):
            b.raw(f"  s_sleep {optval('ctd', 0)}")
        b.vmem_load("buffer_load_dword", vr(243), vr(V_T0), sr(S_C, 4), sr(S_T0))
    xread_setup(b, V_XB, V_T0, V_T1, V_T2)
    tr192(b, V_TRA, 32, V_T0, V_T1)
    b.valu("v_add_u32", vr(V_TRA), 16384, vr(V_TRA))
    b.valu("v_lshlrev_b32", vr(V_T0), 2, vr(V_L))
    b.valu("v_min_u32", vr(V_T0), 124, vr(V_T0))
    b.valu("v_add_u32", vr(V_T0), SY_OFF, vr(V_T0))
    b.ds_write("ds_write_b32", vr(V_T0), vr(V_Z), 0)
    b.valu("v_mov_b32", vr(V_SY), SY_OFF)
    b.valu("v_and_b32", vr(V_T0), 31, vr(V_L))
    b.valu("v_lshrrev_b32", vr(V_T1), 5, vr(V_L))
    b.valu("v_lshlrev_b32", vr(V_T1), 2, vr(V_T1))
    b.valu("v_sub_u32", vr(V_T0), vr(V_T0), vr(V_T1))
    b.valu("v_mov_b32", vr(V_T1), "0x3f80")
    b.valu("v_mov_b32", vr(V_T2), "0x3f800000")
    for hf in range(2):
        for i in range(4):
            d = 16 * hf + ((2 * i) & 3) + 8 * (i >> 1)
            b.valu("v_cmp_eq_u32", "vcc", d, vr(V_T0))
            b.valu("v_cndmask_b32", vr(V_ID + 4 * hf + i), 0, vr(V_T1))
            b.valu("v_cmp_eq_u32", "vcc", d + 1, vr(V_T0))
            b.valu("v_cndmask_b32", vr(V_ID + 4 * hf + i), vr(V_ID + 4 * hf + i), vr(V_T2))
    b.valu("v_lshlrev_b32", vr(V_STO), 4, vr(V_L))
    b.valu("v_and_b32", vr(V_T0), 15, vr(V_L))
    b.valu("v_lshlrev_b32", vr(V_T0), 4, vr(V_T0))
    b.valu("v_lshrrev_b32", vr(V_T1), 5, vr(V_L))
    b.valu("v_lshl_add_u32", vr(V_T0), vr(V_T1), 8, vr(V_T0))
    b.valu("v_bfe_u32", vr(V_T2), vr(V_L), 4, 1)
    b.valu("v_lshl_add_u32", vr(V_STV), vr(V_T2), 16, vr(V_T0))
    b.valu("v_lshlrev_b32", vr(V_CSRD), 4, vr(V_T1))
    b.valu("v_add_u32", vr(V_CSRD), CS_OFF, vr(V_CSRD))
    common_srds(b)
    ub_setup(b, V_UB, V_T0, V_T1)

    def prod_loads():
        l1 = b.newlabel("np")
        b.salu("s_cmp_lg_u32", sr(S_R), 0)
        b.branch("s_cbranch_scc1", l1)
        b.opt_begin()
        b.vmem_load("buffer_load_dwordx2", vr(V_NON, 2), vr(V_Z), sr(S_DBG, 4), "0", mods="sc1")
        b.opt_end()
        b.label(l1)
        b.salu("s_lshl_b32", sr(S_T0), sr(S_CC), 13)
        b.salu("s_lshl_b32", sr(S_T1), sr(S_R), 11)
        b.salu("s_add_u32", sr(S_T0), sr(S_T0), sr(S_T1))
        b.valu("v_lshlrev_b32", vr(U0), 5, vr(V_L))
        b.vmem_load("buffer_load_dwordx4", vr(RD_, 4), vr(U0), sr(S_X, 4), sr(S_T0), tag="rl")
        b.vmem_load("buffer_load_dwordx4", vr(RD_ + 4, 4), vr(U0), sr(S_X, 4), sr(S_T0), mods="offset:16", tag="rl")
        b.salu("s_lshr_b32", sr(S_T0), sr(S_RB), 2)
        b.salu("s_and_b32", sr(S_T1), sr(S_RB), 3)
        b.salu("s_cmp_eq_u32", sr(S_T0), 1)
        b.salu("s_cselect_b32", sr(S_C), "s12", "s14")
        b.salu("s_cselect_b32", sr(S_C + 1), "s13", "s15")
        b.salu("s_movk_i32", sr(S_T3), 2752)
        b.salu("s_lshl_b32", sr(S_U0), sr(S_FS), 5)
        b.salu("s_mul_i32", sr(S_U1), sr(S_CC), 192)
        b.salu("s_cmp_eq_u32", sr(S_T0), 0)
        b.salu("s_cselect_b32", sr(S_C), "s6", sr(S_C))
        b.salu("s_cselect_b32", sr(S_C + 1), "s7", sr(S_C + 1))
        b.salu("s_cselect_b32", sr(S_T3), 3072, sr(S_T3))
        b.salu("s_cselect_b32", sr(S_U0), sr(S_U1), sr(S_U0))
        b.salu("s_lshl_b32", sr(S_C + 2), sr(S_T3), 9)
        b.salu("s_cmp_eq_u32", sr(S_T0), 3)
        b.salu("s_cselect_b32", sr(S_C + 2), 0, sr(S_C + 2))
        b.salu("s_mov_b32", sr(S_C + 3), 0x20000)
        b.salu("s_lshl_b32", sr(S_U1), sr(S_T1), 2)
        b.salu("s_add_u32", sr(S_U1), sr(S_U1), sr(S_R))
        b.salu("s_lshl_b32", sr(S_U1), sr(S_U1), 5)
        b.salu("s_mul_i32", sr(S_U1), sr(S_U1), sr(S_T3))
        b.salu("s_add_u32", sr(S_U0), sr(S_U0), sr(S_U1))
        b.valu("v_lshrrev_b32", vr(U0), 4, vr(V_L))
        b.valu("v_mul_u32_u24", vr(U0), sr(S_T3), vr(U0))
        b.valu("v_and_b32", vr(U1), 15, vr(V_L))
        b.valu("v_lshl_add_u32", vr(U0), vr(U1), 4, vr(U0))
        b.valu("v_cmp_gt_u32", "vcc", 12, vr(U1))
        b.valu("v_mov_b32", vr(U1), "0x40000000")
        b.valu("v_cndmask_b32", vr(U0), vr(U1), vr(U0))
        b.salu("s_lshl_b32", sr(S_T3), sr(S_T3), 2)
        for i in range(8):
            b.vmem_load("buffer_load_dwordx4", vr(CD + 4 * i, 4), vr(U0), sr(S_C, 4), sr(S_U0), tag="cl")
            if i < 7:
                b.salu("s_add_u32", sr(S_U0), sr(S_U0), sr(S_T3))
        b.salu("s_lshl_b32", sr(S_CSO), sr(S_CC), 2)
        b.salu("s_add_u32", sr(S_CSO), sr(S_CSO), sr(S_T1))
        b.salu("s_lshl_b32", sr(S_CSO), sr(S_CSO), 12)
        b.salu("s_lshl_b32", sr(S_U0), sr(S_T0), 7)
        b.salu("s_add_u32", sr(S_U0), sr(S_U0), 640)
        b.salu("s_cmp_eq_u32", sr(S_T0), 0)
        b.salu("s_cselect_b32", sr(S_U0), 0, sr(S_U0))
        b.salu("s_add_u32", sr(S_CSO), sr(S_CSO), sr(S_U0))
        b.salu("s_add_u32", sr(S_CSO), sr(S_CSO), CSG)

    def prod_ops():
        ops = []
        Vv = lambda *a, **k: ops.append(lambda: b.valu(*a, **k))
        A = ops.append
        A(lambda: b.wait(vm="rl"))
        if 'pdot' in OPT:
            A(lambda: (b.salu("s_mov_b32", sr(S_T0), "0x3f803f80"), b.salu("s_mov_b32", sr(S_T1), "0x3f80"), b.salu("s_mov_b32", sr(S_T3), "0x3f800000")))
            Vv("v_mov_b32", vr(SU), 0)
            Vv("v_mov_b32", vr(SQ), 0)
            for i in range(8):
                Vv("v_dot2c_f32_bf16", vr(SU), sr(S_T0), vr(RD_ + i))
                Vv("v_dot2c_f32_bf16", vr(SQ), vr(RD_ + i), vr(RD_ + i))
        for i in range(8 if 'pdot' not in OPT else 0):
            Vv("v_lshlrev_b32", vr(U0), 16, vr(RD_ + i))
            Vv("v_and_b32", vr(U1), "0xffff0000", vr(RD_ + i))
            if i == 0:
                Vv("v_add_f32", vr(SU), vr(U0), vr(U1))
                Vv("v_mul_f32", vr(SQ), vr(U0), vr(U0))
            else:
                Vv("v_add_f32", vr(SU), vr(SU), vr(U0))
                Vv("v_fmac_f32", vr(SQ), vr(U0), vr(U0))
                Vv("v_add_f32", vr(SU), vr(SU), vr(U1))
            Vv("v_fmac_f32", vr(SQ), vr(U1), vr(U1))
        Vv("v_permlane16_swap_b32", vr(SU), vr(SQ))
        Vv("v_add_f32", vr(SU), vr(SU), vr(SQ))
        for r in (8, 4, 2, 1):
            Vv("v_add_f32_dpp", vr(SU), vr(SU), vr(SU), mods=f"row_ror:{r} {DPP}")
        Vv("v_mov_b32", vr(SQ), vr(SU))
        Vv("v_permlane16_swap_b32", vr(SU), vr(SQ))
        Vv("v_mul_f32", vr(SU), hex(f32bits(1.0 / 512)), vr(SU))
        Vv("v_mul_f32", vr(SQ), hex(f32bits(1.0 / 512)), vr(SQ))
        Vv("v_fma_f32", vr(SQ), f"-{vr(SU)}", vr(SU), vr(SQ))
        Vv("v_max_f32", vr(SQ), 0, vr(SQ))
        A(lambda: bf16r(b, SQ))
        Vv("v_add_f32", vr(SQ), hex(f32bits(1e-5)), vr(SQ))
        A(lambda: bf16r(b, SQ))
        Vv("v_sqrt_f32", vr(SQ), vr(SQ))
        A(lambda: bf16r(b, SQ))
        Vv("v_rcp_f32", vr(SQ), vr(SQ))
        A(lambda: bf16r(b, SU))
        Vv("v_sub_f32", vr(SU), 0, vr(SU))
        A(lambda: b.wait(vm="cl"))
        for i in range(8):
            for j in range(4):
                src = CD + 4 * i + j
                if i == 0:
                    Vv("v_lshlrev_b32", vr(CA + 2 * j), 16, vr(src))
                    Vv("v_and_b32", vr(CA + 2 * j + 1), "0xffff0000", vr(src))
                elif 'pdot' in OPT:
                    Vv("v_dot2c_f32_bf16", vr(CA + 2 * j), sr(S_T1), vr(src))
                    Vv("v_dot2c_f32_bf16", vr(CA + 2 * j + 1), sr(S_T3), vr(src))
                else:
                    Vv("v_lshlrev_b32", vr(U0), 16, vr(src))
                    Vv("v_and_b32", vr(U1), "0xffff0000", vr(src))
                    Vv("v_add_f32", vr(CA + 2 * j), vr(CA + 2 * j), vr(U0))
                    Vv("v_add_f32", vr(CA + 2 * j + 1), vr(CA + 2 * j + 1), vr(U1))
        for i in range(4):
            Vv("v_permlane32_swap_b32", vr(CA + 2 * i), vr(CA + 2 * i + 1))
        for i in range(4):
            Vv("v_add_f32", vr(CA + 2 * i), vr(CA + 2 * i), vr(CA + 2 * i + 1))
        for i in range(2):
            Vv("v_permlane16_swap_b32", vr(CA + 4 * i), vr(CA + 4 * i + 2))
        for i in range(2):
            Vv("v_add_f32", vr(CA + 4 * i), vr(CA + 4 * i), vr(CA + 4 * i + 2))
        Vv("v_and_b32", vr(U0), 15, vr(V_L))
        Vv("v_lshlrev_b32", vr(U0), 5, vr(U0))
        Vv("v_bfe_u32", vr(U1), vr(V_L), 4, 1)
        Vv("v_lshl_add_u32", vr(U0), vr(U1), 3, vr(U0))
        Vv("v_lshrrev_b32", vr(U1), 5, vr(V_L))
        Vv("v_lshl_add_u32", vr(U0), vr(U1), 2, vr(U0))
        A(lambda: (b.salu("s_lshl_b32", sr(S_U0), sr(S_R), 9), b.salu("s_add_u32", sr(S_U0), sr(S_U0), CP_OFF)))
        Vv("v_add_u32", vr(U0), sr(S_U0), vr(U0))
        A(lambda: (b.ds_write("ds_write_b32", vr(U0), vr(CA), 0), b.ds_write("ds_write_b32", vr(U0), vr(CA + 4), 16)))

        def nonce():
            lok, lp, lsk = b.newlabel("nok"), b.newlabel("nlp"), b.newlabel("nsk")
            b.salu("s_cmp_lg_u32", sr(S_R), 0)
            b.branch("s_cbranch_scc1", lsk)
            b.opt_begin()
            b.label(lp)
            b.valu("v_cmp_eq_u32", "vcc", 0, vr(V_NON + 1))
            b.branch("s_cbranch_vccz", lok)
            b.opt_begin()
            guard(b, lok)
            b.raw("  s_sleep 4")
            b.vmem_load("buffer_load_dwordx2", vr(V_NON, 2), vr(V_Z), sr(S_DBG, 4), "0", mods="sc1")
            b.wait(vm=0)
            b.branch("s_branch", lp)
            b.opt_end()
            b.label(lok)
            b.valu("v_mov_b32", vr(U0), NC_OFF)
            b.ds_write("ds_write_b64", vr(U0), vr(V_NON, 2), 0)
            b.opt_end()
            b.label(lsk)
        A(nonce)
        return ops

    def publish():
        b.valu("v_mov_b32", vr(U0), NC_OFF)
        b.ds_read("ds_read_b64", vr(V_NON, 2), vr(U0), 0, tag="non")
        b.salu("s_lshl_b32", sr(S_U0), sr(S_RB), 11)
        b.salu("s_lshl_b32", sr(S_U1), sr(S_CC), 7)
        b.salu("s_add_u32", sr(S_U0), sr(S_U0), sr(S_U1))
        b.salu("s_lshl_b32", sr(S_U1), sr(S_R), 5)
        b.salu("s_add_u32", sr(S_U0), sr(S_U0), sr(S_U1))
        b.salu("s_add_u32", sr(S_U0), sr(S_U0), RSG)
        b.valu("v_lshrrev_b32", vr(U1), 1, vr(V_L))
        b.wait(lg="non")
        b.salu("s_mov_b32", "exec_lo", 1)
        b.salu("s_mov_b32", "exec_hi", 1)
        b.vmem_store("buffer_store_dwordx4", vr(SU, 4), vr(U1), sr(S_WS, 4), sr(S_U0), mods="sc1")
        b.salu("s_mov_b64", "exec", -1)
        l1 = b.newlabel("cf")
        b.salu("s_cmp_lg_u32", sr(S_R), 3)
        b.branch("s_cbranch_scc1", l1)
        b.opt_begin()
        b.salu("s_cmp_ge_u32", sr(S_RB), 12)
        b.branch("s_cbranch_scc1", l1)
        b.valu("v_lshlrev_b32", vr(U1), 3, vr(V_L))
        b.valu("v_add_u32", vr(U1), CP_OFF, vr(U1))
        for w in range(4):
            b.ds_read("ds_read_b64", vr(CD + 2 * w, 2), vr(U1), w * 512)
        b.valu("v_lshrrev_b32", vr(U1), 3, vr(V_L))
        b.valu("v_lshlrev_b32", vr(U1), 3, vr(U1))
        b.salu("s_cmp_lt_u32", sr(S_RB), 4)
        b.salu("s_cselect_b32", sr(S_U0), 0, -1)
        b.valu("v_and_b32", vr(U1), sr(S_U0), vr(U1))
        b.valu("v_add_u32", vr(U0), vr(V_L), vr(U1))
        b.valu("v_lshlrev_b32", vr(U0), 4, vr(U0))
        b.wait(lg=0)
        for e in range(2):
            b.valu("v_add_f32", vr(SU + e), vr(CD + e), vr(CD + 2 + e))
            b.valu("v_add_f32", vr(CD + 4 + e), vr(CD + 4 + e), vr(CD + 6 + e))
            b.valu("v_add_f32", vr(SU + e), vr(SU + e), vr(CD + 4 + e))
        b.salu("s_mov_b32", "exec_hi", "0xffff")
        b.vmem_store("buffer_store_dwordx4", vr(SU, 4), vr(U0), sr(S_WS, 4), sr(S_CSO), mods="sc1")
        b.salu("s_mov_b32", "exec_hi", -1)
        b.opt_end()
        b.label(l1)
        b.salu("s_lshl_b32", sr(S_U0), sr(S_R), 6)
        b.valu("v_add_u32", vr(U0), sr(S_U0), vr(V_L))
        b.valu("v_mov_b32", vr(U1), 144)
        b.valu("v_cmp_lt_u32", sr(S_CARE, 2), vr(U0), vr(U1))
        b.salu("s_lshl_b32", sr(S_U0), sr(S_CC), 14)
        b.salu("s_add_u32", sr(S_U0), sr(S_U0), CSG)
        b.valu("v_lshl_add_u32", vr(U0), vr(U0), 4, sr(S_U0))
        b.valu("v_mov_b32", vr(U1), "0x40000000")
        b.valu("v_cndmask_b32", vr(G0), vr(U1), vr(U0), sr(S_CARE, 2))
        for i in range(1, 4):
            b.valu("v_add_u32", vr(G0 + i), 4096 * i, vr(G0))
        b.salu("s_lshl_b32", sr(S_U0), sr(S_RB), 11)
        b.salu("s_lshl_b32", sr(S_U1), sr(S_R), 9)
        b.salu("s_add_u32", sr(S_U0), sr(S_U0), sr(S_U1))
        b.salu("s_add_u32", sr(S_U0), sr(S_U0), RSG)
        b.valu("v_and_b32", vr(U0), 31, vr(V_L))
        b.valu("v_lshl_add_u32", vr(G0 + 4), vr(U0), 4, sr(S_U0))

    def gather_issue(tag="ga"):
        for i in range(5):
            b.vmem_load("buffer_load_dwordx4", vr(GA + 4 * i, 4), vr(G0 + i), sr(S_WS, 4), "0", mods="sc1", tag=tag)

    def gather_write():
        lok, lp = b.newlabel("gok"), b.newlabel("gl")
        b.wait(vm="ga")
        b.label(lp)
        b.valu("v_cmp_ne_u64", sr(S_U0, 2), vr(GA + 2, 2), vr(V_NON, 2))
        for i in range(1, 4):
            b.valu("v_cmp_ne_u64", "vcc", vr(GA + 4 * i + 2, 2), vr(V_NON, 2))
            b.salu("s_or_b64", sr(S_U0, 2), sr(S_U0, 2), "vcc")
        b.salu("s_and_b64", sr(S_U0, 2), sr(S_U0, 2), sr(S_CARE, 2))
        b.valu("v_cmp_ne_u64", "vcc", vr(GA + 18, 2), vr(V_NON, 2))
        b.salu("s_or_b64", sr(S_U0, 2), sr(S_U0, 2), "vcc")
        b.branch("s_cbranch_scc0", lok)
        b.opt_begin()
        guard(b, lok)
        b.raw("  s_sleep 4")
        gather_issue(None)
        b.wait(vm=0)
        b.branch("s_branch", lp)
        b.opt_end()
        b.label(lok)
        for e in range(2):
            b.valu("v_add_f32", vr(GA + e), vr(GA + e), vr(GA + 4 + e))
            b.valu("v_add_f32", vr(GA + 8 + e), vr(GA + 8 + e), vr(GA + 12 + e))
            b.valu("v_add_f32", vr(GA + e), vr(GA + e), vr(GA + 8 + e))
        b.valu("v_mov_b32", vr(V_NM), vr(GA + 16))
        b.valu("v_mov_b32", vr(V_RS), vr(GA + 17))
        b.salu("s_min_u32", sr(S_U0), sr(S_R), 2)
        b.salu("s_lshl_b32", sr(S_U0), sr(S_U0), 9)
        b.salu("s_add_u32", sr(S_U0), sr(S_U0), CS_OFF)
        b.valu("v_lshl_add_u32", vr(U0), vr(V_L), 3, sr(S_U0))
        b.salu("s_mov_b64", "exec", sr(S_CARE, 2))
        b.ds_write("ds_write_b64", vr(U0), vr(GA, 2), 0)
        b.salu("s_mov_b64", "exec", -1)
        b.salu("s_lshl_b32", sr(S_U0), sr(S_R), 8)
        b.salu("s_add_u32", sr(S_U0), sr(S_U0), ST_OFF)
        b.valu("v_and_b32", vr(U0), 31, vr(V_L))
        b.valu("v_lshl_add_u32", vr(U0), vr(U0), 3, sr(S_U0))
        b.ds_write("ds_write_b64", vr(U0), vr(V_NM, 2), 0)

    LA = 6
    NFA = 96

    def read_a(f):
        ks, blk = divmod(f, 3)
        t, s = divmod(ks, 4)
        if blk == 0:
            b.ds_read("ds_read_b128", vr(V_XF + 4 * (ks % 3), 4), vr(V_XB + s), (t % 3) * PA, tag=f"x{ks}")
        r0 = V_RING + 4 * (f % 9)
        for q in range(2):
            off = (t % 3) * PA + s * 3072 + q * 768 + blk * 64
            if off >= 65536:
                a_, off = V_TRA2, off - 2 * PA
            else:
                a_ = V_TRA
            b.ds_read("ds_read_b64_tr_b16", vr(r0 + 2 * q, 2), vr(a_), off, tag=f"w{f}")
    V_TRA2 = V_RSS
    b.valu("v_add_u32", vr(V_TRA2), 2 * PA, vr(V_TRA))
    FPC, FPE = optval("fpc", 9), optval("fpe", 41)
    pops = prod_ops()
    nper = -(-len(pops) // (FPE - FPC))
    hooks = {}
    for f in range(FPC, FPE):
        hooks[f] = (lambda ops=pops[(f - FPC) * nper:(f - FPC + 1) * nper]: [o() for o in ops])
    hooks[optval("fpl", 2)] = prod_loads
    hooks[optval("fpu", 44)] = publish
    if 'mlg' in OPT:
        hooks[optval("fgi", 72)] = lambda: (w2_touch_mall(b, S_C, U0, 242), gather_issue())
    elif 'mlp' in OPT:
        hooks[optval("fpl", 2)] = lambda: (prod_loads(), w2_touch_mall(b, S_WA, U0, 242))
        hooks[optval("fgi", 72)] = gather_issue
    else:
        hooks[optval("fml", 66)] = lambda: w2_touch_mall(b, S_C, U0, 242)
        hooks[optval("fgi", 72)] = gather_issue
    hooks[optval("fgw", 88)] = gather_write
    ubq = [(t, n) for t in range(12, 14) for n in range(6)]

    def ub_issue(k):
        for _ in range(k):
            if ubq:
                t, n = ubq.pop(0)
                ub_step(b, V_UB, t, n)
    b.wait(lg=0)
    b.barrier()
    stamp(b, 1)
    for f in range(LA):
        read_a(f)
    for f in range(NFA):
        nf = f + LA
        if nf % 12 == 0:
            b.wait(lg=0)
            b.barrier()
            if nf // 12 in (2, 4, 8):
                stamp(b, {2: 2, 4: 3, 8: 4}[nf // 12])
            if nf == NFA:
                b.raw(f"  s_setprio {optval('pre', 3)}")
        if nf < NFA:
            read_a(nf)
        ks, blk = divmod(f, 3)
        b.wait(lg=[f"w{f}", f"x{ks}"])
        acc = V_ACC + 16 * blk
        b.mfma(vr(acc, 16), vr(V_RING + 4 * (f % 9), 4), vr(V_XF + 4 * (ks % 3), 4), "0" if ks == 0 else vr(acc, 16))
        if f in hooks:
            hooks[f]()

    def csrd(n):
        blk, hf = divmod(n, 2)
        T = TS[n % 2]
        b.ds_read("ds_read_b128", vr(T, 4), vr(V_CSRD), blk * 128 + hf * 64, tag=f"c{n}")
        b.ds_read("ds_read_b128", vr(T + 4, 4), vr(V_CSRD), blk * 128 + hf * 64 + 32, tag=f"c{n}")
    b.raw(f"  s_setprio {optval('pre', 3)}")
    csrd(0)
    b.salu("s_mul_i32", sr(S_T3), sr(S_CC), 3)
    b.salu("s_lshl_b32", sr(S_T0), sr(S_RB), 2)
    b.salu("s_add_u32", sr(S_T0), sr(S_T0), sr(S_R))
    b.salu("s_lshl_b32", sr(S_E), sr(S_T0), 10)
    for blk in range(3):
        acc = V_ACC + 16 * blk
        b.salu("s_add_u32", sr(S_T0), sr(S_T3), blk)
        b.salu("s_cmp_lt_u32", sr(S_T0), 16)
        b.salu("s_cselect_b32", sr(S_T1), hex(f32bits(QSCALE)), "1.0")
        b.valu("v_mul_f32", vr(V_T0), sr(S_T1), vr(V_RS))
        b.salu("s_lshl_b32", sr(S_U0), sr(S_T0), 17)
        b.salu("s_add_u32", sr(S_U0), sr(S_U0), sr(S_E))
        b.salu("s_add_u32", sr(S_U1), sr(S_U0), 65536)
        for hf in range(2):
            n = 2 * blk + hf
            T = TS[n % 2]
            if n + 1 < 6:
                csrd(n + 1)
            b.wait(lg=f"c{n}")
            for i in range(8):
                b.valu("v_fmac_f32", vr(acc + 8 * hf + i), vr(V_NM), vr(T + i))
            for i in range(8):
                b.valu("v_mul_f32", vr(acc + 8 * hf + i), vr(V_T0), vr(acc + 8 * hf + i))
            for i in range(4):
                b.valu("v_cvt_pk_bf16_f32", vr(acc + 8 * hf + i), vr(acc + 8 * hf + 2 * i), vr(acc + 8 * hf + 2 * i + 1))
        lv, lj = b.newlabel("ev"), b.newlabel("ej")
        b.salu("s_cmp_ge_u32", sr(S_T0), 32)
        b.branch("s_cbranch_scc1", lv)
        b.opt_begin()
        b.par = list(range(8))
        b.vmem_store("buffer_store_dwordx4", vr(acc, 4), vr(V_STO), sr(S_WS, 4), sr(S_U0), mods="sc1", tag="st")
        b.vmem_store("buffer_store_dwordx4", vr(acc + 8, 4), vr(V_STO), sr(S_WS, 4), sr(S_U1), mods="sc1", tag="st")
        b.par = None
        b.branch("s_branch", lj)
        b.opt_end()
        b.label(lv)
        b.opt_begin()
        b.par = []
        b.mfma(vr(V_D2, 16), vr(acc, 4), vr(V_ID, 4), "0")
        b.mfma(vr(V_D2, 16), vr(acc + 8, 4), vr(V_ID + 4, 4), vr(V_D2, 16))
        for i in range(8):
            b.valu("v_cvt_pk_bf16_f32", vr(acc + i), vr(V_D2 + 2 * i), vr(V_D2 + 2 * i + 1))
        b.vmem_store("buffer_store_dwordx4", vr(acc, 4), vr(V_STV), sr(S_WS, 4), sr(S_U0), mods="sc1", tag="st")
        b.vmem_store("buffer_store_dwordx4", vr(acc + 4, 4), vr(V_STV), sr(S_WS, 4), sr(S_U0), mods="offset:512 sc1", tag="st")
        b.par = None
        b.opt_end()
        b.label(lj)
    stamp(b, 5)
    b.salu("s_lshl_b32", sr(S_T3), sr(S_RB), 4)
    b.salu("s_add_u32", sr(S_T3), sr(S_T3), sr(S_CC))
    b.salu("s_lshl_b32", sr(S_T3), sr(S_T3), 7)
    b.salu("s_add_u32", sr(S_T3), sr(S_T3), F0)
    b.wait(vm=0)
    arrive(b, CNT, S_T3, V_T0)
    b.raw(f"  s_setprio {optval('pr0', 1)}")
    stamp(b, 6)
    attn(b, ub_issue, V_UB, V_SY)
    print("p0 instrs", b.ninstr)
    return b.text()


def attn(b, ub_issue, V_UB, V_SY):
    V_QO, V_VO, V_T0, V_T1, V_M0, V_M1, V_BIG = 1, 2, 3, 4, 5, 6, 7
    V_NEG = 10
    V_MSK = 12
    V_Q = 20
    V_K = 28
    V_V = 68
    V_B0, V_B1, V_CN, V_O, V_SM = 148, 164, 180, 196, 212
    V_C = 228
    S_KO, S_VO, S_EXV = 24, 28, 44
    S_RQ, S_HD, S_SO, S_NF, S_QB = 46, 47, 60, 61, 96
    ub_issue(6)
    b.salu("s_and_b32", sr(S_T0), "s2", 7)
    b.salu("s_lshl_b32", sr(S_HD), sr(S_T0), 2)
    b.salu("s_add_u32", sr(S_HD), sr(S_HD), sr(S_R))
    b.salu("s_lshr_b32", sr(S_RQ), "s2", 3)
    b.valu("v_and_b32", vr(V_T0), 3, vr(V_L))
    b.valu("v_min_u32", vr(V_T0), 2, vr(V_T0))
    b.valu("v_bfe_u32", vr(V_T1), vr(V_L), 2, 1)
    b.valu("v_lshl_add_u32", vr(V_T0), vr(V_T0), 4, vr(V_T1))
    b.salu("s_lshl_b32", sr(S_T0), sr(S_T0), 1)
    b.valu("v_add_u32", vr(V_T0), sr(S_T0), vr(V_T0))
    b.valu("v_mul_u32_u24", vr(V_T0), 21846, vr(V_T0))
    b.valu("v_lshrrev_b32", vr(V_T0), 16, vr(V_T0))
    b.valu("v_bfe_u32", vr(V_T1), vr(V_L), 3, 2)
    b.valu("v_min_u32", vr(V_T1), 2, vr(V_T1))
    b.salu("s_lshr_b32", sr(S_T1), sr(S_RQ), 1)
    b.valu("v_sub_u32", vr(V_T1), sr(S_T1), vr(V_T1))
    b.valu("v_max_i32", vr(V_T1), 0, vr(V_T1))
    b.valu("v_lshl_add_u32", vr(V_T0), vr(V_T1), 4, vr(V_T0))
    b.valu("v_lshlrev_b32", vr(V_T0), 7, vr(V_T0))
    b.valu("v_add_u32", vr(V_B0), F0, vr(V_T0))
    b.salu("s_lshl_b32", sr(S_QB), sr(S_HD), 16)
    b.salu("s_lshl_b32", sr(S_T1), sr(S_RQ), 11)
    b.salu("s_add_u32", sr(S_QB), sr(S_QB), sr(S_T1))
    b.valu("v_lshlrev_b32", vr(V_QO), 4, vr(V_L))
    for grp in range(3):
        b.salu("s_add_u32", sr(S_KO + grp), sr(S_QB), KF - 8192 + 4096 * grp)
        b.salu("s_add_u32", sr(S_VO + grp), sr(S_QB), VF - 8192 + 4096 * grp)
    b.salu("s_cmp_lt_u32", sr(S_RQ), 4)
    b.salu("s_cselect_b32", sr(S_VO + 3), sr(S_VO + 2), sr(S_VO))
    b.valu("v_and_b32", vr(V_T0), 15, vr(V_L))
    b.valu("v_lshlrev_b32", vr(V_T0), 4, vr(V_T0))
    b.valu("v_lshrrev_b32", vr(V_T1), 5, vr(V_L))
    b.valu("v_lshl_add_u32", vr(V_VO), vr(V_T1), 8, vr(V_T0))
    b.salu("s_mov_b32", sr(S_EXV), "0xffff")
    b.salu("s_mov_b32", sr(S_EXV + 1), "0xffff")
    ub_issue(6)
    b.valu("v_and_b32", vr(V_T0), 31, vr(V_L))
    b.valu("v_lshlrev_b32", vr(V_T1), 2, vr(V_T1))
    b.valu("v_sub_u32", vr(V_T0), vr(V_T0), vr(V_T1))
    for r in range(16):
        b.valu("v_cmp_le_i32", sr(S_MASK + 2 * r, 2), (r & 3) + 8 * (r >> 2), vr(V_T0))
    b.valu("v_mov_b32", vr(V_BIG), hex(f32bits(-1e30)))
    b.valu("v_mov_b32", vr(V_T0), "0xffff")
    b.valu("v_mov_b32", vr(V_T1), "0xffff0000")
    for i in range(8):
        b.valu("v_cndmask_b32", vr(V_MSK + i), 0, vr(V_T0), sr(S_MASK + 4 * i, 2))
        b.valu("v_cndmask_b32", vr(V_M0), 0, vr(V_T1), sr(S_MASK + 4 * i + 2, 2))
        b.valu("v_or_b32", vr(V_MSK + i), vr(V_MSK + i), vr(V_M0))
    b.wait(vm="U12")
    lds_signal(b, LAND, 12, V_T0)
    b.valu("v_mov_b32", vr(V_NEG), "0x3f803f80")
    b.valu("v_mov_b32", vr(V_NEG + 1), "0x3f803f80")
    for i in range(40):
        if 'pk' in OPT:
            b.valu("v_mov_b64", vr(V_V + 2 * i, 2), vr(V_NEG, 2))
        else:
            b.valu("v_mov_b32", vr(V_V + 2 * i), vr(V_NEG))
            b.valu("v_mov_b32", vr(V_V + 2 * i + 1), vr(V_NEG))
    b.salu("s_lshl_b32", sr(S_T1), sr(S_RQ), 16)
    b.salu("s_lshl_b32", sr(S_SO), sr(S_HD), 11)
    b.salu("s_add_u32", sr(S_SO), sr(S_SO), sr(S_T1))
    b.salu("s_add_u32", sr(S_SO), sr(S_SO), OF)
    for t in (14, 15):
        lds_check_issue(b, CONS, V_SY, V_C, f"k{t}")
        lds_check(b, CONS, t - 6, V_SY, V_C, f"k{t}")
        for n in range(6):
            ub_step(b, V_UB, t, n)
        b.wait(vm=f"U{t-1}")
        lds_signal(b, LAND, t - 1, V_T0)
    b.vmem_load("buffer_load_dwordx2", vr(V_B0 + 2, 2), vr(V_B0), sr(S_WS, 4), "0", mods="sc1", tag="fl")
    if 'nol2pf0' not in OPT:
        w2_touch_l2(b, S_DBG, 232, 233)
    b.wait(vm="U15")
    lds_signal(b, LAND, 15, V_T0)
    poll(b, V_B0 + 2, V_B0, first_issued=True)
    stamp(b, 7)

    def load_k(n):
        off = (n % 4) * 1024
        b.vmem_load("buffer_load_dwordx4", vr(V_K + 4 * n, 4), vr(V_QO), sr(S_WS, 4), sr(S_KO + n // 4),
                    mods=(f"offset:{off} " if off else "") + "sc1", tag=f"k{n}")

    def load_v(ns):
        b.salu("s_mov_b64", "exec", sr(S_EXV, 2))
        for n in ns:
            for mf in range(2):
                off = (n % 4) * 1024 + mf * 512
                b.vmem_load("buffer_load_dwordx4", vr(V_V + 8 * n + 4 * mf, 4), vr(V_VO), sr(S_WS, 4), sr(S_VO + (3 if n < 2 else n // 4)),
                            mods=(f"offset:{off} " if off else "") + "sc1", tag=f"v{n}")
        b.salu("s_mov_b64", "exec", -1)
    b.vmem_load("buffer_load_dwordx4", vr(V_Q, 4), vr(V_QO), sr(S_WS, 4), sr(S_QB), mods="sc1", tag="q0")
    for n in [0, 8, 7, 6, 5, 4, 3, 2, 1]:
        load_k(n)
    load_v([8, 0, 7, 6, 5, 4, 3, 2, 1, 9])
    b.vmem_load("buffer_load_dwordx4", vr(V_Q + 4, 4), vr(V_QO), sr(S_WS, 4), sr(S_QB), mods="offset:1024 sc1", tag="q1")
    load_k(9)
    if 'l2pf' in OPT:
        w2_touch_l2(b, S_DBG, 232, 233)
    stamp(b, 8)
    stubs = []
    for task in range(2):
        q = vr(V_Q + 4 * task, 4)
        Kf = lambda j: vr(V_K + 4 * (8 + task - j), 4)
        Vf = lambda j, mf: vr(V_V + 8 * (8 + task - j) + 4 * mf, 4)
        ktag = lambda j: f"k{8 + task - j}"
        vtag = lambda j: f"v{8 + task - j}"
        b.salu("s_lshl_b32", sr(S_T1), sr(S_RQ), 1)
        b.salu("s_add_u32", sr(S_T1), sr(S_T1), task)
        b.salu("s_min_u32", sr(S_NF), sr(S_T1), 7)
        L1, L2 = b.newlabel("p1"), b.newlabel("p2")
        bufs = [V_CN, V_O, V_B0, V_B1]
        if task == 1:
            b.wait(vm="k9")
        b.wait(vm=[f"q{task}", ktag(8)])
        b.mfma(vr(V_B0, 16), Kf(8), q, "0")
        b.wait(vm=ktag(0))
        b.mfma(vr(V_B1, 16), Kf(0), q, "0")
        for j in (1, 2):
            b.wait(vm=ktag(j))
            b.mfma(vr(bufs[(j - 1) % 4], 16), Kf(j), q, "0")
        lm1, lm2 = b.newlabel("m1"), b.newlabel("m2")
        b.nop(8)
        b.salu("s_cmp_lt_u32", sr(S_T1), 8)
        b.branch("s_cbranch_scc1", lm1)
        for r in range(16):
            b.valu("v_cndmask_b32", vr(V_SM + r), vr(V_B0 + r), vr(V_B1 + r), sr(S_MASK + 2 * r, 2))
        b.label(lm2)
        st = [f"{lm1}:", "  s_nop 7"]
        for r in range(16):
            st.append(f"  v_cndmask_b32 {vr(V_SM + r)}, {vr(V_BIG)}, {vr(V_B1 + r)}, {sr(S_MASK + 2 * r, 2)}")
        st.append(f"  s_branch {lm2}")
        stubs.append("\n".join(st))

        def maxtree(buf, first):
            for i in range(8):
                m = V_M0 + (i % 2)
                if first and i < 2:
                    b.valu("v_max_f32", vr(m), vr(buf + 2 * i), vr(buf + 2 * i + 1))
                else:
                    b.valu("v_max3_f32", vr(m), vr(buf + 2 * i), vr(buf + 2 * i + 1), vr(m))
        maxtree(V_SM, True)
        for j in range(1, 8):
            b.salu("s_cmp_lt_u32", sr(S_NF), j)
            b.branch("s_cbranch_scc1", L1)
            if j + 2 <= 7:
                b.wait(vm=ktag(j + 2))
                b.mfma(vr(bufs[(j + 1) % 4], 16), Kf(j + 2), q, "0")
            maxtree(bufs[(j - 1) % 4], False)
        b.label(L1)
        b.valu("v_max_f32", vr(V_M0), vr(V_M0), vr(V_M1))
        b.valu("v_mov_b32", vr(V_M1), vr(V_M0))
        b.valu("v_permlane32_swap_b32", vr(V_M1), vr(V_M0))
        b.valu("v_max_f32", vr(V_M0), vr(V_M0), vr(V_M1))
        b.valu("v_sub_f32", vr(V_NEG), 0, vr(V_M0))
        b.valu("v_sub_f32", vr(V_NEG + 1), 0, vr(V_M0))
        b.nop(2)
        for i in range(8):
            if 'pk' in OPT:
                b.valu("v_mov_b64", vr(V_CN + 2 * i, 2), vr(V_NEG, 2))
            else:
                b.valu("v_mov_b32", vr(V_CN + 2 * i), vr(V_NEG))
                b.valu("v_mov_b32", vr(V_CN + 2 * i + 1), vr(V_NEG))
        bufs2 = [V_B0, V_B1, V_SM]
        b.mfma(vr(V_B0, 16), Kf(1), q, vr(V_CN, 16))
        for r in range(8):
            if 'pk' in OPT:
                b.valu("v_pk_add_f32", vr(V_SM + 2 * r, 2), vr(V_SM + 2 * r, 2), vr(V_NEG, 2))
            else:
                b.valu("v_add_f32", vr(V_SM + 2 * r), vr(V_NEG), vr(V_SM + 2 * r))
                b.valu("v_add_f32", vr(V_SM + 2 * r + 1), vr(V_NEG), vr(V_SM + 2 * r + 1))
        b.mfma(vr(V_B1, 16), Kf(2), q, vr(V_CN, 16))

        def expcvt(buf, inserts):
            for r in range(16):
                if r in inserts:
                    inserts[r]()
                b.valu("v_exp_f32", vr(buf + r), vr(buf + r))
                if r % 2 == 1 and r >= 3:
                    i = (r - 3) // 2
                    b.valu("v_cvt_pk_bf16_f32", vr(buf + i), vr(buf + 2 * i), vr(buf + 2 * i + 1))
            b.valu("v_cvt_pk_bf16_f32", vr(buf + 7), vr(buf + 14), vr(buf + 15))
        expcvt(V_SM, {})
        for i in range(8):
            b.valu("v_and_b32", vr(V_SM + 8 + i), vr(V_MSK + i), vr(V_SM + i))
        for i in range(8):
            b.valu("v_xor_b32", vr(V_SM + i), vr(V_SM + i), vr(V_SM + 8 + i))
        b.wait(vm=[vtag(0), vtag(8), "k1"])
        b.mfma(vr(V_O, 16), Vf(0, 0), vr(V_SM + 8, 4), "0")
        pend = [(Vf(0, 1), vr(V_SM + 12, 4)), (Vf(8, 0), vr(V_SM, 4)), (Vf(8, 1), vr(V_SM + 4, 4))]
        for j in range(1, 9):
            if j <= 7:
                lx = b.newlabel("x")
                b.salu("s_cmp_lt_u32", sr(S_NF), j)
                b.branch("s_cbranch_scc1", lx)
                st = [f"{lx}:", "  s_waitcnt vmcnt(0)", "  s_nop 1"]
                for (a_, p_) in pend:
                    st.append(f"  v_mfma_f32_32x32x16_bf16 {vr(V_O, 16)}, {a_}, {p_}, {vr(V_O, 16)}")
                st.append(f"  s_branch {L2}")
                stubs.append("\n".join(st))
                buf = bufs2[(j - 1) % 3]
                ins = {}
                pos = [0, 4, 8, 12] if len(pend) == 3 else [0, 5, 10]
                if j > 1:
                    b.wait(vm=vtag(j - 1))
                for n_, (a_, p_) in enumerate(pend):
                    ins[pos[n_]] = (lambda a_=a_, p_=p_: b.mfma(vr(V_O, 16), a_, p_, vr(V_O, 16)))
                if j + 2 <= 7:
                    ins[pos[len(pend)]] = (lambda j=j: b.mfma(vr(bufs2[(j + 1) % 3], 16), Kf(j + 2), q, vr(V_CN, 16)))
                expcvt(buf, ins)
                pend = [(Vf(j, 0), vr(buf, 4)), (Vf(j, 1), vr(buf + 4, 4))]
            else:
                b.wait(vm=vtag(7))
                for (a_, p_) in pend:
                    b.mfma(vr(V_O, 16), a_, p_, vr(V_O, 16))
        b.label(L2)
        b.valu("v_rcp_f32", vr(V_NEG), vr(V_O + 8))
        b.valu("v_mov_b32", vr(V_NEG + 1), vr(V_NEG))
        for i in range(4):
            if 'pk' in OPT:
                b.valu("v_pk_mul_f32", vr(V_O + 2 * i, 2), vr(V_O + 2 * i, 2), vr(V_NEG, 2))
            else:
                b.valu("v_mul_f32", vr(V_O + 2 * i), vr(V_NEG), vr(V_O + 2 * i))
                b.valu("v_mul_f32", vr(V_O + 2 * i + 1), vr(V_NEG), vr(V_O + 2 * i + 1))
        for i in range(4):
            b.valu("v_cvt_pk_bf16_f32", vr(V_SM + i), vr(V_O + 2 * i), vr(V_O + 2 * i + 1))
        b.vmem_store("buffer_store_dwordx4", vr(V_SM, 4), vr(V_QO), sr(S_WS, 4), sr(S_SO),
                     mods=(f"offset:{1024*task} " if task else "") + "sc1", tag="ost")
        stamp(b, 9 + task)
    S_O, S_XO, S_OUT = 64, 68, 72
    S_RB2, S_CB, S_F = 76, 77, 78
    V_FO, V_OO, V_XOFF, V_TW0, V_TW1, V_EW, V_ER, V_RA, V_RA2 = 12, 13, 14, 15, 16, 17, 18, 19, 8
    V_XR = 20
    V_A = 28
    V_W2 = 92
    V_AC = 124
    V_R = 156
    X = 236
    b.salu("s_lshl_b32", sr(S_F), "s2", 7)
    b.salu("s_add_u32", sr(S_F), sr(S_F), F2)
    b.salu("s_and_b32", sr(S_T0), "s2", 7)
    b.salu("s_lshl_b32", sr(S_T0), sr(S_T0), 2)
    b.salu("s_bfe_u32", sr(S_T1), "s2", (2 << 16) | 3)
    b.salu("s_add_u32", sr(S_RB2), sr(S_T0), sr(S_T1))
    b.salu("s_lshr_b32", sr(S_CB), "s2", 5)
    b.salu("s_lshl_b32", sr(S_T0), sr(S_RB2), 16)
    b.salu("s_add_u32", sr(S_T1), sr(S_T0), OF)
    srd(b, S_O, "s22", "s23", 65536, add=sr(S_T1))
    if 'fakeo' in OPT:
        srd(b, S_O, "s8", "s9", 65536)
    srd(b, S_XO, "s4", "s5", 65536, add=sr(S_T0))
    srd(b, S_OUT, "s18", "s19", 65536, add=sr(S_T0))
    b.valu("v_lshrrev_b32", vr(V_T0), 5, vr(V_L))
    b.valu("v_lshlrev_b32", vr(V_T0), 2, vr(V_T0))
    b.valu("v_bfe_u32", vr(V_T1), vr(V_L), 2, 2)
    b.valu("v_add_u32", vr(V_T0), vr(V_T0), vr(V_T1))
    b.valu("v_and_b32", vr(V_M0), 3, vr(V_L))
    b.valu("v_lshlrev_b32", vr(V_M0), 3, vr(V_M0))
    b.valu("v_lshl_add_u32", vr(V_T0), vr(V_T0), 7, vr(V_M0))
    b.valu("v_lshrrev_b32", vr(V_T1), 1, vr(V_T1))
    b.valu("v_bfe_u32", vr(V_M0), vr(V_L), 4, 1)
    b.valu("v_lshl_add_u32", vr(V_T1), vr(V_T1), 1, vr(V_M0))
    b.valu("v_lshl_add_u32", vr(V_T0), vr(V_T1), 5, vr(V_T0))
    b.salu("s_and_b32", sr(S_T0), sr(S_R), 1)
    b.salu("s_lshl_b32", sr(S_T0), sr(S_T0), 6)
    b.valu("v_xor_b32", vr(V_T0), sr(S_T0), vr(V_T0))
    b.salu("s_lshl_b32", sr(S_T1), sr(S_T0), 9)
    b.salu("s_add_u32", sr(S_T1), sr(S_T1), WO_OFF)
    b.valu("v_add_u32", vr(V_TW0), sr(S_T1), vr(V_T0))
    b.valu("v_xor_b32", vr(V_TW1), 64, vr(V_TW0))
    b.salu("s_lshl_b32", sr(S_T1), sr(S_T0), 3)
    b.salu("s_lshl_b32", sr(S_T0), sr(S_RB2), 10)
    b.salu("s_add_u32", sr(S_T0), sr(S_T0), sr(S_T1))
    b.salu("s_add_u32", sr(S_T0), sr(S_T0), F2)
    b.valu("v_and_b32", vr(V_T0), 3, vr(V_L))
    b.valu("v_lshlrev_b32", vr(V_T0), 7, vr(V_T0))
    b.valu("v_add_u32", vr(V_FO), sr(S_T0), vr(V_T0))
    b.salu("s_lshl_b32", sr(S_T0), sr(S_R), 12)
    b.valu("v_add_u32", vr(V_RA), sr(S_T0), vr(V_QO))
    b.valu("v_add_u32", vr(V_RA2), 2 * RING, vr(V_RA))
    b.valu("v_add_u32", vr(V_EW), EX_OFF, vr(V_RA))
    b.valu("v_xor_b32", vr(V_ER), 4096, vr(V_RA))
    b.valu("v_add_u32", vr(V_ER), EX_OFF, vr(V_ER))
    b.salu("s_lshr_b32", sr(S_T0), sr(S_R), 1)
    b.salu("s_and_b32", sr(S_T1), sr(S_R), 1)
    b.salu("s_lshl_b32", sr(S_T1), sr(S_T1), 5)
    b.salu("s_add_u32", sr(S_T1), sr(S_T1), sr(S_T0))
    b.salu("s_lshl_b32", sr(S_T1), sr(S_T1), 10)
    b.valu("v_add_u32", vr(V_OO), sr(S_T1), vr(V_QO))
    b.salu("s_lshl_b32", sr(S_T0), sr(S_T0), 15)
    b.salu("s_lshl_b32", sr(S_T1), sr(S_CB), 7)
    b.salu("s_add_u32", sr(S_T0), sr(S_T0), sr(S_T1))
    b.salu("s_and_b32", sr(S_T1), sr(S_R), 1)
    b.salu("s_lshl_b32", sr(S_T1), sr(S_T1), 6)
    b.salu("s_add_u32", sr(S_T0), sr(S_T0), sr(S_T1))
    b.valu("v_and_b32", vr(V_T0), 31, vr(V_L))
    b.valu("v_lshlrev_b32", vr(V_T0), 10, vr(V_T0))
    b.valu("v_lshrrev_b32", vr(V_T1), 5, vr(V_L))
    b.valu("v_lshl_add_u32", vr(V_T0), vr(V_T1), 4, vr(V_T0))
    b.valu("v_add_u32", vr(V_XOFF), sr(S_T0), vr(V_T0))
    b.wait(vm=0)
    arrive(b, CNT + 8, S_F, V_T0)
    b.raw("  s_setprio 0")
    stamp(b, 11)
    b.vmem_load("buffer_load_dwordx4", vr(V_XR, 4), vr(V_XOFF), sr(S_XO, 4), "0", tag="xr")
    b.vmem_load("buffer_load_dwordx4", vr(V_XR + 4, 4), vr(V_XOFF), sr(S_XO, 4), "0", mods="offset:32", tag="xr")
    lds_check_issue(b, WOL, V_SY, V_R + 4, "wl")
    b.wait(vm="xr")
    for e in range(2):
        for i in range(4):
            b.valu("v_lshlrev_b32", vr(V_AC + 8 * e + 2 * i), 16, vr(V_XR + 4 * e + i))
            b.valu("v_and_b32", vr(V_AC + 8 * e + 2 * i + 1), "0xffff0000", vr(V_XR + 4 * e + i))
    for e in range(2):
        for i in range(4):
            b.valu("v_permlane32_swap_b32", vr(V_AC + 8 * e + i), vr(V_AC + 8 * e + 4 + i))
    if 'ot' in OPT:
        b.valu("v_and_b32", vr(V_T0), 15, vr(V_L))
        b.valu("v_lshrrev_b32", vr(V_T1), 3, vr(V_T0))
        b.valu("v_and_b32", vr(V_T0), 7, vr(V_T0))
        b.valu("v_lshlrev_b32", vr(V_T0), 7, vr(V_T0))
        b.valu("v_lshl_add_u32", vr(V_T0), vr(V_T1), 11, vr(V_T0))
        b.valu("v_readfirstlane_b32", sr(S_T0), vr(V_OO))
        b.salu("s_lshl_b32", sr(S_T1), sr(S_CB), 12)
        b.salu("s_add_u32", sr(S_T0), sr(S_T0), sr(S_T1))
    lds_check(b, WOL, 1, V_SY, V_R + 4, "wl", slp=4)
    poll(b, V_R, V_FO)
    stamp(b, 12)
    if 'ot' in OPT:
        b.vmem_load("buffer_load_dword", vr(V_T1), vr(V_T0), sr(S_O, 4), sr(S_T0), mods="sc1", tag="ot")
    for s in range(16):
        if s % 2 == 0 and s:
            b.salu("s_mov_b32", sr(S_SO), (s // 2) * 4096)
        b.vmem_load("buffer_load_dwordx4", vr(V_A + 4 * s, 4), vr(V_OO), sr(S_O, 4), sr(S_SO) if s >= 2 else "0",
                    mods=("offset:2048 " if s % 2 else "") + "sc1", tag=f"o{s}")

    def read_wo(s):
        for j in range(2):
            for q in range(2):
                b.ds_read("ds_read_b64_tr_b16", vr(V_W2 + 8 * (s % 4) + 4 * j + 2 * q, 2), vr(V_TW1 if j else V_TW0), s * 2048 + q * 1024, tag=f"u{s}")
    for s in range(3):
        read_wo(s)
    for s in range(16):
        if s + 3 < 16:
            read_wo(s + 3)
        b.wait(vm=f"o{s}", lg=f"u{s}")
        b.mfma(vr(V_AC + 16, 16), vr(V_W2 + 8 * (s % 4) + 4, 4), vr(V_A + 4 * s, 4), vr(V_AC + 16, 16) if s else "0")
        b.mfma(vr(V_AC, 16), vr(V_W2 + 8 * (s % 4), 4), vr(V_A + 4 * s, 4), vr(V_AC, 16))
    for g in range(4):
        b.ds_write("ds_write_b128", vr(V_EW), vr(V_AC + 16 + 4 * g, 4), g * 1024)
    b.wait(lg=0)
    stamp(b, 13)
    b.barrier()
    for g in range(4):
        for P in range(4):
            b.ds_read("ds_read_b128", vr(V_R + 20 * g + 4 * P, 4), vr(V_RA if P < 2 else V_RA2), (P % 2) * RING + g * 1024, tag=f"r{g}")
        b.ds_read("ds_read_b128", vr(V_R + 20 * g + 16, 4), vr(V_ER), g * 1024, tag=f"r{g}")
    for g in range(4):
        R = V_R + 20 * g
        b.wait(lg=f"r{g}")
        for i in range(4):
            b.valu("v_add_f32", vr(R + i), vr(R + i), vr(R + 4 + i))
            b.valu("v_add_f32", vr(R + 8 + i), vr(R + 8 + i), vr(R + 12 + i))
            b.valu("v_add_f32", vr(V_AC + 4 * g + i), vr(V_AC + 4 * g + i), vr(R + 16 + i))
        for i in range(4):
            b.valu("v_add_f32", vr(R + i), vr(R + i), vr(R + 8 + i))
        for i in range(4):
            b.valu("v_add_f32", vr(V_AC + 4 * g + i), vr(V_AC + 4 * g + i), vr(R + i))
        for i in range(2):
            b.valu("v_cvt_pk_bf16_f32", vr(X + 2 * g + i), vr(V_AC + 4 * g + 2 * i), vr(V_AC + 4 * g + 2 * i + 1))
        if g % 2 == 1:
            e = g // 2
            for i in range(2):
                b.valu("v_permlane32_swap_b32", vr(X + 4 * e + i), vr(X + 4 * e + 2 + i))
            b.vmem_store("buffer_store_dwordx4", vr(X + 4 * e, 4), vr(V_XOFF), sr(S_OUT, 4), "0",
                         mods=("offset:32 " if e else "") + ("sc1" if 'osc1' in OPT else ""))
    if STAMPS:
        b.raw("  s_waitcnt vmcnt(0)")
        stamp(b, 14)
        stamp_out(b)
    b.raw("  s_endpgm")
    for s_ in stubs:
        b.raw(s_)


NAME = "parallel_sum__sliding_block__glu_gated_reglu__prompt_kernel"
if __name__ == "__main__":
    hdr = open("parallel_sum__sliding_block__glu_gated_reglu__prompt.s.ref").read().split("; Override launch")[0]
    s = hdr + "; @launch grid=(256,1,1) block=(512,1,1) lds=163840\n"
    s += '.amdgcn_target "amdgcn-amd-amdhsa--gfx950"\n.text\n'
    s += kernel(NAME)
    s += f'''.section .rodata,"a"
.p2align 6
.amdhsa_kernel {NAME}
  .amdhsa_next_free_vgpr 256
  .amdhsa_next_free_sgpr 100
  .amdhsa_accum_offset 256
  .amdhsa_group_segment_fixed_size 0
  .amdhsa_kernarg_size 80
  .amdhsa_user_sgpr_count 2
  .amdhsa_user_sgpr_kernarg_segment_ptr 1
  .amdhsa_system_sgpr_workgroup_id_x 1
.end_amdhsa_kernel
'''
    open(sys.argv[1], "w").write(s)
```

```python
from asmb import *
import os, sys, struct
OPT = set(os.environ.get('OPT', '').split(','))
STAMPS = "stamps" in sys.argv


def optval(name, default):
    for o in OPT:
        if o.startswith(name + "="):
            return int(o.split("=")[1])
    return default


def f32bits(x):
    return struct.unpack("<I", struct.pack("<f", x))[0]


QF, KF, VF, HF, OF = 0x000000, 0x200000, 0x400000, 0x600000, 0xC00000
HF_RB = 86 * 2048
F0, F1, F2 = 0xE00000, 0xE08000, 0xE10000
RSG = 0xE18000
CSG = 0xE20000
WS_USED = 0xE60000

PA = 28672
SB = 24704
S1B = 12288 + 32
UB_SLOT = {8: 4, 9: 5, 10: 3, 11: 0, 12: 1, 13: 2, 14: 4, 15: 5}
WINB = 2 * SB
RD = 9
RING = RD * 2048
WO_OFF = 4 * RING
EX_OFF = WO_OFF + 65536
MISC = 159744
assert EX_OFF + 16384 <= MISC
CS_OFF = MISC
ST_OFF = MISC + 1536
CP_OFF = MISC + 2560
NC_OFF = MISC + 2560
SY_OFF = MISC + 4096 - 128
LAND, CONS, WOL, CNT, LAND1 = SY_OFF, SY_OFF + 16, SY_OFF + 32, SY_OFF + 48, SY_OFF + 64
NC_OFF = SY_OFF - 16
CP_OFF = EX_OFF + 16384
assert CP_OFF + 2048 <= MISC and CP_OFF >= 6 * SB
QSCALE = 0.25 * 1.4426950408889634
NDOWN = 22

S_X, S_WA, S_WS, S_WB, S_DBG, S_C = 24, 28, 32, 52, 56, 44
S_WV, S_R, S_P, S_RB, S_CC = 36, 37, 38, 39, 40
S_SOFF, S_T0, S_T1 = 41, 42, 43
S_T2, S_T3, S_U0, S_U1 = 48, 49, 50, 51
S_R4K, S_R3K, S_R6K, S_FS = 60, 61, 62, 63
S_MASK = 64
S_CSO, S_CARE, S_E = 96, 64, 97
S_ST = 98

V_L = 0
V_NON = 252
V_Z = 254
V_STP = 255


def stamp(b, i):
    if STAMPS:
        b.raw(f"  {'s_memtime' if 'cyc' in OPT else 's_memrealtime'} s[{S_ST}:{S_ST+1}]")
        b.raw("  s_waitcnt lgkmcnt(0)")
        b.raw(f"  v_writelane_b32 v{V_STP}, s{S_ST}, {i}")


def stamp_out(b, n=15):
    if not STAMPS:
        return
    b.raw("  s_mov_b64 exec, -1")
    b.raw(f"  s_mov_b32 s{S_WS+2}, 0x1000000")
    b.raw("  s_lshl_b32 s3, s2, 3")
    b.raw(f"  s_add_u32 s3, s3, s{S_WV}")
    b.raw("  s_lshl_b32 s3, s3, 2")
    b.raw("  s_add_u32 s3, s3, 0xF00000")
    b.raw("  v_lshlrev_b32 v1, 13, v0")
    b.raw(f"  s_mov_b64 exec, {(1 << n) - 1}")
    b.raw(f"  buffer_store_dword v{V_STP}, v1, s[{S_WS}:{S_WS+3}], s3 offen")


def srd(b, s, lo, hi, size, add=None):
    if add is None:
        b.salu("s_mov_b32", sr(s), lo)
        b.salu("s_mov_b32", sr(s + 1), hi)
    else:
        b.salu("s_add_u32", sr(s), lo, add)
        b.salu("s_addc_u32", sr(s + 1), hi, 0)
    b.salu("s_mov_b32", sr(s + 2), size)
    b.salu("s_mov_b32", sr(s + 3), 0x20000)


def guard(b, exit_label):
    b.salu("s_add_u32", "s3", "s3", 1)
    b.salu("s_cmp_gt_u32", "s3", 0x400000)
    b.branch("s_cbranch_scc1", exit_label)


def poll(b, vtmp, vaddr, first_issued=False, slp=None):
    lp, lq = b.newlabel("poll"), b.newlabel("pok")
    if not first_issued:
        b.vmem_load("buffer_load_dwordx2", vr(vtmp, 2), vr(vaddr), sr(S_WS, 4), "0", mods="sc1", tag="fl")
    b.wait(vm="fl")
    b.label(lp)
    b.valu("v_cmp_ne_u64", "vcc", vr(vtmp, 2), vr(V_NON, 2))
    b.branch("s_cbranch_vccz", lq)
    b.opt_begin()
    guard(b, lq)
    b.raw(f"  s_sleep {slp if slp is not None else optval('slp', 8)}")
    b.vmem_load("buffer_load_dwordx2", vr(vtmp, 2), vr(vaddr), sr(S_WS, 4), "0", mods="sc1")
    b.wait(vm=0)
    b.branch("s_branch", lp)
    b.opt_end()
    b.label(lq)


def arrive(b, cnt_off, s_flag, vt):
    b.valu("v_mov_b32", vr(vt), cnt_off)
    b.valu("v_mov_b32", vr(vt + 1), 1)
    b.salu("s_mov_b64", "exec", 1)
    b.raw(f"  ds_add_rtn_u32 {vr(vt+2)}, {vr(vt)}, {vr(vt+1)}")
    b.wait(lg=0)
    b.valu("v_readfirstlane_b32", sr(S_T2), vr(vt + 2))
    ld = b.newlabel("nf")
    b.salu("s_cmp_lg_u32", sr(S_T2), 3)
    b.branch("s_cbranch_scc1", ld)
    b.opt_begin()
    b.vmem_store("buffer_store_dwordx2", vr(V_NON, 2), vr(V_Z), sr(S_WS, 4), sr(s_flag), mods="sc1")
    b.opt_end()
    b.label(ld)
    b.salu("s_mov_b64", "exec", -1)


def lds_signal(b, word, val, vt):
    b.salu("s_lshl_b32", sr(S_T2), sr(S_R), 2)
    b.salu("s_add_u32", sr(S_T2), sr(S_T2), word)
    b.valu("v_mov_b32", vr(vt), sr(S_T2))
    b.valu("v_mov_b32", vr(vt + 1), val)
    b.ds_write("ds_write_b32", vr(vt), vr(vt + 1), 0)


def lds_check_issue(b, word, va, vt, tag):
    b.ds_read("ds_read_b128", vr(vt, 4), vr(va), word - SY_OFF, tag=tag)


def lds_check(b, word, val, va, vt, tag, slp=0):
    lp, lq = b.newlabel("lsp"), b.newlabel("lok")
    b.wait(lg=tag)
    b.label(lp)
    b.valu("v_min3_u32", vr(vt), vr(vt), vr(vt + 1), vr(vt + 2))
    b.valu("v_min_u32", vr(vt), vr(vt), vr(vt + 3))
    b.valu("v_cmp_gt_u32", "vcc", val, vr(vt))
    b.branch("s_cbranch_vccz", lq)
    b.opt_begin()
    guard(b, lq)
    if slp:
        b.raw(f"  s_sleep {slp}")
    b.ds_read("ds_read_b128", vr(vt, 4), vr(va), word - SY_OFF)
    b.wait(lg=0)
    b.branch("s_branch", lp)
    b.opt_end()
    b.label(lq)


def lds_check_a(b, val, vt, tag):
    b.wait(lg=tag)
    b.valu("v_min3_u32", vr(vt), vr(vt), vr(vt + 1), vr(vt + 2))
    b.valu("v_min_u32", vr(vt), vr(vt), vr(vt + 3))
    b.valu("v_cmp_gt_u32", "vcc", val, vr(vt))


def lds_check_b(b, word, val, va, vt):
    lp, lq = b.newlabel("lsp"), b.newlabel("lok")
    b.label(lp)
    b.branch("s_cbranch_vccz", lq)
    b.opt_begin()
    guard(b, lq)
    b.ds_read("ds_read_b128", vr(vt, 4), vr(va), word - SY_OFF)
    b.wait(lg=0)
    b.valu("v_min3_u32", vr(vt), vr(vt), vr(vt + 1), vr(vt + 2))
    b.valu("v_min_u32", vr(vt), vr(vt), vr(vt + 3))
    b.valu("v_cmp_gt_u32", "vcc", val, vr(vt))
    b.nop(5)
    b.branch("s_branch", lp)
    b.opt_end()
    b.label(lq)


def w2_touch_mall(b, sc, va, vd):
    l1 = b.newlabel("w2")
    b.salu("s_cmp_lg_u32", sr(S_R), 1)
    b.branch("s_cbranch_scc1", l1)
    b.opt_begin()
    b.salu("s_sub_u32", sr(S_U1), "s2", 172)
    b.salu("s_cmp_lt_u32", "s2", 172)
    b.salu("s_cselect_b32", sr(sc), "s16", "s8")
    b.salu("s_cselect_b32", sr(sc + 1), "s17", "s9")
    b.salu("s_cselect_b32", sr(S_U0), "s2", sr(S_U1))
    b.salu("s_mov_b32", sr(sc + 2), 512 * 1024)
    b.salu("s_cselect_b32", sr(sc + 2), 1376 * 1024, sr(sc + 2))
    b.salu("s_mov_b32", sr(sc + 3), 0x20000)
    b.salu("s_lshl_b32", sr(S_U0), sr(S_U0), 13)
    b.valu("v_lshlrev_b32", vr(va), 7, vr(V_L))
    b.vmem_load("buffer_load_dword", vr(vd), vr(va), sr(sc, 4), sr(S_U0))
    b.opt_end()
    b.label(l1)


def w2_touch_l2(b, sc, va, vd):
    b.salu("s_lshr_b32", sr(S_U0), "s2", 3)
    b.salu("s_sub_u32", sr(S_U1), sr(S_U0), 22)
    b.salu("s_cmp_lt_u32", sr(S_U0), 22)
    b.salu("s_cselect_b32", sr(sc), "s16", "s8")
    b.salu("s_cselect_b32", sr(sc + 1), "s17", "s9")
    b.salu("s_cselect_b32", sr(S_U0), sr(S_U0), sr(S_U1))
    b.salu("s_mov_b32", sr(sc + 2), 512 * 1024)
    b.salu("s_cselect_b32", sr(sc + 2), 1376 * 1024, sr(sc + 2))
    b.salu("s_mov_b32", sr(sc + 3), 0x20000)
    b.salu("s_lshl_b32", sr(S_U0), sr(S_U0), 16)
    b.salu("s_lshl_b32", sr(S_U1), sr(S_R), 14)
    b.salu("s_add_u32", sr(S_U0), sr(S_U0), sr(S_U1))
    if 'map162' in OPT:
        b.salu("s_and_b32", sr(S_U1), "s2", 3)
        b.salu("s_lshl_b32", sr(S_U1), sr(S_U1), 8)
        b.salu("s_add_u32", sr(S_U0), sr(S_U0), sr(S_U1))
        b.valu("v_bfe_u32", vr(va), vr(V_L), 1, 4)
        b.valu("v_lshlrev_b32", vr(va), 10, vr(va))
        b.valu("v_and_b32", vr(vd), 1, vr(V_L))
        b.valu("v_lshl_add_u32", vr(va), vr(vd), 7, vr(va))
        b.vmem_load("buffer_load_dword", vr(vd), vr(va), sr(sc, 4), sr(S_U0), tag="pf")
        return
    if 'map48' not in OPT:
        b.salu("s_and_b32", sr(S_U1), "s2", 1)
        b.salu("s_lshl_b32", sr(S_U1), sr(S_U1), 9)
        b.salu("s_add_u32", sr(S_U0), sr(S_U0), sr(S_U1))
        b.valu("v_lshrrev_b32", vr(va), 2, vr(V_L))
        b.valu("v_lshlrev_b32", vr(va), 10, vr(va))
        b.valu("v_and_b32", vr(vd), 3, vr(V_L))
        b.valu("v_lshl_add_u32", vr(va), vr(vd), 7, vr(va))
        b.vmem_load("buffer_load_dword", vr(vd), vr(va), sr(sc, 4), sr(S_U0), tag="pf")
        return
    b.valu("v_lshlrev_b32", vr(va), 7, vr(V_L))
    b.vmem_load("buffer_load_dword", vr(vd), vr(va), sr(sc, 4), sr(S_U0), tag="pf")
    b.salu("s_add_u32", sr(S_U0), sr(S_U0), 8192)
    b.vmem_load("buffer_load_dword", vr(vd + 1), vr(va), sr(sc, 4), sr(S_U0), tag="pf")


def dec2(b, s_rb2, s_cb):
    if 'map162' in OPT:
        if s_rb2 is not None:
            b.salu("s_bfe_u32", sr(S_T0), "s2", (1 << 16) | 2)
            b.salu("s_lshl_b32", sr(S_T0), sr(S_T0), 4)
            b.salu("s_bfe_u32", sr(S_T1), "s2", (4 << 16) | 3)
            b.salu("s_add_u32", sr(s_rb2), sr(S_T0), sr(S_T1))
        b.salu("s_and_b32", sr(S_T1), "s2", 3)
        b.salu("s_lshl_b32", sr(S_T1), sr(S_T1), 1)
        b.salu("s_lshr_b32", sr(s_cb), "s2", 7)
        b.salu("s_add_u32", sr(s_cb), sr(s_cb), sr(S_T1))
    elif 'map48' not in OPT:
        if s_rb2 is not None:
            b.salu("s_bfe_u32", sr(S_T0), "s2", (2 << 16) | 1)
            b.salu("s_lshl_b32", sr(S_T0), sr(S_T0), 3)
            b.salu("s_bfe_u32", sr(S_T1), "s2", (3 << 16) | 3)
            b.salu("s_add_u32", sr(s_rb2), sr(S_T0), sr(S_T1))
        b.salu("s_and_b32", sr(S_T1), "s2", 1)
        b.salu("s_lshl_b32", sr(S_T1), sr(S_T1), 2)
        b.salu("s_lshr_b32", sr(s_cb), "s2", 6)
        b.salu("s_add_u32", sr(s_cb), sr(s_cb), sr(S_T1))
    else:
        if s_rb2 is not None:
            b.salu("s_and_b32", sr(S_T0), "s2", 7)
            b.salu("s_lshl_b32", sr(S_T0), sr(S_T0), 2)
            b.salu("s_bfe_u32", sr(S_T1), "s2", (2 << 16) | 3)
            b.salu("s_add_u32", sr(s_rb2), sr(S_T0), sr(S_T1))
        b.salu("s_lshr_b32", sr(s_cb), "s2", 5)


def bf16r(b, reg):
    b.valu("v_cvt_pk_bf16_f32", vr(reg), vr(reg), vr(reg))
    b.valu("v_lshlrev_b32", vr(reg), 16, vr(reg))


def rows12_offsets(b, dst, n, stride, s_base, t0, t1):
    for i in range(n):
        b.valu("v_add_u32", vr(t0), 64 * i, vr(V_L))
        b.valu("v_mul_u32_u24", vr(t1), 5462, vr(t0))
        b.valu("v_lshrrev_b32", vr(t1), 16, vr(t1))
        b.valu("v_mul_u32_u24", vr(t1), stride - 192, vr(t1))
        b.valu("v_lshl_add_u32", vr(t1), vr(t0), 4, vr(t1))
        b.salu("s_sub_u32", sr(S_T2), sr(s_base), 1024 * (i % 4))
        b.valu("v_add_u32", vr(dst + i), sr(S_T2), vr(t1))


def ub_setup(b, dst, t0, t1):
    b.salu("s_cmp_lt_u32", sr(S_R), 2)
    b.salu("s_cselect_b32", sr(S_WB), "s12", "s14")
    b.salu("s_cselect_b32", sr(S_WB + 1), "s13", "s15")
    b.salu("s_cmp_lt_u32", sr(S_CC), 15)
    b.salu("s_cselect_b32", sr(S_WB + 2), 512 * 2752, 0)
    b.salu("s_mov_b32", sr(S_WB + 3), 0x20000)
    b.salu("s_and_b32", sr(S_U0), sr(S_R), 1)
    b.salu("s_mul_i32", sr(S_R6K), sr(S_U0), 6144)
    b.salu("s_lshr_b32", sr(S_U1), sr(S_R), 1)
    b.salu("s_mul_i32", sr(S_U1), sr(S_U1), S1B)
    b.salu("s_add_u32", sr(S_R6K), sr(S_R6K), sr(S_U1))
    b.salu("s_mul_i32", sr(S_U0), sr(S_U0), 32 * 2752)
    b.salu("s_lshl_b32", sr(S_U1), sr(S_FS), 5)
    b.salu("s_add_u32", sr(S_U0), sr(S_U0), sr(S_U1))
    rows12_offsets(b, dst, 6, 2752, S_U0, t0, t1)


def ub_step(b, vq, t, n):
    if n % 4 == 0:
        b.salu("s_add_u32", "m0", sr(S_R6K), UB_SLOT[t] * SB + 1024 * n)
    if n == 0:
        b.salu("s_mov_b32", sr(S_SOFF), (t - 8) * 64 * 2752)
    b.vmem_dma(vr(vq + n), sr(S_WB, 4), sr(S_SOFF), mods=f"offset:{1024*(n%4)}" if n % 4 else "", tag=f"U{t}")


def xread_setup(b, vxb, t0, t1, t2):
    b.valu("v_and_b32", vr(t0), 31, vr(V_L))
    b.salu("s_lshl_b32", sr(S_T0), sr(S_R), 5)
    b.valu("v_add_u32", vr(t0), sr(S_T0), vr(t0))
    b.valu("v_lshrrev_b32", vr(t1), 1, vr(t0))
    b.valu("v_lshrrev_b32", vr(t2), 5, vr(V_L))
    b.valu("v_xor_b32", vr(t1), vr(t1), vr(t2))
    b.valu("v_and_b32", vr(t1), 7, vr(t1))
    b.valu("v_lshlrev_b32", vr(t1), 4, vr(t1))
    b.valu("v_lshl_add_u32", vr(vxb), vr(t0), 7, vr(t1))
    for s in range(1, 4):
        b.valu("v_xor_b32", vr(vxb + s), 32 * s, vr(vxb))


def tr192(b, dst, chmul, t0, t1):
    b.valu("v_lshrrev_b32", vr(t0), 5, vr(V_L))
    b.valu("v_lshlrev_b32", vr(t0), 3, vr(t0))
    b.valu("v_bfe_u32", vr(t1), vr(V_L), 2, 2)
    b.valu("v_add_u32", vr(t0), vr(t0), vr(t1))
    b.valu("v_mul_u32_u24", vr(t0), 192, vr(t0))
    b.valu("v_and_b32", vr(t1), 3, vr(V_L))
    b.valu("v_lshl_add_u32", vr(t0), vr(t1), 3, vr(t0))
    b.valu("v_bfe_u32", vr(t1), vr(V_L), 4, 1)
    b.valu("v_mul_u32_u24", vr(t1), chmul, vr(t1))
    b.valu("v_add_u32", vr(dst), vr(t0), vr(t1))


def kernel(name):
    b = B()
    b.raw(f".globl {name}\n.p2align 8\n.type {name},@function\n{name}:")
    b.salu("s_cmp_ge_u32", "s2", 256)
    b.branch("s_cbranch_scc1", "L_END")
    stamp(b, 0)
    b.raw("  s_load_dwordx16 s[4:19], s[0:1], 0")
    b.raw("  s_load_dwordx4 s[20:23], s[0:1], 64")
    b.raw(f"  s_getpc_b64 s[{S_U0}:{S_U0+1}]")
    b.label("L_PC")
    b.valu("v_lshlrev_b32", "v2", 7, "v0")
    b.valu("v_min_u32", "v2", "L_END-L_PC", "v2")
    b.raw(f"  global_load_dword v251, v2, s[{S_U0}:{S_U0+1}]")
    b.valu("v_lshrrev_b32", "v1", 6, "v0")
    b.valu("v_and_b32", "v0", 63, "v0")
    b.valu("v_readfirstlane_b32", sr(S_WV), "v1")
    RBB = optval("rbb", 2)
    xb = 4 - RBB
    b.salu("s_and_b32", sr(S_T0), "s2", (1 << xb) - 1)
    b.salu("s_lshl_b32", sr(S_T0), sr(S_T0), RBB)
    b.salu("s_bfe_u32", sr(S_T1), "s2", (RBB << 16) | 3)
    b.salu("s_add_u32", sr(S_RB), sr(S_T0), sr(S_T1))
    b.salu("s_bfe_u32", sr(S_T0), "s2", ((3 - xb) << 16) | xb)
    b.salu("s_lshl_b32", sr(S_T0), sr(S_T0), 5 - RBB)
    b.salu("s_lshr_b32", sr(S_T1), "s2", 3 + RBB)
    b.salu("s_add_u32", sr(S_CC), sr(S_T0), sr(S_T1))
    if 'al' in OPT:
        b.salu("s_bfe_u32", sr(S_T0), "s2", (2 << 16) | 1)
        b.salu("s_lshl_b32", sr(S_T0), sr(S_T0), 2)
        b.salu("s_bfe_u32", sr(S_T1), "s2", (2 << 16) | 3)
        b.salu("s_add_u32", sr(S_RB), sr(S_T0), sr(S_T1))
        b.salu("s_and_b32", sr(S_T0), "s2", 1)
        b.salu("s_lshl_b32", sr(S_T0), sr(S_T0), 3)
        b.salu("s_lshr_b32", sr(S_T1), "s2", 5)
        b.salu("s_add_u32", sr(S_CC), sr(S_T0), sr(S_T1))
    b.salu("s_and_b32", sr(S_R), sr(S_WV), 3)
    b.salu("s_lshr_b32", sr(S_P), sr(S_WV), 2)
    b.salu("s_mul_i32", sr(S_FS), sr(S_CC), 6)
    b.salu("s_min_u32", sr(S_FS), sr(S_FS), 80)
    b.valu("v_mov_b32", vr(V_Z), 0)
    b.salu("s_mov_b32", "s3", 0)
    b.salu("s_cmp_eq_u32", sr(S_P), 0)
    b.branch("s_cbranch_scc1", "L_P0")
    t1 = p1()
    t0 = p0()
    return b.text() + t1 + t0 + "L_END:\n  s_endpgm\n"


def common_srds(b):
    b.wait(lg=0)
    b.salu("s_lshl_b32", sr(S_T0), sr(S_RB), 17)
    srd(b, S_X, "s4", "s5", 0x20000, add=sr(S_T0))
    srd(b, S_WA, "s6", "s7", 512 * 3072)
    srd(b, S_WS, "s22", "s23", WS_USED)
    srd(b, S_DBG, "s20", "s21", 256)


def p1():
    b = B(); b.nlabel = 1000
    V_XO0, V_XO1, V_T0, V_T1, V_T2 = 1, 2, 3, 4, 5
    V_TRB = 1
    V_SY, V_CK = 4, 8
    V_RING = 8
    V_ACC = 32
    V_X = 128
    V_WA = 32
    V_UB, V_XB = 36, 44
    S_H, S_WD, S_WO = 72, 76, 80
    S_RB2, S_CB, S_M0B, S_KA, S_KB, S_F = 84, 85, 86, 87, 88, 89

    def pref_b(t, half=None):
        if half in (None, 0):
            b.salu("s_add_u32", "m0", sr(S_M0B), (t % RD) * 2048)
            b.salu("s_mov_b32", sr(S_KB), t * 16384)
            b.vmem_dma("v7", sr(S_WD, 4), sr(S_KB), tag=f"b{t}")
        if half in (None, 1):
            b.salu("s_mov_b32", sr(S_KB), t * 16384 + 8192 - 1024)
            b.vmem_dma("v7", sr(S_WD, 4), sr(S_KB), mods="offset:1024", tag=f"b{t}")
    S_PS = 64

    def pstamp(i):
        if STAMPS:
            b.raw(f"  {'s_memtime' if 'cyc' in OPT else 's_memrealtime'} s[{S_ST}:{S_ST+1}]")
            b.raw("  s_waitcnt lgkmcnt(0)")
            b.raw(f"  s_mov_b32 s{S_PS+i}, s{S_ST}")
    if STAMPS:
        b.raw(f"  s_mov_b32 s{S_PS}, s{S_ST}")
    b.salu("s_lshl_b32", sr(S_R4K), sr(S_R), 12)
    b.valu("v_lshrrev_b32", vr(V_T0), 3, vr(V_L))
    b.salu("s_lshl_b32", sr(S_T0), sr(S_R), 5)
    b.valu("v_add_u32", vr(V_T1), sr(S_T0), vr(V_T0))
    b.valu("v_lshrrev_b32", vr(V_T2), 1, vr(V_T1))
    b.valu("v_xor_b32", vr(V_T2), vr(V_T2), vr(V_L))
    b.valu("v_and_b32", vr(V_T2), 7, vr(V_T2))
    b.valu("v_lshlrev_b32", vr(V_T2), 4, vr(V_T2))
    b.valu("v_lshl_add_u32", vr(V_XO0), vr(V_T1), 10, vr(V_T2))
    b.valu("v_xor_b32", vr(V_XO1), 64, vr(V_XO0))
    b.valu("v_add_u32", vr(V_XO1), 8192 - 1024, vr(V_XO1))
    b.salu("s_mul_i32", sr(S_R3K), sr(S_R), 3072)
    b.salu("s_mul_i32", sr(S_U0), sr(S_R), 16 * 3072)
    b.salu("s_mul_i32", sr(S_U1), sr(S_CC), 192)
    b.salu("s_add_u32", sr(S_U0), sr(S_U0), sr(S_U1))
    rows12_offsets(b, V_WA, 3, 3072, S_U0, V_T0, V_T1)
    common_srds(b)

    def a_steps(t):
        st = []
        base = (t % 3) * PA

        def xs(n):
            if n == 0:
                b.salu("s_add_u32", "m0", sr(S_R4K), base)
                b.salu("s_mov_b32", sr(S_SOFF), t * 128)
            if n == 2:
                b.salu("s_add_u32", sr(S_SOFF), sr(S_SOFF), 16384 - 2048)
            b.vmem_dma(vr(V_XO1 if n % 2 else V_XO0), sr(S_X, 4), sr(S_SOFF), mods=f"offset:{1024*n}" if n else "", tag=f"A{t}")

        def ws_(n):
            if n == 0:
                b.salu("s_add_u32", "m0", sr(S_R3K), base + 16384)
                b.salu("s_mov_b32", sr(S_SOFF), t * 64 * 3072)
            b.vmem_dma(vr(V_WA + n), sr(S_WA, 4), sr(S_SOFF), mods=f"offset:{1024*n}" if n else "", tag=f"A{t}")
        return [lambda n=n: xs(n) for n in range(4)] + [lambda n=n: ws_(n) for n in range(3)]
    for f in a_steps(0):
        f()
    b.salu("s_or_b32", sr(S_T0), "s2", sr(S_R))
    b.salu("s_cmp_lg_u32", sr(S_T0), 0)
    b.branch("s_cbranch_scc1", "L_NL")
    b.opt_begin()
    b.raw(f"  s_memrealtime s[{S_T2}:{S_T2+1}]")
    b.raw("  s_waitcnt lgkmcnt(0)")
    b.salu("s_or_b32", sr(S_T2 + 1), sr(S_T2 + 1), "0x80000000")
    b.valu("v_mov_b32", vr(V_NON), sr(S_T2))
    b.valu("v_mov_b32", vr(V_NON + 1), sr(S_T2 + 1))
    b.salu("s_mov_b64", "exec", 1)
    b.vmem_store("buffer_store_dwordx2", vr(V_NON, 2), vr(V_Z), sr(S_DBG, 4), "0", mods="sc1")
    b.salu("s_mov_b64", "exec", -1)
    b.opt_end()
    b.label("L_NL")
    for f in a_steps(1):
        f()
    xread_setup(b, V_XB, V_T0, V_T1, V_T2)
    ub_setup(b, V_UB, V_T0, V_T1)
    b.wait(vm="A0", lg=0)
    b.barrier()
    pstamp(1)
    UBP1 = {6: [8, 9], 7: [10, 11]} if 'ubl' not in OPT else {6: [8], 7: [9]}
    for t in range(8):
        steps = a_steps(t + 2) if t + 2 < 8 else []
        for u in UBP1.get(t, []):
            steps += [lambda n=n, u=u: ub_step(b, V_UB, u, n) for n in range(6)]
        for f in steps[:2]:
            f()
        for s in range(4):
            ks = 4 * t + s
            b.ds_read("ds_read_b128", vr(V_X + 4 * ks, 4), vr(V_XB + s), (t % 3) * PA, tag=f"x{ks}")
        for f in steps[2:]:
            f()
        if t == 7:
            tr192(b, V_TRB, S1B, V_T1 + 2, V_T1 + 3)
            b.valu("v_add_u32", vr(V_TRB + 1), WINB, vr(V_TRB))
            b.valu("v_add_u32", vr(V_TRB + 2), 2 * WINB, vr(V_TRB))
            b.valu("v_mov_b32", vr(V_SY), SY_OFF)
            b.salu("s_lshl_b32", sr(S_T0), sr(S_R), 2)
            b.salu("s_add_u32", sr(S_T0), sr(S_T0), CONS)
            b.valu("v_mov_b32", "v5", sr(S_T0))
            srd(b, S_WD, "s16", "s17", 1376 * 1024)
            b.valu("v_bfe_u32", "v6", vr(V_L), 4, 1)
            b.valu("v_lshlrev_b32", "v6", 2, "v6")
            b.valu("v_xor_b32", "v6", "v6", vr(V_L))
            b.valu("v_and_b32", "v6", 7, "v6")
            b.valu("v_lshlrev_b32", "v6", 4, "v6")
            b.valu("v_lshrrev_b32", "v7", 3, vr(V_L))
            b.valu("v_lshl_add_u32", "v7", "v7", 10, "v6")
            dec2(b, None, S_T0)
            b.salu("s_lshl_b32", sr(S_T0), sr(S_T0), 7)
            b.salu("s_mul_i32", sr(S_T1), sr(S_R), NDOWN * 16384)
            b.salu("s_add_u32", sr(S_T1), sr(S_T1), sr(S_T0))
            b.valu("v_add_u32", "v7", sr(S_T1), "v7")
            b.salu("s_mul_i32", sr(S_M0B), sr(S_R), RING)
        b.wait(vm=f"A{t+1}" if t < 7 else "U8", lg=0)
        b.barrier()
        if t + 1 in (2, 4, 8):
            pstamp({2: 2, 4: 3, 8: 4}[t + 1])
    LA = optval('lab', 4)
    NF = 6 * 32
    EARLY = False
    KT = optval("kt", 28)
    order = [(ks, blk) for ks in range(KT) for blk in range(6)] + [(ks, blk) for blk in range(6) for ks in range(KT, 32)]

    def read_w(f):
        ks, blk = order[f]
        t, s = 8 + ks // 4, ks % 4
        r0 = V_RING + 4 * (f % 5)
        for q in range(2):
            off = UB_SLOT[t] * SB + s * 3072 + q * 768 + blk * 32
            b.ds_read("ds_read_b64_tr_b16", vr(r0 + 2 * q, 2), vr(V_TRB + off // WINB), off % WINB, tag=f"w{f}")
    V_CKT = V_RING + 20
    b.raw(f"  s_setprio {optval('pr1', 2)}")
    V_NM, V_RS, V_CSRD, V_STO, V_A1 = 128, 129, 130, 131, 132
    TS = [136, 144]

    def csrd(n):
        blk, g = divmod(n, 2)
        T = TS[n % 2]
        b.ds_read("ds_read_b128", vr(T, 4), vr(V_CSRD), blk * 128 + g * 32, tag=f"c{n}")
        b.ds_read("ds_read_b128", vr(T + 4, 4), vr(V_CSRD), blk * 128 + 64 + g * 32, tag=f"c{n}")

    def epi_setup_ops():
        ops = []
        Vv = lambda *a, **k: ops.append(lambda: b.valu(*a, **k))
        S = lambda *a: ops.append(lambda: b.salu(*a))
        Vv("v_and_b32", vr(V_A1), 31, vr(V_L))
        S("s_lshl_b32", sr(S_T0), sr(S_R), 8)
        S("s_add_u32", sr(S_T0), sr(S_T0), ST_OFF)
        Vv("v_lshl_add_u32", vr(V_A1), vr(V_A1), 3, sr(S_T0))
        ops.append(lambda: b.ds_read("ds_read_b64", vr(V_NM, 2), vr(V_A1), 0, tag="str"))
        Vv("v_lshrrev_b32", vr(V_CSRD), 5, vr(V_L))
        Vv("v_lshlrev_b32", vr(V_CSRD), 4, vr(V_CSRD))
        Vv("v_add_u32", vr(V_CSRD), CS_OFF + 384, vr(V_CSRD))
        Vv("v_lshlrev_b32", vr(V_STO), 4, vr(V_L))
        ops.append(lambda: csrd(0))
        S("s_lshl_b32", sr(S_T0), sr(S_RB), 1)
        S("s_lshr_b32", sr(S_T1), sr(S_R), 1)
        S("s_add_u32", sr(S_T0), sr(S_T0), sr(S_T1))
        S("s_mul_i32", sr(S_T3), sr(S_T0), HF_RB)
        S("s_and_b32", sr(S_T1), sr(S_R), 1)
        S("s_lshl_b32", sr(S_T1), sr(S_T1), 10)
        S("s_add_u32", sr(S_T3), sr(S_T3), sr(S_T1))
        S("s_lshl_b32", sr(S_T1), sr(S_FS), 11)
        S("s_add_u32", sr(S_T3), sr(S_T3), sr(S_T1))
        S("s_add_u32", sr(S_T3), sr(S_T3), HF)
        ops.append(lambda: (b.salu("s_cmp_lt_u32", sr(S_CC), 15), b.salu("s_cselect_b32", sr(S_T3), sr(S_T3), "0x40000000")))
        ops.append(lambda: b.wait(lg="str"))
        Vv("v_mul_f32", vr(V_RS), vr(V_RS), vr(V_RS))
        return ops

    def epi_ops(blk):
        ops = []
        Vv = lambda *a, **k: ops.append(lambda: b.valu(*a, **k))
        acc = V_ACC + 16 * blk
        for g in range(2):
            n = 2 * blk + g
            T = TS[n % 2]
            if n + 1 < 12:
                ops.append(lambda n=n: csrd(n + 1))
            ops.append(lambda n=n: b.wait(lg=f"c{n}"))
            for i in range(4):
                Vv("v_fmac_f32", vr(acc + 4 * g + i), vr(V_NM), vr(T + i))
            for i in range(4):
                Vv("v_fmac_f32", vr(acc + 8 + 4 * g + i), vr(V_NM), vr(T + 4 + i))
            for i in range(4):
                Vv("v_max_f32", vr(acc + 4 * g + i), 0, vr(acc + 4 * g + i))
            for i in range(4):
                Vv("v_mul_f32", vr(acc + 8 + 4 * g + i), vr(V_RS), vr(acc + 8 + 4 * g + i))
            for i in range(4):
                Vv("v_mul_f32", vr(acc + 4 * g + i), vr(acc + 4 * g + i), vr(acc + 8 + 4 * g + i))
        for i in range(4):
            Vv("v_cvt_pk_bf16_f32", vr(acc + i), vr(acc + 2 * i), vr(acc + 2 * i + 1))

        def st():
            b.salu("s_add_u32", sr(S_T0), sr(S_T3), (blk // 2) * 4096)
            b.vmem_store("buffer_store_dwordx4", vr(acc, 4), vr(V_STO), sr(S_WS, 4), sr(S_T0),
                         mods=("offset:2048 " if blk % 2 else "") + "sc1", tag="st")
        ops.append(st)
        return ops
    first_use = {}
    last_use = {}
    for f, (ks, blk) in enumerate(order):
        first_use.setdefault(8 + ks // 4, f)
        last_use[8 + ks // 4] = f
    fu_inv = {v: k for k, v in first_use.items()}
    chk_issue = {}
    for t in range(9, 16):
        chk_issue[max(first_use[t] - 7, first_use[t - 1])] = t
        assert first_use[t] - first_use[t - 1] >= 4
    fill = []
    NK = 32 - KT
    for f in range(LA):
        read_w(f)
    for f in range(NF):
        nf = f + LA
        for t in (9, 10, 11):
            if nf == first_use[t] - 16:
                b.wait(vm=f"U{t}")
                b.valu("v_mov_b32", "v6", t)
                b.ds_write("ds_write_b32", "v5", "v6", LAND1 - CONS)
        if nf in fu_inv and fu_inv[nf] >= 9:
            t = fu_inv[nf]
            lds_check_b(b, LAND1 if t <= 11 else LAND, t, V_SY, V_CKT)
        if nf in chk_issue:
            t = chk_issue[nf]
            lds_check_issue(b, LAND1 if t <= 11 else LAND, V_SY, V_CKT, f"L{t}")
        if nf < NF:
            read_w(nf)
        ks, blk = order[f]
        b.wait(lg=f"w{f}")
        acc = V_ACC + 16 * blk
        b.mfma(vr(acc, 16), vr(V_RING + 4 * (f % 5), 4), vr(V_X + 4 * ks, 4), "0" if ks == 0 else vr(acc, 16))
        if nf + 2 in fu_inv and fu_inv[nf + 2] >= 9:
            lds_check_a(b, fu_inv[nf + 2], V_CKT, f"L{fu_inv[nf + 2]}")
        for t in (8, 9, 15):
            if f == last_use[t]:
                b.valu("v_mov_b32", "v6", t)
                b.ds_write("ds_write_b32", "v5", "v6", 0)
        if f == 6 * KT - 12:
            fill += epi_setup_ops()
        if f >= 6 * KT + NK + 1 and (f - 6 * KT - 1) % NK == 0:
            fill += epi_ops((f - 6 * KT - 1) // NK - 1)
        for _ in range(optval("fre", 7)):
            if fill:
                fill.pop(0)()
        if f == 95:
            pstamp(5)
        if 'fine' in OPT and f in (19, 43, 67):
            pstamp({19: 1, 43: 2, 67: 3}[f])
        if 'fine2' in OPT and f in (115, 139, 163):
            pstamp({115: 1, 139: 2, 163: 3}[f])
    pstamp(6)
    fill += epi_ops(5)
    b.valu("v_mov_b32", vr(V_Z), 0)
    b.valu("v_mov_b32", vr(V_A1), NC_OFF)
    b.ds_read("ds_read_b64", vr(V_NON, 2), vr(V_A1), 0)
    while fill:
        fill.pop(0)()
    b.raw(f"  s_setprio {optval('pr1b', 0)}")
    pstamp(7)
    if STAMPS:
        for i in range(8):
            b.raw(f"  v_writelane_b32 v{V_STP}, s{S_PS+i}, {i}")
    V_AO, V_BO0, V_BO1, V_TR0, V_TR1, V_BW0, V_BW1, V_FO, V_WR, V_U0, V_U1, V_U2 = 132, 133, 134, 135, 136, 137, 138, 139, 140, 141, 142, 143
    V_W = 144
    V_A = 160
    V_C = 8
    RA = optval('ra', 5)
    IL = 'noil' not in OPT
    b.salu("s_lshl_b32", sr(S_F), sr(S_RB), 4)
    b.salu("s_add_u32", sr(S_F), sr(S_F), sr(S_CC))
    b.salu("s_lshl_b32", sr(S_F), sr(S_F), 7)
    b.salu("s_add_u32", sr(S_F), sr(S_F), F1)
    dec2(b, S_RB2, S_CB)
    b.salu("s_mul_i32", sr(S_T0), sr(S_RB2), HF_RB)
    b.salu("s_add_u32", sr(S_T0), sr(S_T0), HF)
    srd(b, S_H, "s22", "s23", HF_RB, add=sr(S_T0))
    if 'fakea' in OPT:
        srd(b, S_H, "s16", "s17", HF_RB)
    srd(b, S_WO, "s8", "s9", 512 * 1024)
    b.salu("s_mul_i32", sr(S_T0), sr(S_R), NDOWN * 2048)
    b.valu("v_add_u32", vr(V_AO), sr(S_T0), vr(V_STO))
    b.valu("v_bfe_u32", vr(V_U1), vr(V_L), 4, 1)
    b.valu("v_lshlrev_b32", vr(V_U1), 2, vr(V_U1))
    b.valu("v_xor_b32", vr(V_U1), vr(V_U1), vr(V_L))
    b.valu("v_and_b32", vr(V_U1), 7, vr(V_U1))
    b.valu("v_lshlrev_b32", vr(V_U1), 4, vr(V_U1))
    b.valu("v_lshrrev_b32", vr(V_U0), 3, vr(V_L))
    b.valu("v_lshl_add_u32", vr(V_U0), vr(V_U0), 10, vr(V_U1))
    b.salu("s_lshl_b32", sr(S_T0), sr(S_CB), 7)
    b.salu("s_mul_i32", sr(S_T1), sr(S_R), NDOWN * 16384)
    b.salu("s_add_u32", sr(S_T1), sr(S_T1), sr(S_T0))
    b.salu("s_lshl_b32", sr(S_T1), sr(S_R), 17)
    b.salu("s_add_u32", sr(S_T1), sr(S_T1), sr(S_T0))
    b.valu("v_add_u32", vr(V_BW0), sr(S_T1), vr(V_U0))
    b.valu("v_add_u32", vr(V_BW1), 8192 - 1024, vr(V_BW0))
    b.valu("v_lshrrev_b32", vr(V_U0), 5, vr(V_L))
    b.valu("v_lshlrev_b32", vr(V_U0), 2, vr(V_U0))
    b.valu("v_bfe_u32", vr(V_U1), vr(V_L), 2, 2)
    b.valu("v_add_u32", vr(V_U0), vr(V_U0), vr(V_U1))
    b.valu("v_and_b32", vr(V_U2), 3, vr(V_L))
    b.valu("v_lshlrev_b32", vr(V_U2), 3, vr(V_U2))
    b.valu("v_lshl_add_u32", vr(V_U0), vr(V_U0), 7, vr(V_U2))
    b.valu("v_lshrrev_b32", vr(V_U1), 1, vr(V_U1))
    b.valu("v_bfe_u32", vr(V_U2), vr(V_L), 4, 1)
    b.valu("v_lshl_add_u32", vr(V_U1), vr(V_U1), 1, vr(V_U2))
    b.valu("v_lshl_add_u32", vr(V_U0), vr(V_U1), 5, vr(V_U0))
    b.valu("v_add_u32", vr(V_TR0), sr(S_M0B), vr(V_U0))
    b.valu("v_xor_b32", vr(V_TR1), 64, vr(V_TR0))
    b.valu("v_add_u32", vr(V_WR), sr(S_M0B), vr(V_STO))
    b.salu("s_lshr_b32", sr(S_T0), sr(S_RB2), 1)
    b.salu("s_lshl_b32", sr(S_T0), sr(S_T0), 11)
    b.salu("s_add_u32", sr(S_T0), sr(S_T0), F1)
    b.salu("s_mul_i32", sr(S_T1), sr(S_R), 11)
    b.salu("s_mul_i32", sr(S_T1), sr(S_T1), 21846)
    b.salu("s_lshr_b32", sr(S_T1), sr(S_T1), 16)
    b.valu("v_min_u32", vr(V_U0), 4, vr(V_L))
    b.valu("v_add_u32", vr(V_U0), sr(S_T1), vr(V_U0))
    b.valu("v_min_u32", vr(V_U0), 14, vr(V_U0))
    b.valu("v_lshlrev_b32", vr(V_U0), 7, vr(V_U0))
    b.valu("v_add_u32", vr(V_FO), sr(S_T0), vr(V_U0))
    lds_check_issue(b, CONS, V_SY, V_C, "cz")
    b.wait(vm=0)
    stamp(b, 8)
    arrive(b, CNT + 4, S_F, V_U0)
    lds_check(b, CONS, 15, V_SY, V_C, "cz")

    def pref_a(t, half=None):
        for i in range(2):
            if half is not None and half != i:
                continue
            if i == 0:
                b.salu("s_mov_b32", sr(S_KA), t * 2048)
            b.vmem_load("buffer_load_dwordx4", vr(V_A + 8 * (t % RA) + 4 * i, 4), vr(V_AO), sr(S_H, 4), sr(S_KA),
                        mods=("offset:1024 " if i else "") + "sc1", tag=f"a{t}")

    def pref_wo(i):
        if i == 0:
            b.salu("s_lshl_b32", sr(S_T3), sr(S_R), 14)
        b.salu("s_add_u32", "m0", sr(S_T3), WO_OFF + i * 2048)
        b.salu("s_mov_b32", sr(S_KB), i * 16384)
        b.vmem_dma(vr(V_BW0), sr(S_WO, 4), sr(S_KB), tag="wo")
        b.vmem_dma(vr(V_BW1), sr(S_WO, 4), sr(S_KB), mods="offset:1024", tag="wo")
    for t in range(RD if not EARLY else 0):
        pref_b(t)
    nwo = 0
    while nwo < optval("nwo", 8):
        pref_wo(nwo)
        nwo += 1
    if 'ht' in OPT:
        b.valu("v_min_u32", vr(V_U0), 43, vr(V_L))
        b.salu("s_mul_i32", sr(S_T0), sr(S_CB), 44)
        b.valu("v_add_u32", vr(V_U0), sr(S_T0), vr(V_U0))
        b.valu("v_lshlrev_b32", vr(V_U0), 7, vr(V_U0))
        b.salu("s_mul_i32", sr(S_T0), sr(S_R), NDOWN * 2048)
    poll(b, V_W, V_FO)
    stamp(b, 9)
    if 'ht' in OPT:
        b.vmem_load("buffer_load_dword", vr(V_U1), vr(V_U0), sr(S_H, 4), sr(S_T0), mods="sc1", tag="ht")
        if 'htw' in OPT:
            b.wait(vm="ht")
    for t in range(RA):
        pref_a(t)
        if nwo < 8:
            pref_wo(nwo)
            nwo += 1

    def rdw(t):
        ws = V_W + 8 * (t % 2)
        b.wait(vm=f"b{t}")
        for j in range(2):
            for q in range(2):
                b.ds_read("ds_read_b64_tr_b16", vr(ws + 4 * j + 2 * q, 2), vr(V_TR0 + j), (t % RD) * 2048 + q * 1024, tag=f"d{t}")
    def rdw1(t, n):
        ws = V_W + 8 * (t % 2)
        if n == 0:
            b.wait(vm=f"b{t}")
        j, q = divmod(n, 2)
        b.ds_read("ds_read_b64_tr_b16", vr(ws + 4 * j + 2 * q, 2), vr(V_TR0 + j), (t % RD) * 2048 + q * 1024, tag=f"d{t}")
    rdw(0)
    for t in range(NDOWN):
        ws = V_W + 8 * (t % 2)
        b.wait(vm=f"a{t}", lg=f"d{t}")
        lds = []
        if t + RD < NDOWN:
            lds += [lambda: pref_b(t + RD, 0), lambda: pref_b(t + RD, 1)]
        if t >= 1 and t - 1 + RA < NDOWN:
            lds = [lambda: pref_a(t - 1 + RA, 0), lambda: pref_a(t - 1 + RA, 1)] + lds
        for i in range(2):
            for j in range(2):
                acc = V_ACC + 16 * (2 * i + j)
                b.mfma(vr(acc, 16), vr(ws + 4 * j, 4), vr(V_A + 8 * (t % RA) + 4 * i, 4), "0" if t == 0 else vr(acc, 16))
                if t + 1 < NDOWN and 2 * i + j < 2:
                    rdw1(t + 1, 2 * (2 * i + j))
                    rdw1(t + 1, 2 * (2 * i + j) + 1)
                if lds:
                    lds.pop(0)()
        if t == optval("twol", 13):
            b.wait(vm="wo")
            lds_signal(b, WOL, 1, V_U0)
    stamp(b, 10)
    for blk in range(4):
        for g in range(4):
            b.ds_write("ds_write_b128", vr(V_WR), vr(V_ACC + 16 * blk + 4 * g, 4), blk * 4096 + g * 1024)
    b.wait(lg=0)
    stamp(b, 11)
    stamp_out(b)
    b.raw("  s_endpgm")
    print("p1 instrs", b.ninstr)
    return b.text()


def p0():
    b = B(); b.nlabel = 3000
    b.label("L_P0")
    DPP = "row_mask:0xf bank_mask:0xf"
    V_T0, V_T1, V_T2 = 1, 2, 3
    V_XB = 4
    V_TRA = 8
    V_SY = 9
    V_NM, V_RS = 10, 11
    V_CSRD, V_STO, V_STV, V_RSS = 12, 13, 14, 15
    V_ID = 16
    V_XF = 24
    V_RING = 36
    V_ACC = 72
    V_D2 = 120
    TS = [136, 144]
    RD_, CD, CA, U0, U1 = 152, 160, 192, 200, 201
    SU, SQ = 250, 251
    GA, G0 = 204, 236
    V_UB = 244
    if 'ct' in OPT:
        b.valu("v_lshlrev_b32", vr(V_T0), 7, vr(V_L))
        b.salu("s_lshl_b32", sr(S_T0), "s2", 13)
        b.wait(lg=0)
        b.salu("s_cmp_eq_u32", sr(S_R), 2)
        b.salu("s_cselect_b32", sr(S_C), "s12", "s14")
        b.salu("s_cselect_b32", sr(S_C + 1), "s13", "s15")
        b.salu("s_mov_b32", sr(S_C + 2), 512 * 2752)
        b.salu("s_cmp_eq_u32", sr(S_R), 1)
        b.salu("s_cselect_b32", sr(S_C), "s6", sr(S_C))
        b.salu("s_cselect_b32", sr(S_C + 1), "s7", sr(S_C + 1))
        b.salu("s_cselect_b32", sr(S_C + 2), 512 * 3072, sr(S_C + 2))
        b.salu("s_cmp_eq_u32", sr(S_R), 0)
        b.salu("s_cselect_b32", sr(S_C), "s4", sr(S_C))
        b.salu("s_cselect_b32", sr(S_C + 1), "s5", sr(S_C + 1))
        b.salu("s_cselect_b32", sr(S_C + 2), 0x200000, sr(S_C + 2))
        b.salu("s_mov_b32", sr(S_C + 3), 0x20000)
        if optval("ctd", 0):
            b.raw(f"  s_sleep {optval('ctd', 0)}")
        b.vmem_load("buffer_load_dword", vr(243), vr(V_T0), sr(S_C, 4), sr(S_T0))
    xread_setup(b, V_XB, V_T0, V_T1, V_T2)
    tr192(b, V_TRA, 32, V_T0, V_T1)
    b.valu("v_add_u32", vr(V_TRA), 16384, vr(V_TRA))
    b.valu("v_lshlrev_b32", vr(V_T0), 2, vr(V_L))
    b.valu("v_min_u32", vr(V_T0), 124, vr(V_T0))
    b.valu("v_add_u32", vr(V_T0), SY_OFF, vr(V_T0))
    b.ds_write("ds_write_b32", vr(V_T0), vr(V_Z), 0)
    b.valu("v_mov_b32", vr(V_SY), SY_OFF)
    b.valu("v_and_b32", vr(V_T0), 31, vr(V_L))
    b.valu("v_lshrrev_b32", vr(V_T1), 5, vr(V_L))
    b.valu("v_lshlrev_b32", vr(V_T1), 2, vr(V_T1))
    b.valu("v_sub_u32", vr(V_T0), vr(V_T0), vr(V_T1))
    b.valu("v_mov_b32", vr(V_T1), "0x3f80")
    b.valu("v_mov_b32", vr(V_T2), "0x3f800000")
    for hf in range(2):
        for i in range(4):
            d = 16 * hf + ((2 * i) & 3) + 8 * (i >> 1)
            b.valu("v_cmp_eq_u32", "vcc", d, vr(V_T0))
            b.valu("v_cndmask_b32", vr(V_ID + 4 * hf + i), 0, vr(V_T1))
            b.valu("v_cmp_eq_u32", "vcc", d + 1, vr(V_T0))
            b.valu("v_cndmask_b32", vr(V_ID + 4 * hf + i), vr(V_ID + 4 * hf + i), vr(V_T2))
    b.valu("v_lshlrev_b32", vr(V_STO), 4, vr(V_L))
    b.valu("v_and_b32", vr(V_T0), 15, vr(V_L))
    b.valu("v_lshlrev_b32", vr(V_T0), 4, vr(V_T0))
    b.valu("v_lshrrev_b32", vr(V_T1), 5, vr(V_L))
    b.valu("v_lshl_add_u32", vr(V_T0), vr(V_T1), 8, vr(V_T0))
    b.valu("v_bfe_u32", vr(V_T2), vr(V_L), 4, 1)
    b.valu("v_lshl_add_u32", vr(V_STV), vr(V_T2), 16, vr(V_T0))
    b.valu("v_lshlrev_b32", vr(V_CSRD), 4, vr(V_T1))
    b.valu("v_add_u32", vr(V_CSRD), CS_OFF, vr(V_CSRD))
    common_srds(b)
    ub_setup(b, V_UB, V_T0, V_T1)

    def prod_loads():
        l1 = b.newlabel("np")
        b.salu("s_cmp_lg_u32", sr(S_R), 0)
        b.branch("s_cbranch_scc1", l1)
        b.opt_begin()
        b.vmem_load("buffer_load_dwordx2", vr(V_NON, 2), vr(V_Z), sr(S_DBG, 4), "0", mods="sc1")
        b.opt_end()
        b.label(l1)
        b.salu("s_lshl_b32", sr(S_T0), sr(S_CC), 13)
        b.salu("s_lshl_b32", sr(S_T1), sr(S_R), 11)
        b.salu("s_add_u32", sr(S_T0), sr(S_T0), sr(S_T1))
        b.valu("v_lshlrev_b32", vr(U0), 5, vr(V_L))
        b.vmem_load("buffer_load_dwordx4", vr(RD_, 4), vr(U0), sr(S_X, 4), sr(S_T0), tag="rl")
        b.vmem_load("buffer_load_dwordx4", vr(RD_ + 4, 4), vr(U0), sr(S_X, 4), sr(S_T0), mods="offset:16", tag="rl")
        b.salu("s_lshr_b32", sr(S_T0), sr(S_RB), 2)
        b.salu("s_and_b32", sr(S_T1), sr(S_RB), 3)
        b.salu("s_cmp_eq_u32", sr(S_T0), 1)
        b.salu("s_cselect_b32", sr(S_C), "s12", "s14")
        b.salu("s_cselect_b32", sr(S_C + 1), "s13", "s15")
        b.salu("s_movk_i32", sr(S_T3), 2752)
        b.salu("s_lshl_b32", sr(S_U0), sr(S_FS), 5)
        b.salu("s_mul_i32", sr(S_U1), sr(S_CC), 192)
        b.salu("s_cmp_eq_u32", sr(S_T0), 0)
        b.salu("s_cselect_b32", sr(S_C), "s6", sr(S_C))
        b.salu("s_cselect_b32", sr(S_C + 1), "s7", sr(S_C + 1))
        b.salu("s_cselect_b32", sr(S_T3), 3072, sr(S_T3))
        b.salu("s_cselect_b32", sr(S_U0), sr(S_U1), sr(S_U0))
        b.salu("s_lshl_b32", sr(S_C + 2), sr(S_T3), 9)
        b.salu("s_cmp_eq_u32" if 'diagf' not in OPT else "s_cmp_ge_u32", sr(S_T0), 3 if 'diagf' not in OPT else 1)
        b.salu("s_cselect_b32", sr(S_C + 2), 0, sr(S_C + 2))
        b.salu("s_mov_b32", sr(S_C + 3), 0x20000)
        b.salu("s_lshl_b32", sr(S_U1), sr(S_T1), 2)
        b.salu("s_add_u32", sr(S_U1), sr(S_U1), sr(S_R))
        b.salu("s_lshl_b32", sr(S_U1), sr(S_U1), 5)
        b.salu("s_mul_i32", sr(S_U1), sr(S_U1), sr(S_T3))
        b.salu("s_add_u32", sr(S_U0), sr(S_U0), sr(S_U1))
        b.valu("v_lshrrev_b32", vr(U0), 4, vr(V_L))
        b.valu("v_mul_u32_u24", vr(U0), sr(S_T3), vr(U0))
        b.valu("v_and_b32", vr(U1), 15, vr(V_L))
        b.valu("v_lshl_add_u32", vr(U0), vr(U1), 4, vr(U0))
        b.valu("v_cmp_gt_u32", "vcc", 12, vr(U1))
        b.valu("v_mov_b32", vr(U1), "0x40000000")
        b.valu("v_cndmask_b32", vr(U0), vr(U1), vr(U0))
        b.salu("s_lshl_b32", sr(S_T3), sr(S_T3), 2)
        for i in range(8):
            b.vmem_load("buffer_load_dwordx4", vr(CD + 4 * i, 4), vr(U0), sr(S_C, 4), sr(S_U0), tag="cl")
            if i < 7:
                b.salu("s_add_u32", sr(S_U0), sr(S_U0), sr(S_T3))
        b.salu("s_lshl_b32", sr(S_CSO), sr(S_CC), 2)
        b.salu("s_add_u32", sr(S_CSO), sr(S_CSO), sr(S_T1))
        b.salu("s_lshl_b32", sr(S_CSO), sr(S_CSO), 12)
        b.salu("s_lshl_b32", sr(S_U0), sr(S_T0), 7)
        b.salu("s_add_u32", sr(S_U0), sr(S_U0), 640)
        b.salu("s_cmp_eq_u32", sr(S_T0), 0)
        b.salu("s_cselect_b32", sr(S_U0), 0, sr(S_U0))
        b.salu("s_add_u32", sr(S_CSO), sr(S_CSO), sr(S_U0))
        b.salu("s_add_u32", sr(S_CSO), sr(S_CSO), CSG)

    def prod_ops():
        ops = []
        Vv = lambda *a, **k: ops.append(lambda: b.valu(*a, **k))
        A = ops.append
        A(lambda: b.wait(vm="rl"))
        if 'pdot' in OPT:
            A(lambda: (b.salu("s_mov_b32", sr(S_T0), "0x3f803f80"), b.salu("s_mov_b32", sr(S_T1), "0x3f80"), b.salu("s_mov_b32", sr(S_T3), "0x3f800000")))
            Vv("v_mov_b32", vr(SU), 0)
            Vv("v_mov_b32", vr(SQ), 0)
            for i in range(8):
                Vv("v_dot2c_f32_bf16", vr(SU), sr(S_T0), vr(RD_ + i))
                Vv("v_dot2c_f32_bf16", vr(SQ), vr(RD_ + i), vr(RD_ + i))
        for i in range(8 if 'pdot' not in OPT else 0):
            Vv("v_lshlrev_b32", vr(U0), 16, vr(RD_ + i))
            Vv("v_and_b32", vr(U1), "0xffff0000", vr(RD_ + i))
            if i == 0:
                Vv("v_add_f32", vr(SU), vr(U0), vr(U1))
                Vv("v_mul_f32", vr(SQ), vr(U0), vr(U0))
            else:
                Vv("v_add_f32", vr(SU), vr(SU), vr(U0))
                Vv("v_fmac_f32", vr(SQ), vr(U0), vr(U0))
                Vv("v_add_f32", vr(SU), vr(SU), vr(U1))
            Vv("v_fmac_f32", vr(SQ), vr(U1), vr(U1))
        Vv("v_permlane16_swap_b32", vr(SU), vr(SQ))
        Vv("v_add_f32", vr(SU), vr(SU), vr(SQ))
        for r in (8, 4, 2, 1):
            Vv("v_add_f32_dpp", vr(SU), vr(SU), vr(SU), mods=f"row_ror:{r} {DPP}")
        Vv("v_mov_b32", vr(SQ), vr(SU))
        Vv("v_permlane16_swap_b32", vr(SU), vr(SQ))
        Vv("v_mul_f32", vr(SU), hex(f32bits(1.0 / 512)), vr(SU))
        Vv("v_mul_f32", vr(SQ), hex(f32bits(1.0 / 512)), vr(SQ))
        Vv("v_fma_f32", vr(SQ), f"-{vr(SU)}", vr(SU), vr(SQ))
        Vv("v_max_f32", vr(SQ), 0, vr(SQ))
        A(lambda: bf16r(b, SQ))
        Vv("v_add_f32", vr(SQ), hex(f32bits(1e-5)), vr(SQ))
        A(lambda: bf16r(b, SQ))
        Vv("v_sqrt_f32", vr(SQ), vr(SQ))
        A(lambda: bf16r(b, SQ))
        Vv("v_rcp_f32", vr(SQ), vr(SQ))
        A(lambda: bf16r(b, SU))
        Vv("v_sub_f32", vr(SU), 0, vr(SU))
        A(lambda: b.wait(vm="cl"))
        for i in range(8):
            for j in range(4):
                src = CD + 4 * i + j
                if i == 0:
                    Vv("v_lshlrev_b32", vr(CA + 2 * j), 16, vr(src))
                    Vv("v_and_b32", vr(CA + 2 * j + 1), "0xffff0000", vr(src))
                elif 'pdot' in OPT:
                    Vv("v_dot2c_f32_bf16", vr(CA + 2 * j), sr(S_T1), vr(src))
                    Vv("v_dot2c_f32_bf16", vr(CA + 2 * j + 1), sr(S_T3), vr(src))
                else:
                    Vv("v_lshlrev_b32", vr(U0), 16, vr(src))
                    Vv("v_and_b32", vr(U1), "0xffff0000", vr(src))
                    Vv("v_add_f32", vr(CA + 2 * j), vr(CA + 2 * j), vr(U0))
                    Vv("v_add_f32", vr(CA + 2 * j + 1), vr(CA + 2 * j + 1), vr(U1))
        for i in range(4):
            Vv("v_permlane32_swap_b32", vr(CA + 2 * i), vr(CA + 2 * i + 1))
        for i in range(4):
            Vv("v_add_f32", vr(CA + 2 * i), vr(CA + 2 * i), vr(CA + 2 * i + 1))
        for i in range(2):
            Vv("v_permlane16_swap_b32", vr(CA + 4 * i), vr(CA + 4 * i + 2))
        for i in range(2):
            Vv("v_add_f32", vr(CA + 4 * i), vr(CA + 4 * i), vr(CA + 4 * i + 2))
        Vv("v_and_b32", vr(U0), 15, vr(V_L))
        Vv("v_lshlrev_b32", vr(U0), 5, vr(U0))
        Vv("v_bfe_u32", vr(U1), vr(V_L), 4, 1)
        Vv("v_lshl_add_u32", vr(U0), vr(U1), 3, vr(U0))
        Vv("v_lshrrev_b32", vr(U1), 5, vr(V_L))
        Vv("v_lshl_add_u32", vr(U0), vr(U1), 2, vr(U0))
        A(lambda: (b.salu("s_lshl_b32", sr(S_U0), sr(S_R), 9), b.salu("s_add_u32", sr(S_U0), sr(S_U0), CP_OFF)))
        Vv("v_add_u32", vr(U0), sr(S_U0), vr(U0))
        A(lambda: (b.ds_write("ds_write_b32", vr(U0), vr(CA), 0), b.ds_write("ds_write_b32", vr(U0), vr(CA + 4), 16)))

        def nonce():
            lok, lp, lsk = b.newlabel("nok"), b.newlabel("nlp"), b.newlabel("nsk")
            b.salu("s_cmp_lg_u32", sr(S_R), 0)
            b.branch("s_cbranch_scc1", lsk)
            b.opt_begin()
            b.label(lp)
            b.valu("v_cmp_eq_u32", "vcc", 0, vr(V_NON + 1))
            b.branch("s_cbranch_vccz", lok)
            b.opt_begin()
            guard(b, lok)
            b.raw("  s_sleep 4")
            b.vmem_load("buffer_load_dwordx2", vr(V_NON, 2), vr(V_Z), sr(S_DBG, 4), "0", mods="sc1")
            b.wait(vm=0)
            b.branch("s_branch", lp)
            b.opt_end()
            b.label(lok)
            b.valu("v_mov_b32", vr(U0), NC_OFF)
            b.ds_write("ds_write_b64", vr(U0), vr(V_NON, 2), 0)
            b.opt_end()
            b.label(lsk)
        A(nonce)
        return ops

    def publish():
        b.valu("v_mov_b32", vr(U0), NC_OFF)
        b.ds_read("ds_read_b64", vr(V_NON, 2), vr(U0), 0, tag="non")
        b.salu("s_lshl_b32", sr(S_U0), sr(S_RB), 11)
        b.salu("s_lshl_b32", sr(S_U1), sr(S_CC), 7)
        b.salu("s_add_u32", sr(S_U0), sr(S_U0), sr(S_U1))
        b.salu("s_lshl_b32", sr(S_U1), sr(S_R), 5)
        b.salu("s_add_u32", sr(S_U0), sr(S_U0), sr(S_U1))
        b.salu("s_add_u32", sr(S_U0), sr(S_U0), RSG)
        b.valu("v_lshrrev_b32", vr(U1), 1, vr(V_L))
        b.wait(lg="non")
        b.salu("s_mov_b32", "exec_lo", 1)
        b.salu("s_mov_b32", "exec_hi", 1)
        b.vmem_store("buffer_store_dwordx4", vr(SU, 4), vr(U1), sr(S_WS, 4), sr(S_U0), mods="sc1")
        b.salu("s_mov_b64", "exec", -1)
        l1 = b.newlabel("cf")
        b.salu("s_cmp_lg_u32", sr(S_R), 3)
        b.branch("s_cbranch_scc1", l1)
        b.opt_begin()
        b.salu("s_cmp_ge_u32", sr(S_RB), 12)
        b.branch("s_cbranch_scc1", l1)
        b.valu("v_lshlrev_b32", vr(U1), 3, vr(V_L))
        b.valu("v_add_u32", vr(U1), CP_OFF, vr(U1))
        for w in range(4):
            b.ds_read("ds_read_b64", vr(CD + 2 * w, 2), vr(U1), w * 512)
        b.valu("v_lshrrev_b32", vr(U1), 3, vr(V_L))
        b.valu("v_lshlrev_b32", vr(U1), 3, vr(U1))
        b.salu("s_cmp_lt_u32", sr(S_RB), 4)
        b.salu("s_cselect_b32", sr(S_U0), 0, -1)
        b.valu("v_and_b32", vr(U1), sr(S_U0), vr(U1))
        b.valu("v_add_u32", vr(U0), vr(V_L), vr(U1))
        b.valu("v_lshlrev_b32", vr(U0), 4, vr(U0))
        b.wait(lg=0)
        for e in range(2):
            b.valu("v_add_f32", vr(SU + e), vr(CD + e), vr(CD + 2 + e))
            b.valu("v_add_f32", vr(CD + 4 + e), vr(CD + 4 + e), vr(CD + 6 + e))
            b.valu("v_add_f32", vr(SU + e), vr(SU + e), vr(CD + 4 + e))
        b.salu("s_mov_b32", "exec_hi", "0xffff")
        b.vmem_store("buffer_store_dwordx4", vr(SU, 4), vr(U0), sr(S_WS, 4), sr(S_CSO), mods="sc1")
        b.salu("s_mov_b32", "exec_hi", -1)
        b.opt_end()
        b.label(l1)
        b.salu("s_lshl_b32", sr(S_U0), sr(S_R), 6)
        b.valu("v_add_u32", vr(U0), sr(S_U0), vr(V_L))
        b.valu("v_mov_b32", vr(U1), 144)
        b.valu("v_cmp_lt_u32", sr(S_CARE, 2), vr(U0), vr(U1))
        b.salu("s_lshl_b32", sr(S_U0), sr(S_CC), 14)
        b.salu("s_add_u32", sr(S_U0), sr(S_U0), CSG)
        b.valu("v_lshl_add_u32", vr(U0), vr(U0), 4, sr(S_U0))
        b.valu("v_mov_b32", vr(U1), "0x40000000")
        b.valu("v_cndmask_b32", vr(G0), vr(U1), vr(U0), sr(S_CARE, 2))
        for i in range(1, 4):
            b.valu("v_add_u32", vr(G0 + i), 4096 * i, vr(G0))
        b.salu("s_lshl_b32", sr(S_U0), sr(S_RB), 11)
        b.salu("s_lshl_b32", sr(S_U1), sr(S_R), 9)
        b.salu("s_add_u32", sr(S_U0), sr(S_U0), sr(S_U1))
        b.salu("s_add_u32", sr(S_U0), sr(S_U0), RSG)
        b.valu("v_and_b32", vr(U0), 31, vr(V_L))
        b.valu("v_lshl_add_u32", vr(G0 + 4), vr(U0), 4, sr(S_U0))

    def gather_issue(tag="ga"):
        for i in range(5):
            b.vmem_load("buffer_load_dwordx4", vr(GA + 4 * i, 4), vr(G0 + i), sr(S_WS, 4), "0", mods="sc1", tag=tag)

    def gather_write():
        lok, lp = b.newlabel("gok"), b.newlabel("gl")
        b.wait(vm="ga")
        b.label(lp)
        b.valu("v_cmp_ne_u64", sr(S_U0, 2), vr(GA + 2, 2), vr(V_NON, 2))
        for i in range(1, 4):
            b.valu("v_cmp_ne_u64", "vcc", vr(GA + 4 * i + 2, 2), vr(V_NON, 2))
            b.salu("s_or_b64", sr(S_U0, 2), sr(S_U0, 2), "vcc")
        b.salu("s_and_b64", sr(S_U0, 2), sr(S_U0, 2), sr(S_CARE, 2))
        b.valu("v_cmp_ne_u64", "vcc", vr(GA + 18, 2), vr(V_NON, 2))
        b.salu("s_or_b64", sr(S_U0, 2), sr(S_U0, 2), "vcc")
        b.branch("s_cbranch_scc0", lok)
        b.opt_begin()
        guard(b, lok)
        b.raw("  s_sleep 4")
        gather_issue(None)
        b.wait(vm=0)
        b.branch("s_branch", lp)
        b.opt_end()
        b.label(lok)
        for e in range(2):
            b.valu("v_add_f32", vr(GA + e), vr(GA + e), vr(GA + 4 + e))
            b.valu("v_add_f32", vr(GA + 8 + e), vr(GA + 8 + e), vr(GA + 12 + e))
            b.valu("v_add_f32", vr(GA + e), vr(GA + e), vr(GA + 8 + e))
        b.valu("v_mov_b32", vr(V_NM), vr(GA + 16))
        b.valu("v_mov_b32", vr(V_RS), vr(GA + 17))
        b.salu("s_min_u32", sr(S_U0), sr(S_R), 2)
        b.salu("s_lshl_b32", sr(S_U0), sr(S_U0), 9)
        b.salu("s_add_u32", sr(S_U0), sr(S_U0), CS_OFF)
        b.valu("v_lshl_add_u32", vr(U0), vr(V_L), 3, sr(S_U0))
        b.salu("s_mov_b64", "exec", sr(S_CARE, 2))
        b.ds_write("ds_write_b64", vr(U0), vr(GA, 2), 0)
        b.salu("s_mov_b64", "exec", -1)
        b.salu("s_lshl_b32", sr(S_U0), sr(S_R), 8)
        b.salu("s_add_u32", sr(S_U0), sr(S_U0), ST_OFF)
        b.valu("v_and_b32", vr(U0), 31, vr(V_L))
        b.valu("v_lshl_add_u32", vr(U0), vr(U0), 3, sr(S_U0))
        b.ds_write("ds_write_b64", vr(U0), vr(V_NM, 2), 0)

    LA = 6
    NFA = 96

    def read_a(f):
        ks, blk = divmod(f, 3)
        t, s = divmod(ks, 4)
        if blk == 0:
            b.ds_read("ds_read_b128", vr(V_XF + 4 * (ks % 3), 4), vr(V_XB + s), (t % 3) * PA, tag=f"x{ks}")
        r0 = V_RING + 4 * (f % 9)
        for q in range(2):
            off = (t % 3) * PA + s * 3072 + q * 768 + blk * 64
            if off >= 65536:
                a_, off = V_TRA2, off - 2 * PA
            else:
                a_ = V_TRA
            b.ds_read("ds_read_b64_tr_b16", vr(r0 + 2 * q, 2), vr(a_), off, tag=f"w{f}")
    V_TRA2 = V_RSS
    b.valu("v_add_u32", vr(V_TRA2), 2 * PA, vr(V_TRA))
    FPC, FPE = optval("fpc", 9), optval("fpe", 41)
    pops = prod_ops()
    nper = -(-len(pops) // (FPE - FPC))
    hooks = {}
    for f in range(FPC, FPE):
        hooks[f] = (lambda ops=pops[(f - FPC) * nper:(f - FPC + 1) * nper]: [o() for o in ops])
    hooks[optval("fpl", 2)] = prod_loads
    if 'diagt' in OPT:
        def late_touch():
            b.salu("s_cmp_eq_u32", sr(S_R), 2)
            b.salu("s_cselect_b32", sr(S_WA), "s12", "s14")
            b.salu("s_cselect_b32", sr(S_WA + 1), "s13", "s15")
            b.salu("s_cmp_ge_u32", sr(S_R), 2)
            b.salu("s_cselect_b32", sr(S_WA + 2), 512 * 2752, 0)
            b.salu("s_lshl_b32", sr(S_T2), "s2", 13)
            b.valu("v_lshlrev_b32", vr(241), 7, vr(V_L))
            b.vmem_load("buffer_load_dword", vr(243), vr(241), sr(S_WA, 4), sr(S_T2))
        prev = hooks.get(optval("flt", 24))
        hooks[optval("flt", 24)] = lambda: (prev() if prev else None, late_touch())
    hooks[optval("fpu", 44)] = publish
    if 'mlg' in OPT:
        hooks[optval("fgi", 72)] = lambda: (w2_touch_mall(b, S_C, U0, 242), gather_issue())
    elif 'mlp' in OPT:
        hooks[optval("fpl", 2)] = lambda: (prod_loads(), w2_touch_mall(b, S_WA, U0, 242))
        hooks[optval("fgi", 72)] = gather_issue
    else:
        hooks[optval("fml", 66)] = lambda: w2_touch_mall(b, S_C, U0, 242)
        hooks[optval("fgi", 72)] = gather_issue
    hooks[optval("fgw", 88)] = gather_write
    ubq = [(t, n) for t in range(12, 14) for n in range(6)]

    def ub_issue(k):
        for _ in range(k):
            if ubq:
                t, n = ubq.pop(0)
                ub_step(b, V_UB, t, n)
    b.wait(lg=0)
    b.barrier()
    stamp(b, 1)
    for f in range(LA):
        read_a(f)
    for f in range(NFA):
        nf = f + LA
        if nf % 12 == 0:
            b.wait(lg=0)
            b.barrier()
            if nf // 12 in (2, 4, 8):
                stamp(b, {2: 2, 4: 3, 8: 4}[nf // 12])
            if nf == NFA:
                b.raw(f"  s_setprio {optval('pre', 3)}")
        if nf < NFA:
            read_a(nf)
        ks, blk = divmod(f, 3)
        b.wait(lg=[f"w{f}", f"x{ks}"])
        acc = V_ACC + 16 * blk
        b.mfma(vr(acc, 16), vr(V_RING + 4 * (f % 9), 4), vr(V_XF + 4 * (ks % 3), 4), "0" if ks == 0 else vr(acc, 16))
        if f in hooks:
            hooks[f]()
        if 'ue' in OPT and nf >= NFA:
            ub_issue(2)

    def csrd(n):
        blk, hf = divmod(n, 2)
        T = TS[n % 2]
        b.ds_read("ds_read_b128", vr(T, 4), vr(V_CSRD), blk * 128 + hf * 64, tag=f"c{n}")
        b.ds_read("ds_read_b128", vr(T + 4, 4), vr(V_CSRD), blk * 128 + hf * 64 + 32, tag=f"c{n}")
    b.raw(f"  s_setprio {optval('pre', 3)}")
    csrd(0)
    b.salu("s_mul_i32", sr(S_T3), sr(S_CC), 3)
    b.salu("s_lshl_b32", sr(S_T0), sr(S_RB), 2)
    b.salu("s_add_u32", sr(S_T0), sr(S_T0), sr(S_R))
    b.salu("s_lshl_b32", sr(S_E), sr(S_T0), 10)
    for blk in range(3):
        acc = V_ACC + 16 * blk
        b.salu("s_add_u32", sr(S_T0), sr(S_T3), blk)
        b.salu("s_cmp_lt_u32", sr(S_T0), 16)
        b.salu("s_cselect_b32", sr(S_T1), hex(f32bits(QSCALE)), "1.0")
        b.valu("v_mul_f32", vr(V_T0), sr(S_T1), vr(V_RS))
        b.salu("s_lshl_b32", sr(S_U0), sr(S_T0), 17)
        b.salu("s_add_u32", sr(S_U0), sr(S_U0), sr(S_E))
        b.salu("s_add_u32", sr(S_U1), sr(S_U0), 65536)
        for hf in range(2):
            n = 2 * blk + hf
            T = TS[n % 2]
            if n + 1 < 6:
                csrd(n + 1)
            b.wait(lg=f"c{n}")
            for i in range(8):
                b.valu("v_fmac_f32", vr(acc + 8 * hf + i), vr(V_NM), vr(T + i))
            for i in range(8):
                b.valu("v_mul_f32", vr(acc + 8 * hf + i), vr(V_T0), vr(acc + 8 * hf + i))
            for i in range(4):
                b.valu("v_cvt_pk_bf16_f32", vr(acc + 8 * hf + i), vr(acc + 8 * hf + 2 * i), vr(acc + 8 * hf + 2 * i + 1))
        lv, lj = b.newlabel("ev"), b.newlabel("ej")
        b.salu("s_cmp_ge_u32", sr(S_T0), 32)
        b.branch("s_cbranch_scc1", lv)
        b.opt_begin()
        b.par = list(range(8))
        b.vmem_store("buffer_store_dwordx4", vr(acc, 4), vr(V_STO), sr(S_WS, 4), sr(S_U0), mods="sc1", tag="st")
        b.vmem_store("buffer_store_dwordx4", vr(acc + 8, 4), vr(V_STO), sr(S_WS, 4), sr(S_U1), mods="sc1", tag="st")
        b.par = None
        b.branch("s_branch", lj)
        b.opt_end()
        b.label(lv)
        b.opt_begin()
        b.par = []
        b.mfma(vr(V_D2, 16), vr(acc, 4), vr(V_ID, 4), "0")
        b.mfma(vr(V_D2, 16), vr(acc + 8, 4), vr(V_ID + 4, 4), vr(V_D2, 16))
        for i in range(8):
            b.valu("v_cvt_pk_bf16_f32", vr(acc + i), vr(V_D2 + 2 * i), vr(V_D2 + 2 * i + 1))
        b.vmem_store("buffer_store_dwordx4", vr(acc, 4), vr(V_STV), sr(S_WS, 4), sr(S_U0), mods="sc1", tag="st")
        b.vmem_store("buffer_store_dwordx4", vr(acc + 4, 4), vr(V_STV), sr(S_WS, 4), sr(S_U0), mods="offset:512 sc1", tag="st")
        b.par = None
        b.opt_end()
        b.label(lj)
        if 'ue' in OPT:
            if blk == 0:
                b.wait(vm="U12")
                lds_signal(b, LAND, 12, V_T1)
            if blk >= 1 and 'ue2' in OPT:
                t = 13 + blk
                lds_check_issue(b, CONS, V_SY, V_D2, f"k{t}")
                lds_check(b, CONS, t - 6, V_SY, V_D2, f"k{t}")
                for n in range(6):
                    ub_step(b, V_UB, t, n)
            if blk == 1:
                b.wait(vm="U13")
                lds_signal(b, LAND, 13, V_T1)
    stamp(b, 5)
    b.salu("s_lshl_b32", sr(S_T3), sr(S_RB), 4)
    b.salu("s_add_u32", sr(S_T3), sr(S_T3), sr(S_CC))
    b.salu("s_lshl_b32", sr(S_T3), sr(S_T3), 7)
    b.salu("s_add_u32", sr(S_T3), sr(S_T3), F0)
    if 'ue2' in OPT:
        b.wait(vm="st")
        lds_signal(b, LAND, 14, V_T0)
    else:
        b.wait(vm=0)
    arrive(b, CNT, S_T3, V_T0)
    b.raw(f"  s_setprio {optval('pr0', 1)}")
    stamp(b, 6)
    attn(b, ub_issue, V_UB, V_SY)
    print("p0 instrs", b.ninstr)
    return b.text()


def attn(b, ub_issue, V_UB, V_SY):
    V_QO, V_VO, V_T0, V_T1, V_M0, V_M1, V_BIG = 1, 2, 3, 4, 5, 6, 7
    V_NEG = 10
    V_MSK = 12
    V_Q = 20
    V_K = 28
    V_V = 68
    V_B0, V_B1, V_CN, V_O, V_SM = 148, 164, 180, 196, 212
    V_C = 228
    S_KO, S_VO, S_EXV = 24, 28, 44
    S_RQ, S_HD, S_SO, S_NF, S_QB = 46, 47, 60, 61, 96
    ub_issue(6)
    b.salu("s_and_b32", sr(S_T0), "s2", 7)
    b.salu("s_lshl_b32", sr(S_HD), sr(S_T0), 2)
    b.salu("s_add_u32", sr(S_HD), sr(S_HD), sr(S_R))
    b.salu("s_lshr_b32", sr(S_RQ), "s2", 3)
    b.valu("v_and_b32", vr(V_T0), 3, vr(V_L))
    b.valu("v_min_u32", vr(V_T0), 2, vr(V_T0))
    b.valu("v_bfe_u32", vr(V_T1), vr(V_L), 2, 1)
    b.valu("v_lshl_add_u32", vr(V_T0), vr(V_T0), 4, vr(V_T1))
    b.salu("s_lshl_b32", sr(S_T0), sr(S_T0), 1)
    b.valu("v_add_u32", vr(V_T0), sr(S_T0), vr(V_T0))
    b.valu("v_mul_u32_u24", vr(V_T0), 21846, vr(V_T0))
    b.valu("v_lshrrev_b32", vr(V_T0), 16, vr(V_T0))
    b.valu("v_bfe_u32", vr(V_T1), vr(V_L), 3, 2)
    b.valu("v_min_u32", vr(V_T1), 2, vr(V_T1))
    b.salu("s_lshr_b32", sr(S_T1), sr(S_RQ), 1)
    b.valu("v_sub_u32", vr(V_T1), sr(S_T1), vr(V_T1))
    b.valu("v_max_i32", vr(V_T1), 0, vr(V_T1))
    b.valu("v_lshl_add_u32", vr(V_T0), vr(V_T1), 4, vr(V_T0))
    b.valu("v_lshlrev_b32", vr(V_T0), 7, vr(V_T0))
    b.valu("v_add_u32", vr(V_B0), F0, vr(V_T0))
    b.salu("s_lshl_b32", sr(S_QB), sr(S_HD), 16)
    b.salu("s_lshl_b32", sr(S_T1), sr(S_RQ), 11)
    b.salu("s_add_u32", sr(S_QB), sr(S_QB), sr(S_T1))
    b.valu("v_lshlrev_b32", vr(V_QO), 4, vr(V_L))
    for grp in range(3):
        b.salu("s_add_u32", sr(S_KO + grp), sr(S_QB), KF - 8192 + 4096 * grp)
        b.salu("s_add_u32", sr(S_VO + grp), sr(S_QB), VF - 8192 + 4096 * grp)
    b.salu("s_cmp_lt_u32", sr(S_RQ), 4)
    b.salu("s_cselect_b32", sr(S_VO + 3), sr(S_VO + 2), sr(S_VO))
    b.valu("v_and_b32", vr(V_T0), 15, vr(V_L))
    b.valu("v_lshlrev_b32", vr(V_T0), 4, vr(V_T0))
    b.valu("v_lshrrev_b32", vr(V_T1), 5, vr(V_L))
    b.valu("v_lshl_add_u32", vr(V_VO), vr(V_T1), 8, vr(V_T0))
    b.salu("s_mov_b32", sr(S_EXV), "0xffff")
    b.salu("s_mov_b32", sr(S_EXV + 1), "0xffff")
    ub_issue(6)
    b.valu("v_and_b32", vr(V_T0), 31, vr(V_L))
    b.valu("v_lshlrev_b32", vr(V_T1), 2, vr(V_T1))
    b.valu("v_sub_u32", vr(V_T0), vr(V_T0), vr(V_T1))
    for r in range(16):
        b.valu("v_cmp_le_i32", sr(S_MASK + 2 * r, 2), (r & 3) + 8 * (r >> 2), vr(V_T0))
    b.valu("v_mov_b32", vr(V_BIG), hex(f32bits(-1e30)))
    b.valu("v_mov_b32", vr(V_T0), "0xffff")
    b.valu("v_mov_b32", vr(V_T1), "0xffff0000")
    for i in range(8):
        b.valu("v_cndmask_b32", vr(V_MSK + i), 0, vr(V_T0), sr(S_MASK + 4 * i, 2))
        b.valu("v_cndmask_b32", vr(V_M0), 0, vr(V_T1), sr(S_MASK + 4 * i + 2, 2))
        b.valu("v_or_b32", vr(V_MSK + i), vr(V_MSK + i), vr(V_M0))
    if 'ue' not in OPT:
        b.wait(vm="U12")
        lds_signal(b, LAND, 12, V_T0)
    b.valu("v_mov_b32", vr(V_NEG), "0x3f803f80")
    b.valu("v_mov_b32", vr(V_NEG + 1), "0x3f803f80")
    for i in range(40):
        if 'pk' in OPT:
            b.valu("v_mov_b64", vr(V_V + 2 * i, 2), vr(V_NEG, 2))
        else:
            b.valu("v_mov_b32", vr(V_V + 2 * i), vr(V_NEG))
            b.valu("v_mov_b32", vr(V_V + 2 * i + 1), vr(V_NEG))
    b.salu("s_lshl_b32", sr(S_T1), sr(S_RQ), 16)
    b.salu("s_lshl_b32", sr(S_SO), sr(S_HD), 11)
    b.salu("s_add_u32", sr(S_SO), sr(S_SO), sr(S_T1))
    b.salu("s_add_u32", sr(S_SO), sr(S_SO), OF)
    for t in ((14, 15) if 'ue2' not in OPT else ()):
        lds_check_issue(b, CONS, V_SY, V_C, f"k{t}")
        lds_check(b, CONS, t - 6, V_SY, V_C, f"k{t}")
        for n in range(6):
            ub_step(b, V_UB, t, n)
        b.wait(vm=f"U{t-1}")
        lds_signal(b, LAND, t - 1, V_T0)
    b.vmem_load("buffer_load_dwordx2", vr(V_B0 + 2, 2), vr(V_B0), sr(S_WS, 4), "0", mods="sc1", tag="fl")
    if 'nol2pf0' not in OPT:
        w2_touch_l2(b, S_DBG, 232, 233)
    b.wait(vm="U15")
    lds_signal(b, LAND, 15, V_T0)
    poll(b, V_B0 + 2, V_B0, first_issued=True)
    stamp(b, 7)

    def load_k(n):
        off = (n % 4) * 1024
        b.vmem_load("buffer_load_dwordx4", vr(V_K + 4 * n, 4), vr(V_QO), sr(S_WS, 4), sr(S_KO + n // 4),
                    mods=(f"offset:{off} " if off else "") + "sc1", tag=f"k{n}")

    def load_v(ns):
        b.salu("s_mov_b64", "exec", sr(S_EXV, 2))
        for n in ns:
            for mf in range(2):
                off = (n % 4) * 1024 + mf * 512
                b.vmem_load("buffer_load_dwordx4", vr(V_V + 8 * n + 4 * mf, 4), vr(V_VO), sr(S_WS, 4), sr(S_VO + (3 if n < 2 else n // 4)),
                            mods=(f"offset:{off} " if off else "") + "sc1", tag=f"v{n}")
        b.salu("s_mov_b64", "exec", -1)
    b.vmem_load("buffer_load_dwordx4", vr(V_Q, 4), vr(V_QO), sr(S_WS, 4), sr(S_QB), mods="sc1", tag="q0")
    for n in [0, 8, 7, 6, 5, 4, 3, 2, 1]:
        load_k(n)
    load_v([8, 0, 7, 6, 5, 4, 3, 2, 1, 9])
    b.vmem_load("buffer_load_dwordx4", vr(V_Q + 4, 4), vr(V_QO), sr(S_WS, 4), sr(S_QB), mods="offset:1024 sc1", tag="q1")
    load_k(9)
    if 'l2pf' in OPT:
        w2_touch_l2(b, S_DBG, 232, 233)
    stamp(b, 8)
    stubs = []
    for task in range(2):
        q = vr(V_Q + 4 * task, 4)
        Kf = lambda j: vr(V_K + 4 * (8 + task - j), 4)
        Vf = lambda j, mf: vr(V_V + 8 * (8 + task - j) + 4 * mf, 4)
        ktag = lambda j: f"k{8 + task - j}"
        vtag = lambda j: f"v{8 + task - j}"
        b.salu("s_lshl_b32", sr(S_T1), sr(S_RQ), 1)
        b.salu("s_add_u32", sr(S_T1), sr(S_T1), task)
        b.salu("s_min_u32", sr(S_NF), sr(S_T1), 7)
        L1, L2 = b.newlabel("p1"), b.newlabel("p2")
        bufs = [V_CN, V_O, V_B0, V_B1]
        if task == 1:
            b.wait(vm="k9")
        b.wait(vm=[f"q{task}", ktag(8)])
        b.mfma(vr(V_B0, 16), Kf(8), q, "0")
        b.wait(vm=ktag(0))
        b.mfma(vr(V_B1, 16), Kf(0), q, "0")
        for j in (1, 2):
            b.wait(vm=ktag(j))
            b.mfma(vr(bufs[(j - 1) % 4], 16), Kf(j), q, "0")
        lm1, lm2 = b.newlabel("m1"), b.newlabel("m2")
        b.nop(8)
        b.salu("s_cmp_lt_u32", sr(S_T1), 8)
        b.branch("s_cbranch_scc1", lm1)
        for r in range(16):
            b.valu("v_cndmask_b32", vr(V_SM + r), vr(V_B0 + r), vr(V_B1 + r), sr(S_MASK + 2 * r, 2))
        b.label(lm2)
        st = [f"{lm1}:", "  s_nop 7"]
        for r in range(16):
            st.append(f"  v_cndmask_b32 {vr(V_SM + r)}, {vr(V_BIG)}, {vr(V_B1 + r)}, {sr(S_MASK + 2 * r, 2)}")
        st.append(f"  s_branch {lm2}")
        stubs.append("\n".join(st))

        def maxtree(buf, first):
            for i in range(8):
                m = V_M0 + (i % 2)
                if first and i < 2:
                    b.valu("v_max_f32", vr(m), vr(buf + 2 * i), vr(buf + 2 * i + 1))
                else:
                    b.valu("v_max3_f32", vr(m), vr(buf + 2 * i), vr(buf + 2 * i + 1), vr(m))
        maxtree(V_SM, True)
        for j in range(1, 8):
            b.salu("s_cmp_lt_u32", sr(S_NF), j)
            b.branch("s_cbranch_scc1", L1)
            if j + 2 <= 7:
                b.wait(vm=ktag(j + 2))
                b.mfma(vr(bufs[(j + 1) % 4], 16), Kf(j + 2), q, "0")
            maxtree(bufs[(j - 1) % 4], False)
        b.label(L1)
        b.valu("v_max_f32", vr(V_M0), vr(V_M0), vr(V_M1))
        b.valu("v_mov_b32", vr(V_M1), vr(V_M0))
        b.valu("v_permlane32_swap_b32", vr(V_M1), vr(V_M0))
        b.valu("v_max_f32", vr(V_M0), vr(V_M0), vr(V_M1))
        b.valu("v_sub_f32", vr(V_NEG), 0, vr(V_M0))
        b.valu("v_sub_f32", vr(V_NEG + 1), 0, vr(V_M0))
        b.nop(2)
        for i in range(8):
            if 'pk' in OPT:
                b.valu("v_mov_b64", vr(V_CN + 2 * i, 2), vr(V_NEG, 2))
            else:
                b.valu("v_mov_b32", vr(V_CN + 2 * i), vr(V_NEG))
                b.valu("v_mov_b32", vr(V_CN + 2 * i + 1), vr(V_NEG))
        bufs2 = [V_B0, V_B1, V_SM]
        b.mfma(vr(V_B0, 16), Kf(1), q, vr(V_CN, 16))
        for r in range(8):
            if 'pk' in OPT:
                b.valu("v_pk_add_f32", vr(V_SM + 2 * r, 2), vr(V_SM + 2 * r, 2), vr(V_NEG, 2))
            else:
                b.valu("v_add_f32", vr(V_SM + 2 * r), vr(V_NEG), vr(V_SM + 2 * r))
                b.valu("v_add_f32", vr(V_SM + 2 * r + 1), vr(V_NEG), vr(V_SM + 2 * r + 1))
        b.mfma(vr(V_B1, 16), Kf(2), q, vr(V_CN, 16))

        def expcvt(buf, inserts):
            for r in range(16):
                if r in inserts:
                    inserts[r]()
                b.valu("v_exp_f32", vr(buf + r), vr(buf + r))
                if r % 2 == 1 and r >= 3:
                    i = (r - 3) // 2
                    b.valu("v_cvt_pk_bf16_f32", vr(buf + i), vr(buf + 2 * i), vr(buf + 2 * i + 1))
            b.valu("v_cvt_pk_bf16_f32", vr(buf + 7), vr(buf + 14), vr(buf + 15))
        expcvt(V_SM, {})
        for i in range(8):
            b.valu("v_and_b32", vr(V_SM + 8 + i), vr(V_MSK + i), vr(V_SM + i))
        for i in range(8):
            b.valu("v_xor_b32", vr(V_SM + i), vr(V_SM + i), vr(V_SM + 8 + i))
        b.wait(vm=[vtag(0), vtag(8), "k1"])
        b.mfma(vr(V_O, 16), Vf(0, 0), vr(V_SM + 8, 4), "0")
        pend = [(Vf(0, 1), vr(V_SM + 12, 4)), (Vf(8, 0), vr(V_SM, 4)), (Vf(8, 1), vr(V_SM + 4, 4))]
        for j in range(1, 9):
            if j <= 7:
                lx = b.newlabel("x")
                b.salu("s_cmp_lt_u32", sr(S_NF), j)
                b.branch("s_cbranch_scc1", lx)
                st = [f"{lx}:", "  s_waitcnt vmcnt(0)", "  s_nop 1"]
                for (a_, p_) in pend:
                    st.append(f"  v_mfma_f32_32x32x16_bf16 {vr(V_O, 16)}, {a_}, {p_}, {vr(V_O, 16)}")
                st.append(f"  s_branch {L2}")
                stubs.append("\n".join(st))
                buf = bufs2[(j - 1) % 3]
                ins = {}
                pos = [0, 4, 8, 12] if len(pend) == 3 else [0, 5, 10]
                if j > 1:
                    b.wait(vm=vtag(j - 1))
                for n_, (a_, p_) in enumerate(pend):
                    ins[pos[n_]] = (lambda a_=a_, p_=p_: b.mfma(vr(V_O, 16), a_, p_, vr(V_O, 16)))
                if j + 2 <= 7:
                    ins[pos[len(pend)]] = (lambda j=j: b.mfma(vr(bufs2[(j + 1) % 3], 16), Kf(j + 2), q, vr(V_CN, 16)))
                expcvt(buf, ins)
                pend = [(Vf(j, 0), vr(buf, 4)), (Vf(j, 1), vr(buf + 4, 4))]
            else:
                b.wait(vm=vtag(7))
                for (a_, p_) in pend:
                    b.mfma(vr(V_O, 16), a_, p_, vr(V_O, 16))
        b.label(L2)
        b.valu("v_rcp_f32", vr(V_NEG), vr(V_O + 8))
        b.valu("v_mov_b32", vr(V_NEG + 1), vr(V_NEG))
        for i in range(4):
            if 'pk' in OPT:
                b.valu("v_pk_mul_f32", vr(V_O + 2 * i, 2), vr(V_O + 2 * i, 2), vr(V_NEG, 2))
            else:
                b.valu("v_mul_f32", vr(V_O + 2 * i), vr(V_NEG), vr(V_O + 2 * i))
                b.valu("v_mul_f32", vr(V_O + 2 * i + 1), vr(V_NEG), vr(V_O + 2 * i + 1))
        for i in range(4):
            b.valu("v_cvt_pk_bf16_f32", vr(V_SM + i), vr(V_O + 2 * i), vr(V_O + 2 * i + 1))
        b.vmem_store("buffer_store_dwordx4", vr(V_SM, 4), vr(V_QO), sr(S_WS, 4), sr(S_SO),
                     mods=(f"offset:{1024*task} " if task else "") + "sc1", tag="ost")
        stamp(b, 9 + task)
    S_O, S_XO, S_OUT = 64, 68, 72
    S_RB2, S_CB, S_F = 76, 77, 78
    V_FO, V_OO, V_XOFF, V_TW0, V_TW1, V_EW, V_ER, V_RA, V_RA2 = 12, 13, 14, 15, 16, 17, 18, 19, 8
    V_XR = 20
    V_A = 28
    V_W2 = 92
    V_AC = 124
    V_R = 156
    X = 236
    b.salu("s_lshl_b32", sr(S_F), "s2", 7)
    b.salu("s_add_u32", sr(S_F), sr(S_F), F2)
    dec2(b, S_RB2, S_CB)
    b.salu("s_lshl_b32", sr(S_T0), sr(S_RB2), 16)
    b.salu("s_add_u32", sr(S_T1), sr(S_T0), OF)
    srd(b, S_O, "s22", "s23", 65536, add=sr(S_T1))
    if 'fakeo' in OPT:
        srd(b, S_O, "s8", "s9", 65536)
    srd(b, S_XO, "s4", "s5", 65536, add=sr(S_T0))
    srd(b, S_OUT, "s18", "s19", 65536, add=sr(S_T0))
    b.valu("v_lshrrev_b32", vr(V_T0), 5, vr(V_L))
    b.valu("v_lshlrev_b32", vr(V_T0), 2, vr(V_T0))
    b.valu("v_bfe_u32", vr(V_T1), vr(V_L), 2, 2)
    b.valu("v_add_u32", vr(V_T0), vr(V_T0), vr(V_T1))
    b.valu("v_and_b32", vr(V_M0), 3, vr(V_L))
    b.valu("v_lshlrev_b32", vr(V_M0), 3, vr(V_M0))
    b.valu("v_lshl_add_u32", vr(V_T0), vr(V_T0), 7, vr(V_M0))
    b.valu("v_lshrrev_b32", vr(V_T1), 1, vr(V_T1))
    b.valu("v_bfe_u32", vr(V_M0), vr(V_L), 4, 1)
    b.valu("v_lshl_add_u32", vr(V_T1), vr(V_T1), 1, vr(V_M0))
    b.valu("v_lshl_add_u32", vr(V_T0), vr(V_T1), 5, vr(V_T0))
    b.salu("s_and_b32", sr(S_T0), sr(S_R), 1)
    b.salu("s_lshl_b32", sr(S_T0), sr(S_T0), 6)
    b.valu("v_xor_b32", vr(V_T0), sr(S_T0), vr(V_T0))
    b.salu("s_lshl_b32", sr(S_T1), sr(S_T0), 9)
    b.salu("s_add_u32", sr(S_T1), sr(S_T1), WO_OFF)
    b.valu("v_add_u32", vr(V_TW0), sr(S_T1), vr(V_T0))
    b.valu("v_xor_b32", vr(V_TW1), 64, vr(V_TW0))
    b.salu("s_lshl_b32", sr(S_T1), sr(S_T0), 3)
    b.salu("s_lshl_b32", sr(S_T0), sr(S_RB2), 10)
    b.salu("s_add_u32", sr(S_T0), sr(S_T0), sr(S_T1))
    b.salu("s_add_u32", sr(S_T0), sr(S_T0), F2)
    b.valu("v_and_b32", vr(V_T0), 3, vr(V_L))
    b.valu("v_lshlrev_b32", vr(V_T0), 7, vr(V_T0))
    b.valu("v_add_u32", vr(V_FO), sr(S_T0), vr(V_T0))
    b.salu("s_lshl_b32", sr(S_T0), sr(S_R), 12)
    b.valu("v_add_u32", vr(V_RA), sr(S_T0), vr(V_QO))
    b.valu("v_add_u32", vr(V_RA2), 2 * RING, vr(V_RA))
    b.valu("v_add_u32", vr(V_EW), EX_OFF, vr(V_RA))
    b.valu("v_xor_b32", vr(V_ER), 4096, vr(V_RA))
    b.valu("v_add_u32", vr(V_ER), EX_OFF, vr(V_ER))
    b.salu("s_lshr_b32", sr(S_T0), sr(S_R), 1)
    b.salu("s_and_b32", sr(S_T1), sr(S_R), 1)
    b.salu("s_lshl_b32", sr(S_T1), sr(S_T1), 5)
    b.salu("s_add_u32", sr(S_T1), sr(S_T1), sr(S_T0))
    b.salu("s_lshl_b32", sr(S_T1), sr(S_T1), 10)
    b.valu("v_add_u32", vr(V_OO), sr(S_T1), vr(V_QO))
    b.salu("s_lshl_b32", sr(S_T0), sr(S_T0), 15)
    b.salu("s_lshl_b32", sr(S_T1), sr(S_CB), 7)
    b.salu("s_add_u32", sr(S_T0), sr(S_T0), sr(S_T1))
    b.salu("s_and_b32", sr(S_T1), sr(S_R), 1)
    b.salu("s_lshl_b32", sr(S_T1), sr(S_T1), 6)
    b.salu("s_add_u32", sr(S_T0), sr(S_T0), sr(S_T1))
    b.valu("v_and_b32", vr(V_T0), 31, vr(V_L))
    b.valu("v_lshlrev_b32", vr(V_T0), 10, vr(V_T0))
    b.valu("v_lshrrev_b32", vr(V_T1), 5, vr(V_L))
    b.valu("v_lshl_add_u32", vr(V_T0), vr(V_T1), 4, vr(V_T0))
    b.valu("v_add_u32", vr(V_XOFF), sr(S_T0), vr(V_T0))
    b.wait(vm=0)
    arrive(b, CNT + 8, S_F, V_T0)
    b.raw("  s_setprio 0")
    stamp(b, 11)
    b.vmem_load("buffer_load_dwordx4", vr(V_XR, 4), vr(V_XOFF), sr(S_XO, 4), "0", tag="xr")
    b.vmem_load("buffer_load_dwordx4", vr(V_XR + 4, 4), vr(V_XOFF), sr(S_XO, 4), "0", mods="offset:32", tag="xr")
    lds_check_issue(b, WOL, V_SY, V_R + 4, "wl")
    b.wait(vm="xr")
    for e in range(2):
        for i in range(4):
            b.valu("v_lshlrev_b32", vr(V_AC + 8 * e + 2 * i), 16, vr(V_XR + 4 * e + i))
            b.valu("v_and_b32", vr(V_AC + 8 * e + 2 * i + 1), "0xffff0000", vr(V_XR + 4 * e + i))
    for e in range(2):
        for i in range(4):
            b.valu("v_permlane32_swap_b32", vr(V_AC + 8 * e + i), vr(V_AC + 8 * e + 4 + i))
    if 'ot' in OPT:
        b.valu("v_and_b32", vr(V_T0), 15, vr(V_L))
        b.valu("v_lshrrev_b32", vr(V_T1), 3, vr(V_T0))
        b.valu("v_and_b32", vr(V_T0), 7, vr(V_T0))
        b.valu("v_lshlrev_b32", vr(V_T0), 7, vr(V_T0))
        b.valu("v_lshl_add_u32", vr(V_T0), vr(V_T1), 11, vr(V_T0))
        b.valu("v_readfirstlane_b32", sr(S_T0), vr(V_OO))
        b.salu("s_lshl_b32", sr(S_T1), sr(S_CB), 12)
        b.salu("s_add_u32", sr(S_T0), sr(S_T0), sr(S_T1))
    lds_check(b, WOL, 1, V_SY, V_R + 4, "wl", slp=4)
    poll(b, V_R, V_FO)
    stamp(b, 12)
    if 'ot' in OPT:
        b.vmem_load("buffer_load_dword", vr(V_T1), vr(V_T0), sr(S_O, 4), sr(S_T0), mods="sc1", tag="ot")
    for s in range(16):
        if s % 2 == 0 and s:
            b.salu("s_mov_b32", sr(S_SO), (s // 2) * 4096)
        b.vmem_load("buffer_load_dwordx4", vr(V_A + 4 * s, 4), vr(V_OO), sr(S_O, 4), sr(S_SO) if s >= 2 else "0",
                    mods=("offset:2048 " if s % 2 else "") + "sc1", tag=f"o{s}")

    def read_wo(s):
        for j in range(2):
            for q in range(2):
                b.ds_read("ds_read_b64_tr_b16", vr(V_W2 + 8 * (s % 4) + 4 * j + 2 * q, 2), vr(V_TW1 if j else V_TW0), s * 2048 + q * 1024, tag=f"u{s}")
    for s in range(3):
        read_wo(s)
    for s in range(16):
        if s + 3 < 16:
            read_wo(s + 3)
        b.wait(vm=f"o{s}", lg=f"u{s}")
        b.mfma(vr(V_AC + 16, 16), vr(V_W2 + 8 * (s % 4) + 4, 4), vr(V_A + 4 * s, 4), vr(V_AC + 16, 16) if s else "0")
        b.mfma(vr(V_AC, 16), vr(V_W2 + 8 * (s % 4), 4), vr(V_A + 4 * s, 4), vr(V_AC, 16))
    for g in range(4):
        b.ds_write("ds_write_b128", vr(V_EW), vr(V_AC + 16 + 4 * g, 4), g * 1024)
    b.wait(lg=0)
    stamp(b, 13)
    b.barrier()
    for g in range(4):
        for P in range(4):
            b.ds_read("ds_read_b128", vr(V_R + 20 * g + 4 * P, 4), vr(V_RA if P < 2 else V_RA2), (P % 2) * RING + g * 1024, tag=f"r{g}")
        b.ds_read("ds_read_b128", vr(V_R + 20 * g + 16, 4), vr(V_ER), g * 1024, tag=f"r{g}")
    for g in range(4):
        R = V_R + 20 * g
        b.wait(lg=f"r{g}")
        for i in range(4):
            b.valu("v_add_f32", vr(R + i), vr(R + i), vr(R + 4 + i))
            b.valu("v_add_f32", vr(R + 8 + i), vr(R + 8 + i), vr(R + 12 + i))
            b.valu("v_add_f32", vr(V_AC + 4 * g + i), vr(V_AC + 4 * g + i), vr(R + 16 + i))
        for i in range(4):
            b.valu("v_add_f32", vr(R + i), vr(R + i), vr(R + 8 + i))
        for i in range(4):
            b.valu("v_add_f32", vr(V_AC + 4 * g + i), vr(V_AC + 4 * g + i), vr(R + i))
        for i in range(2):
            b.valu("v_cvt_pk_bf16_f32", vr(X + 2 * g + i), vr(V_AC + 4 * g + 2 * i), vr(V_AC + 4 * g + 2 * i + 1))
        if g % 2 == 1:
            e = g // 2
            for i in range(2):
                b.valu("v_permlane32_swap_b32", vr(X + 4 * e + i), vr(X + 4 * e + 2 + i))
            b.vmem_store("buffer_store_dwordx4", vr(X + 4 * e, 4), vr(V_XOFF), sr(S_OUT, 4), "0",
                         mods=("offset:32 " if e else "") + ("sc1" if 'osc1' in OPT else ""))
    if STAMPS:
        b.raw("  s_waitcnt vmcnt(0)")
        stamp(b, 14)
        stamp_out(b)
    b.raw("  s_endpgm")
    for s_ in stubs:
        b.raw(s_)


NAME = "parallel_sum__sliding_block__glu_gated_reglu__prompt_kernel"
if __name__ == "__main__":
    hdr = open("parallel_sum__sliding_block__glu_gated_reglu__prompt.s.ref").read().split("; Override launch")[0]
    s = hdr + "; @launch grid=(256,1,1) block=(512,1,1) lds=163840\n"
    s += '.amdgcn_target "amdgcn-amd-amdhsa--gfx950"\n.text\n'
    s += kernel(NAME)
    s += f'''.section .rodata,"a"
.p2align 6
.amdhsa_kernel {NAME}
  .amdhsa_next_free_vgpr 256
  .amdhsa_next_free_sgpr 100
  .amdhsa_accum_offset 256
  .amdhsa_group_segment_fixed_size 0
  .amdhsa_kernarg_size 80
  .amdhsa_user_sgpr_count 2
  .amdhsa_user_sgpr_kernarg_segment_ptr 1
  .amdhsa_system_sgpr_workgroup_id_x 1
.end_amdhsa_kernel
'''
    open(sys.argv[1], "w").write(s)
```

```python
from asmb import *
import os, sys, struct
OPT = set(os.environ.get('OPT', '').split(','))
STAMPS = "stamps" in sys.argv


def optval(name, default):
    for o in OPT:
        if o.startswith(name + "="):
            return int(o.split("=")[1])
    return default


def f32bits(x):
    return struct.unpack("<I", struct.pack("<f", x))[0]


QF, KF, VF, HF, OF = 0x000000, 0x200000, 0x400000, 0x600000, 0xC00000
HF_RB = 86 * 2048
F0, F1, F2 = 0xE00000, 0xE08000, 0xE10000
RSG = 0xE18000
CSG = 0xE20000
WS_USED = 0xE60000

PA = 28672
SB = 24704
S1B = 12288 + 32
UB_SLOT = {8: 4, 9: 5, 10: 3, 11: 0, 12: 1, 13: 2, 14: 4, 15: 5}
WINB = 2 * SB
RD = 9
RING = RD * 2048
WO_OFF = 4 * RING
EX_OFF = WO_OFF + 65536
MISC = 159744
assert EX_OFF + 16384 <= MISC
CS_OFF = MISC
ST_OFF = MISC + 1536
CP_OFF = MISC + 2560
NC_OFF = MISC + 2560
SY_OFF = MISC + 4096 - 128
LAND, CONS, WOL, CNT, LAND1 = SY_OFF, SY_OFF + 16, SY_OFF + 32, SY_OFF + 48, SY_OFF + 64
NC_OFF = SY_OFF - 16
CP_OFF = EX_OFF + 16384
assert CP_OFF + 2048 <= MISC and CP_OFF >= 6 * SB
QSCALE = 0.25 * 1.4426950408889634
NDOWN = 22

S_X, S_WA, S_WS, S_WB, S_DBG, S_C = 24, 28, 32, 52, 56, 44
S_WV, S_R, S_P, S_RB, S_CC = 36, 37, 38, 39, 40
S_SOFF, S_T0, S_T1 = 41, 42, 43
S_T2, S_T3, S_U0, S_U1 = 48, 49, 50, 51
S_R4K, S_R3K, S_R6K, S_FS = 60, 61, 62, 63
S_MASK = 64
S_CSO, S_CARE, S_E = 96, 64, 97
S_ST = 98

V_L = 0
V_NON = 252
V_Z = 254
V_STP = 255


def stamp(b, i):
    if STAMPS:
        b.raw(f"  {'s_memtime' if 'cyc' in OPT else 's_memrealtime'} s[{S_ST}:{S_ST+1}]")
        b.raw("  s_waitcnt lgkmcnt(0)")
        b.raw(f"  v_writelane_b32 v{V_STP}, s{S_ST}, {i}")


def stamp_out(b, n=15):
    if not STAMPS:
        return
    b.raw("  s_mov_b64 exec, -1")
    b.raw(f"  s_mov_b32 s{S_WS+2}, 0x1000000")
    b.raw("  s_lshl_b32 s3, s2, 3")
    b.raw(f"  s_add_u32 s3, s3, s{S_WV}")
    b.raw("  s_lshl_b32 s3, s3, 2")
    b.raw("  s_add_u32 s3, s3, 0xF00000")
    b.raw("  v_lshlrev_b32 v1, 13, v0")
    b.raw(f"  s_mov_b64 exec, {(1 << n) - 1}")
    b.raw(f"  buffer_store_dword v{V_STP}, v1, s[{S_WS}:{S_WS+3}], s3 offen")


def srd(b, s, lo, hi, size, add=None):
    if add is None:
        b.salu("s_mov_b32", sr(s), lo)
        b.salu("s_mov_b32", sr(s + 1), hi)
    else:
        b.salu("s_add_u32", sr(s), lo, add)
        b.salu("s_addc_u32", sr(s + 1), hi, 0)
    b.salu("s_mov_b32", sr(s + 2), size)
    b.salu("s_mov_b32", sr(s + 3), 0x20000)


def guard(b, exit_label):
    b.salu("s_add_u32", "s3", "s3", 1)
    b.salu("s_cmp_gt_u32", "s3", 0x400000)
    b.branch("s_cbranch_scc1", exit_label)


def poll(b, vtmp, vaddr, first_issued=False, slp=None):
    lp, lq = b.newlabel("poll"), b.newlabel("pok")
    if not first_issued:
        b.vmem_load("buffer_load_dwordx2", vr(vtmp, 2), vr(vaddr), sr(S_WS, 4), "0", mods="sc1", tag="fl")
    b.wait(vm="fl")
    b.label(lp)
    b.valu("v_cmp_ne_u64", "vcc", vr(vtmp, 2), vr(V_NON, 2))
    b.branch("s_cbranch_vccz", lq)
    b.opt_begin()
    guard(b, lq)
    b.raw(f"  s_sleep {slp if slp is not None else optval('slp', 8)}")
    b.vmem_load("buffer_load_dwordx2", vr(vtmp, 2), vr(vaddr), sr(S_WS, 4), "0", mods="sc1")
    b.wait(vm=0)
    b.branch("s_branch", lp)
    b.opt_end()
    b.label(lq)


def arrive(b, cnt_off, s_flag, vt):
    b.valu("v_mov_b32", vr(vt), cnt_off)
    b.valu("v_mov_b32", vr(vt + 1), 1)
    b.salu("s_mov_b64", "exec", 1)
    b.raw(f"  ds_add_rtn_u32 {vr(vt+2)}, {vr(vt)}, {vr(vt+1)}")
    b.wait(lg=0)
    b.valu("v_readfirstlane_b32", sr(S_T2), vr(vt + 2))
    ld = b.newlabel("nf")
    b.salu("s_cmp_lg_u32", sr(S_T2), 3)
    b.branch("s_cbranch_scc1", ld)
    b.opt_begin()
    b.vmem_store("buffer_store_dwordx2", vr(V_NON, 2), vr(V_Z), sr(S_WS, 4), sr(s_flag), mods="sc1")
    b.opt_end()
    b.label(ld)
    b.salu("s_mov_b64", "exec", -1)


def lds_signal(b, word, val, vt):
    b.salu("s_lshl_b32", sr(S_T2), sr(S_R), 2)
    b.salu("s_add_u32", sr(S_T2), sr(S_T2), word)
    b.valu("v_mov_b32", vr(vt), sr(S_T2))
    b.valu("v_mov_b32", vr(vt + 1), val)
    b.ds_write("ds_write_b32", vr(vt), vr(vt + 1), 0)


def lds_check_issue(b, word, va, vt, tag):
    b.ds_read("ds_read_b128", vr(vt, 4), vr(va), word - SY_OFF, tag=tag)


def lds_check(b, word, val, va, vt, tag, slp=0):
    lp, lq = b.newlabel("lsp"), b.newlabel("lok")
    b.wait(lg=tag)
    b.label(lp)
    b.valu("v_min3_u32", vr(vt), vr(vt), vr(vt + 1), vr(vt + 2))
    b.valu("v_min_u32", vr(vt), vr(vt), vr(vt + 3))
    b.valu("v_cmp_gt_u32", "vcc", val, vr(vt))
    b.branch("s_cbranch_vccz", lq)
    b.opt_begin()
    guard(b, lq)
    if slp:
        b.raw(f"  s_sleep {slp}")
    b.ds_read("ds_read_b128", vr(vt, 4), vr(va), word - SY_OFF)
    b.wait(lg=0)
    b.branch("s_branch", lp)
    b.opt_end()
    b.label(lq)


def w2_touch_mall(b, sc, va, vd):
    l1 = b.newlabel("w2")
    b.salu("s_cmp_lg_u32", sr(S_R), 1)
    b.branch("s_cbranch_scc1", l1)
    b.opt_begin()
    b.salu("s_sub_u32", sr(S_U1), "s2", 172)
    b.salu("s_cmp_lt_u32", "s2", 172)
    b.salu("s_cselect_b32", sr(sc), "s16", "s8")
    b.salu("s_cselect_b32", sr(sc + 1), "s17", "s9")
    b.salu("s_cselect_b32", sr(S_U0), "s2", sr(S_U1))
    b.salu("s_mov_b32", sr(sc + 2), 512 * 1024)
    b.salu("s_cselect_b32", sr(sc + 2), 1376 * 1024, sr(sc + 2))
    b.salu("s_mov_b32", sr(sc + 3), 0x20000)
    b.salu("s_lshl_b32", sr(S_U0), sr(S_U0), 13)
    b.valu("v_lshlrev_b32", vr(va), 7, vr(V_L))
    b.vmem_load("buffer_load_dword", vr(vd), vr(va), sr(sc, 4), sr(S_U0))
    b.opt_end()
    b.label(l1)


def w2_touch_l2(b, sc, va, vd):
    b.salu("s_lshr_b32", sr(S_U0), "s2", 3)
    b.salu("s_sub_u32", sr(S_U1), sr(S_U0), 22)
    b.salu("s_cmp_lt_u32", sr(S_U0), 22)
    b.salu("s_cselect_b32", sr(sc), "s16", "s8")
    b.salu("s_cselect_b32", sr(sc + 1), "s17", "s9")
    b.salu("s_cselect_b32", sr(S_U0), sr(S_U0), sr(S_U1))
    b.salu("s_mov_b32", sr(sc + 2), 512 * 1024)
    b.salu("s_cselect_b32", sr(sc + 2), 1376 * 1024, sr(sc + 2))
    b.salu("s_mov_b32", sr(sc + 3), 0x20000)
    b.salu("s_lshl_b32", sr(S_U0), sr(S_U0), 16)
    b.salu("s_lshl_b32", sr(S_U1), sr(S_R), 14)
    b.salu("s_add_u32", sr(S_U0), sr(S_U0), sr(S_U1))
    b.valu("v_lshlrev_b32", vr(va), 7, vr(V_L))
    b.vmem_load("buffer_load_dword", vr(vd), vr(va), sr(sc, 4), sr(S_U0), tag="pf")
    b.salu("s_add_u32", sr(S_U0), sr(S_U0), 8192)
    b.vmem_load("buffer_load_dword", vr(vd + 1), vr(va), sr(sc, 4), sr(S_U0), tag="pf")


def bf16r(b, reg):
    b.valu("v_cvt_pk_bf16_f32", vr(reg), vr(reg), vr(reg))
    b.valu("v_lshlrev_b32", vr(reg), 16, vr(reg))


def rows12_offsets(b, dst, n, stride, s_base, t0, t1):
    for i in range(n):
        b.valu("v_add_u32", vr(t0), 64 * i, vr(V_L))
        b.valu("v_mul_u32_u24", vr(t1), 5462, vr(t0))
        b.valu("v_lshrrev_b32", vr(t1), 16, vr(t1))
        b.valu("v_mul_u32_u24", vr(t1), stride - 192, vr(t1))
        b.valu("v_lshl_add_u32", vr(t1), vr(t0), 4, vr(t1))
        b.salu("s_sub_u32", sr(S_T2), sr(s_base), 1024 * (i % 4))
        b.valu("v_add_u32", vr(dst + i), sr(S_T2), vr(t1))


def ub_setup(b, dst, t0, t1):
    b.salu("s_cmp_lt_u32", sr(S_R), 2)
    b.salu("s_cselect_b32", sr(S_WB), "s12", "s14")
    b.salu("s_cselect_b32", sr(S_WB + 1), "s13", "s15")
    b.salu("s_cmp_lt_u32", sr(S_CC), 15)
    b.salu("s_cselect_b32", sr(S_WB + 2), 512 * 2752, 0)
    b.salu("s_mov_b32", sr(S_WB + 3), 0x20000)
    b.salu("s_and_b32", sr(S_U0), sr(S_R), 1)
    b.salu("s_mul_i32", sr(S_R6K), sr(S_U0), 6144)
    b.salu("s_lshr_b32", sr(S_U1), sr(S_R), 1)
    b.salu("s_mul_i32", sr(S_U1), sr(S_U1), S1B)
    b.salu("s_add_u32", sr(S_R6K), sr(S_R6K), sr(S_U1))
    b.salu("s_mul_i32", sr(S_U0), sr(S_U0), 32 * 2752)
    b.salu("s_lshl_b32", sr(S_U1), sr(S_FS), 5)
    b.salu("s_add_u32", sr(S_U0), sr(S_U0), sr(S_U1))
    rows12_offsets(b, dst, 6, 2752, S_U0, t0, t1)


def ub_step(b, vq, t, n):
    if n % 4 == 0:
        b.salu("s_add_u32", "m0", sr(S_R6K), UB_SLOT[t] * SB + 1024 * n)
    if n == 0:
        b.salu("s_mov_b32", sr(S_SOFF), (t - 8) * 64 * 2752)
    b.vmem_dma(vr(vq + n), sr(S_WB, 4), sr(S_SOFF), mods=f"offset:{1024*(n%4)}" if n % 4 else "", tag=f"U{t}")


def xread_setup(b, vxb, t0, t1, t2):
    b.valu("v_and_b32", vr(t0), 31, vr(V_L))
    b.salu("s_lshl_b32", sr(S_T0), sr(S_R), 5)
    b.valu("v_add_u32", vr(t0), sr(S_T0), vr(t0))
    b.valu("v_lshrrev_b32", vr(t1), 1, vr(t0))
    b.valu("v_lshrrev_b32", vr(t2), 5, vr(V_L))
    b.valu("v_xor_b32", vr(t1), vr(t1), vr(t2))
    b.valu("v_and_b32", vr(t1), 7, vr(t1))
    b.valu("v_lshlrev_b32", vr(t1), 4, vr(t1))
    b.valu("v_lshl_add_u32", vr(vxb), vr(t0), 7, vr(t1))
    for s in range(1, 4):
        b.valu("v_xor_b32", vr(vxb + s), 32 * s, vr(vxb))


def tr192(b, dst, chmul, t0, t1):
    b.valu("v_lshrrev_b32", vr(t0), 5, vr(V_L))
    b.valu("v_lshlrev_b32", vr(t0), 3, vr(t0))
    b.valu("v_bfe_u32", vr(t1), vr(V_L), 2, 2)
    b.valu("v_add_u32", vr(t0), vr(t0), vr(t1))
    b.valu("v_mul_u32_u24", vr(t0), 192, vr(t0))
    b.valu("v_and_b32", vr(t1), 3, vr(V_L))
    b.valu("v_lshl_add_u32", vr(t0), vr(t1), 3, vr(t0))
    b.valu("v_bfe_u32", vr(t1), vr(V_L), 4, 1)
    b.valu("v_mul_u32_u24", vr(t1), chmul, vr(t1))
    b.valu("v_add_u32", vr(dst), vr(t0), vr(t1))


def kernel(name):
    b = B()
    b.raw(f".globl {name}\n.p2align 8\n.type {name},@function\n{name}:")
    b.salu("s_cmp_ge_u32", "s2", 256)
    b.branch("s_cbranch_scc1", "L_END")
    stamp(b, 0)
    b.raw("  s_load_dwordx16 s[4:19], s[0:1], 0")
    b.raw("  s_load_dwordx4 s[20:23], s[0:1], 64")
    b.raw(f"  s_getpc_b64 s[{S_U0}:{S_U0+1}]")
    b.label("L_PC")
    b.valu("v_lshlrev_b32", "v2", 7, "v0")
    b.valu("v_min_u32", "v2", "L_END-L_PC", "v2")
    b.raw(f"  global_load_dword v251, v2, s[{S_U0}:{S_U0+1}]")
    b.valu("v_lshrrev_b32", "v1", 6, "v0")
    b.valu("v_and_b32", "v0", 63, "v0")
    b.valu("v_readfirstlane_b32", sr(S_WV), "v1")
    b.salu("s_and_b32", sr(S_T0), "s2", 1)
    b.salu("s_lshl_b32", sr(S_T0), sr(S_T0), 3)
    b.salu("s_bfe_u32", sr(S_T1), "s2", (3 << 16) | 3)
    b.salu("s_add_u32", sr(S_RB), sr(S_T0), sr(S_T1))
    b.salu("s_bfe_u32", sr(S_T0), "s2", (2 << 16) | 1)
    b.salu("s_lshl_b32", sr(S_T0), sr(S_T0), 2)
    b.salu("s_lshr_b32", sr(S_T1), "s2", 6)
    b.salu("s_add_u32", sr(S_CC), sr(S_T0), sr(S_T1))
    b.salu("s_and_b32", sr(S_R), sr(S_WV), 3)
    b.salu("s_lshr_b32", sr(S_P), sr(S_WV), 2)
    b.salu("s_mul_i32", sr(S_FS), sr(S_CC), 6)
    b.salu("s_min_u32", sr(S_FS), sr(S_FS), 80)
    b.valu("v_mov_b32", vr(V_Z), 0)
    b.salu("s_mov_b32", "s3", 0)
    b.salu("s_cmp_eq_u32", sr(S_P), 0)
    b.branch("s_cbranch_scc1", "L_P0")
    t1 = p1()
    t0 = p0()
    return b.text() + t1 + t0 + "L_END:\n  s_endpgm\n"


def common_srds(b):
    b.wait(lg=0)
    b.salu("s_lshl_b32", sr(S_T0), sr(S_RB), 17)
    srd(b, S_X, "s4", "s5", 0x20000, add=sr(S_T0))
    srd(b, S_WA, "s6", "s7", 512 * 3072)
    srd(b, S_WS, "s22", "s23", WS_USED)
    srd(b, S_DBG, "s20", "s21", 256)


def p1():
    b = B(); b.nlabel = 1000
    V_XO0, V_XO1, V_T0, V_T1, V_T2 = 1, 2, 3, 4, 5
    V_TRB = 1
    V_SY, V_CK = 4, 8
    V_RING = 8
    V_ACC = 32
    V_X = 128
    V_WA = 32
    V_UB, V_XB = 36, 44
    S_H, S_WD, S_WO = 72, 76, 80
    S_RB2, S_CB, S_M0B, S_KA, S_KB, S_F = 84, 85, 86, 87, 88, 89

    def pref_b(t, half=None):
        if half in (None, 0):
            b.salu("s_add_u32", "m0", sr(S_M0B), (t % RD) * 2048)
            b.salu("s_mov_b32", sr(S_KB), t * 16384)
            b.vmem_dma("v7", sr(S_WD, 4), sr(S_KB), tag=f"b{t}")
        if half in (None, 1):
            b.salu("s_mov_b32", sr(S_KB), t * 16384 + 8192 - 1024)
            b.vmem_dma("v7", sr(S_WD, 4), sr(S_KB), mods="offset:1024", tag=f"b{t}")
    S_PS = 64

    def pstamp(i):
        if STAMPS:
            b.raw(f"  {'s_memtime' if 'cyc' in OPT else 's_memrealtime'} s[{S_ST}:{S_ST+1}]")
            b.raw("  s_waitcnt lgkmcnt(0)")
            b.raw(f"  s_mov_b32 s{S_PS+i}, s{S_ST}")
    if STAMPS:
        b.raw(f"  s_mov_b32 s{S_PS}, s{S_ST}")
    b.salu("s_lshl_b32", sr(S_R4K), sr(S_R), 12)
    b.valu("v_lshrrev_b32", vr(V_T0), 3, vr(V_L))
    b.salu("s_lshl_b32", sr(S_T0), sr(S_R), 5)
    b.valu("v_add_u32", vr(V_T1), sr(S_T0), vr(V_T0))
    b.valu("v_lshrrev_b32", vr(V_T2), 1, vr(V_T1))
    b.valu("v_xor_b32", vr(V_T2), vr(V_T2), vr(V_L))
    b.valu("v_and_b32", vr(V_T2), 7, vr(V_T2))
    b.valu("v_lshlrev_b32", vr(V_T2), 4, vr(V_T2))
    b.valu("v_lshl_add_u32", vr(V_XO0), vr(V_T1), 10, vr(V_T2))
    b.valu("v_xor_b32", vr(V_XO1), 64, vr(V_XO0))
    b.valu("v_add_u32", vr(V_XO1), 8192 - 1024, vr(V_XO1))
    b.salu("s_mul_i32", sr(S_R3K), sr(S_R), 3072)
    b.salu("s_mul_i32", sr(S_U0), sr(S_R), 16 * 3072)
    b.salu("s_mul_i32", sr(S_U1), sr(S_CC), 192)
    b.salu("s_add_u32", sr(S_U0), sr(S_U0), sr(S_U1))
    rows12_offsets(b, V_WA, 3, 3072, S_U0, V_T0, V_T1)
    common_srds(b)

    def a_steps(t):
        st = []
        base = (t % 3) * PA

        def xs(n):
            if n == 0:
                b.salu("s_add_u32", "m0", sr(S_R4K), base)
                b.salu("s_mov_b32", sr(S_SOFF), t * 128)
            if n == 2:
                b.salu("s_add_u32", sr(S_SOFF), sr(S_SOFF), 16384 - 2048)
            b.vmem_dma(vr(V_XO1 if n % 2 else V_XO0), sr(S_X, 4), sr(S_SOFF), mods=f"offset:{1024*n}" if n else "", tag=f"A{t}")

        def ws_(n):
            if n == 0:
                b.salu("s_add_u32", "m0", sr(S_R3K), base + 16384)
                b.salu("s_mov_b32", sr(S_SOFF), t * 64 * 3072)
            b.vmem_dma(vr(V_WA + n), sr(S_WA, 4), sr(S_SOFF), mods=f"offset:{1024*n}" if n else "", tag=f"A{t}")
        return [lambda n=n: xs(n) for n in range(4)] + [lambda n=n: ws_(n) for n in range(3)]
    for f in a_steps(0):
        f()
    b.salu("s_or_b32", sr(S_T0), "s2", sr(S_R))
    b.salu("s_cmp_lg_u32", sr(S_T0), 0)
    b.branch("s_cbranch_scc1", "L_NL")
    b.opt_begin()
    b.raw(f"  s_memrealtime s[{S_T2}:{S_T2+1}]")
    b.raw("  s_waitcnt lgkmcnt(0)")
    b.salu("s_or_b32", sr(S_T2 + 1), sr(S_T2 + 1), "0x80000000")
    b.valu("v_mov_b32", vr(V_NON), sr(S_T2))
    b.valu("v_mov_b32", vr(V_NON + 1), sr(S_T2 + 1))
    b.salu("s_mov_b64", "exec", 1)
    b.vmem_store("buffer_store_dwordx2", vr(V_NON, 2), vr(V_Z), sr(S_DBG, 4), "0", mods="sc1")
    b.salu("s_mov_b64", "exec", -1)
    b.opt_end()
    b.label("L_NL")
    for f in a_steps(1):
        f()
    xread_setup(b, V_XB, V_T0, V_T1, V_T2)
    ub_setup(b, V_UB, V_T0, V_T1)
    b.wait(vm="A0", lg=0)
    b.barrier()
    pstamp(1)
    UBP1 = {6: [8, 9], 7: [10, 11]} if 'ubl' not in OPT else {6: [8], 7: [9]}
    for t in range(8):
        steps = a_steps(t + 2) if t + 2 < 8 else []
        for u in UBP1.get(t, []):
            steps += [lambda n=n, u=u: ub_step(b, V_UB, u, n) for n in range(6)]
        for f in steps[:2]:
            f()
        for s in range(4):
            ks = 4 * t + s
            b.ds_read("ds_read_b128", vr(V_X + 4 * ks, 4), vr(V_XB + s), (t % 3) * PA, tag=f"x{ks}")
        for f in steps[2:]:
            f()
        if t == 7:
            tr192(b, V_TRB, S1B, V_T1 + 2, V_T1 + 3)
            b.valu("v_add_u32", vr(V_TRB + 1), WINB, vr(V_TRB))
            b.valu("v_add_u32", vr(V_TRB + 2), 2 * WINB, vr(V_TRB))
            b.valu("v_mov_b32", vr(V_SY), SY_OFF)
            b.salu("s_lshl_b32", sr(S_T0), sr(S_R), 2)
            b.salu("s_add_u32", sr(S_T0), sr(S_T0), CONS)
            b.valu("v_mov_b32", "v5", sr(S_T0))
            srd(b, S_WD, "s16", "s17", 1376 * 1024)
            b.valu("v_bfe_u32", "v6", vr(V_L), 4, 1)
            b.valu("v_lshlrev_b32", "v6", 2, "v6")
            b.valu("v_xor_b32", "v6", "v6", vr(V_L))
            b.valu("v_and_b32", "v6", 7, "v6")
            b.valu("v_lshlrev_b32", "v6", 4, "v6")
            b.valu("v_lshrrev_b32", "v7", 3, vr(V_L))
            b.valu("v_lshl_add_u32", "v7", "v7", 10, "v6")
            b.salu("s_lshr_b32", sr(S_T0), "s2", 5)
            b.salu("s_lshl_b32", sr(S_T0), sr(S_T0), 7)
            b.salu("s_mul_i32", sr(S_T1), sr(S_R), NDOWN * 16384)
            b.salu("s_add_u32", sr(S_T1), sr(S_T1), sr(S_T0))
            b.valu("v_add_u32", "v7", sr(S_T1), "v7")
            b.salu("s_mul_i32", sr(S_M0B), sr(S_R), RING)
        b.wait(vm=f"A{t+1}" if t < 7 else "U8", lg=0)
        b.barrier()
        if t + 1 in (2, 4, 8):
            pstamp({2: 2, 4: 3, 8: 4}[t + 1])
    LA = 4
    NF = 6 * 32
    EARLY = False
    KT = optval("kt", 28)
    order = [(ks, blk) for ks in range(KT) for blk in range(6)] + [(ks, blk) for blk in range(6) for ks in range(KT, 32)]

    def read_w(f):
        ks, blk = order[f]
        t, s = 8 + ks // 4, ks % 4
        r0 = V_RING + 4 * (f % 5)
        for q in range(2):
            off = UB_SLOT[t] * SB + s * 3072 + q * 768 + blk * 32
            b.ds_read("ds_read_b64_tr_b16", vr(r0 + 2 * q, 2), vr(V_TRB + off // WINB), off % WINB, tag=f"w{f}")
    V_CKT = V_RING + 20
    b.raw(f"  s_setprio {optval('pr1', 2)}")
    V_NM, V_RS, V_CSRD, V_STO, V_A1 = 128, 129, 130, 131, 132
    TS = [136, 144]

    def csrd(n):
        blk, g = divmod(n, 2)
        T = TS[n % 2]
        b.ds_read("ds_read_b128", vr(T, 4), vr(V_CSRD), blk * 128 + g * 32, tag=f"c{n}")
        b.ds_read("ds_read_b128", vr(T + 4, 4), vr(V_CSRD), blk * 128 + 64 + g * 32, tag=f"c{n}")

    def epi_setup_ops():
        ops = []
        Vv = lambda *a, **k: ops.append(lambda: b.valu(*a, **k))
        S = lambda *a: ops.append(lambda: b.salu(*a))
        Vv("v_and_b32", vr(V_A1), 31, vr(V_L))
        S("s_lshl_b32", sr(S_T0), sr(S_R), 8)
        S("s_add_u32", sr(S_T0), sr(S_T0), ST_OFF)
        Vv("v_lshl_add_u32", vr(V_A1), vr(V_A1), 3, sr(S_T0))
        ops.append(lambda: b.ds_read("ds_read_b64", vr(V_NM, 2), vr(V_A1), 0, tag="str"))
        Vv("v_lshrrev_b32", vr(V_CSRD), 5, vr(V_L))
        Vv("v_lshlrev_b32", vr(V_CSRD), 4, vr(V_CSRD))
        Vv("v_add_u32", vr(V_CSRD), CS_OFF + 384, vr(V_CSRD))
        Vv("v_lshlrev_b32", vr(V_STO), 4, vr(V_L))
        ops.append(lambda: csrd(0))
        S("s_lshl_b32", sr(S_T0), sr(S_RB), 1)
        S("s_lshr_b32", sr(S_T1), sr(S_R), 1)
        S("s_add_u32", sr(S_T0), sr(S_T0), sr(S_T1))
        S("s_mul_i32", sr(S_T3), sr(S_T0), HF_RB)
        S("s_and_b32", sr(S_T1), sr(S_R), 1)
        S("s_lshl_b32", sr(S_T1), sr(S_T1), 10)
        S("s_add_u32", sr(S_T3), sr(S_T3), sr(S_T1))
        S("s_lshl_b32", sr(S_T1), sr(S_FS), 11)
        S("s_add_u32", sr(S_T3), sr(S_T3), sr(S_T1))
        S("s_add_u32", sr(S_T3), sr(S_T3), HF)
        ops.append(lambda: (b.salu("s_cmp_lt_u32", sr(S_CC), 15), b.salu("s_cselect_b32", sr(S_T3), sr(S_T3), "0x40000000")))
        ops.append(lambda: b.wait(lg="str"))
        Vv("v_mul_f32", vr(V_RS), vr(V_RS), vr(V_RS))
        return ops

    def epi_ops(blk):
        ops = []
        Vv = lambda *a, **k: ops.append(lambda: b.valu(*a, **k))
        acc = V_ACC + 16 * blk
        for g in range(2):
            n = 2 * blk + g
            T = TS[n % 2]
            if n + 1 < 12:
                ops.append(lambda n=n: csrd(n + 1))
            ops.append(lambda n=n: b.wait(lg=f"c{n}"))
            for i in range(4):
                Vv("v_fmac_f32", vr(acc + 4 * g + i), vr(V_NM), vr(T + i))
            for i in range(4):
                Vv("v_fmac_f32", vr(acc + 8 + 4 * g + i), vr(V_NM), vr(T + 4 + i))
            for i in range(4):
                Vv("v_max_f32", vr(acc + 4 * g + i), 0, vr(acc + 4 * g + i))
            for i in range(4):
                Vv("v_mul_f32", vr(acc + 8 + 4 * g + i), vr(V_RS), vr(acc + 8 + 4 * g + i))
            for i in range(4):
                Vv("v_mul_f32", vr(acc + 4 * g + i), vr(acc + 4 * g + i), vr(acc + 8 + 4 * g + i))
        for i in range(4):
            Vv("v_cvt_pk_bf16_f32", vr(acc + i), vr(acc + 2 * i), vr(acc + 2 * i + 1))

        def st():
            b.salu("s_add_u32", sr(S_T0), sr(S_T3), (blk // 2) * 4096)
            b.vmem_store("buffer_store_dwordx4", vr(acc, 4), vr(V_STO), sr(S_WS, 4), sr(S_T0),
                         mods=("offset:2048 " if blk % 2 else "") + "sc1", tag="st")
        ops.append(st)
        return ops
    first_use = {}
    last_use = {}
    for f, (ks, blk) in enumerate(order):
        first_use.setdefault(8 + ks // 4, f)
        last_use[8 + ks // 4] = f
    fu_inv = {v: k for k, v in first_use.items()}
    chk_issue = {}
    for t in range(9, 16):
        chk_issue[max(first_use[t] - 6, first_use[t - 1])] = t
    fill = []
    NK = 32 - KT
    for f in range(LA):
        read_w(f)
    for f in range(NF):
        nf = f + LA
        for t in (9, 10, 11):
            if nf == first_use[t] - 16:
                b.wait(vm=f"U{t}")
                b.valu("v_mov_b32", "v6", t)
                b.ds_write("ds_write_b32", "v5", "v6", LAND1 - CONS)
        if nf in fu_inv and fu_inv[nf] >= 9:
            t = fu_inv[nf]
            lds_check(b, LAND1 if t <= 11 else LAND, t, V_SY, V_CKT, f"L{t}")
        if nf in chk_issue:
            t = chk_issue[nf]
            lds_check_issue(b, LAND1 if t <= 11 else LAND, V_SY, V_CKT, f"L{t}")
        if nf < NF:
            read_w(nf)
        ks, blk = order[f]
        b.wait(lg=f"w{f}")
        acc = V_ACC + 16 * blk
        b.mfma(vr(acc, 16), vr(V_RING + 4 * (f % 5), 4), vr(V_X + 4 * ks, 4), "0" if ks == 0 else vr(acc, 16))
        for t in (8, 9, 15):
            if f == last_use[t]:
                b.valu("v_mov_b32", "v6", t)
                b.ds_write("ds_write_b32", "v5", "v6", 0)
        if f == 6 * KT - 12:
            fill += epi_setup_ops()
        if f >= 6 * KT + NK + 1 and (f - 6 * KT - 1) % NK == 0:
            fill += epi_ops((f - 6 * KT - 1) // NK - 1)
        for _ in range(optval("fre", 7)):
            if fill:
                fill.pop(0)()
        if f == 95:
            pstamp(5)
    pstamp(6)
    fill += epi_ops(5)
    b.valu("v_mov_b32", vr(V_Z), 0)
    b.valu("v_mov_b32", vr(V_A1), NC_OFF)
    b.ds_read("ds_read_b64", vr(V_NON, 2), vr(V_A1), 0)
    while fill:
        fill.pop(0)()
    b.raw(f"  s_setprio {optval('pr1b', 0)}")
    pstamp(7)
    if STAMPS:
        for i in range(8):
            b.raw(f"  v_writelane_b32 v{V_STP}, s{S_PS+i}, {i}")
    V_AO, V_BO0, V_BO1, V_TR0, V_TR1, V_BW0, V_BW1, V_FO, V_WR, V_U0, V_U1, V_U2 = 132, 133, 134, 135, 136, 137, 138, 139, 140, 141, 142, 143
    V_W = 144
    V_A = 160
    V_C = 8
    RA = optval('ra', 5)
    IL = 'noil' not in OPT
    b.salu("s_lshl_b32", sr(S_F), sr(S_RB), 4)
    b.salu("s_add_u32", sr(S_F), sr(S_F), sr(S_CC))
    b.salu("s_lshl_b32", sr(S_F), sr(S_F), 7)
    b.salu("s_add_u32", sr(S_F), sr(S_F), F1)
    b.salu("s_and_b32", sr(S_T0), "s2", 7)
    b.salu("s_lshl_b32", sr(S_T0), sr(S_T0), 2)
    b.salu("s_bfe_u32", sr(S_T1), "s2", (2 << 16) | 3)
    b.salu("s_add_u32", sr(S_RB2), sr(S_T0), sr(S_T1))
    b.salu("s_lshr_b32", sr(S_CB), "s2", 5)
    b.salu("s_mul_i32", sr(S_T0), sr(S_RB2), HF_RB)
    b.salu("s_add_u32", sr(S_T0), sr(S_T0), HF)
    srd(b, S_H, "s22", "s23", HF_RB, add=sr(S_T0))
    if 'fakea' in OPT:
        srd(b, S_H, "s16", "s17", HF_RB)
    srd(b, S_WO, "s8", "s9", 512 * 1024)
    b.salu("s_mul_i32", sr(S_T0), sr(S_R), NDOWN * 2048)
    b.valu("v_add_u32", vr(V_AO), sr(S_T0), vr(V_STO))
    b.valu("v_bfe_u32", vr(V_U1), vr(V_L), 4, 1)
    b.valu("v_lshlrev_b32", vr(V_U1), 2, vr(V_U1))
    b.valu("v_xor_b32", vr(V_U1), vr(V_U1), vr(V_L))
    b.valu("v_and_b32", vr(V_U1), 7, vr(V_U1))
    b.valu("v_lshlrev_b32", vr(V_U1), 4, vr(V_U1))
    b.valu("v_lshrrev_b32", vr(V_U0), 3, vr(V_L))
    b.valu("v_lshl_add_u32", vr(V_U0), vr(V_U0), 10, vr(V_U1))
    b.salu("s_lshl_b32", sr(S_T0), sr(S_CB), 7)
    b.salu("s_mul_i32", sr(S_T1), sr(S_R), NDOWN * 16384)
    b.salu("s_add_u32", sr(S_T1), sr(S_T1), sr(S_T0))
    b.salu("s_lshl_b32", sr(S_T1), sr(S_R), 17)
    b.salu("s_add_u32", sr(S_T1), sr(S_T1), sr(S_T0))
    b.valu("v_add_u32", vr(V_BW0), sr(S_T1), vr(V_U0))
    b.valu("v_add_u32", vr(V_BW1), 8192 - 1024, vr(V_BW0))
    b.valu("v_lshrrev_b32", vr(V_U0), 5, vr(V_L))
    b.valu("v_lshlrev_b32", vr(V_U0), 2, vr(V_U0))
    b.valu("v_bfe_u32", vr(V_U1), vr(V_L), 2, 2)
    b.valu("v_add_u32", vr(V_U0), vr(V_U0), vr(V_U1))
    b.valu("v_and_b32", vr(V_U2), 3, vr(V_L))
    b.valu("v_lshlrev_b32", vr(V_U2), 3, vr(V_U2))
    b.valu("v_lshl_add_u32", vr(V_U0), vr(V_U0), 7, vr(V_U2))
    b.valu("v_lshrrev_b32", vr(V_U1), 1, vr(V_U1))
    b.valu("v_bfe_u32", vr(V_U2), vr(V_L), 4, 1)
    b.valu("v_lshl_add_u32", vr(V_U1), vr(V_U1), 1, vr(V_U2))
    b.valu("v_lshl_add_u32", vr(V_U0), vr(V_U1), 5, vr(V_U0))
    b.valu("v_add_u32", vr(V_TR0), sr(S_M0B), vr(V_U0))
    b.valu("v_xor_b32", vr(V_TR1), 64, vr(V_TR0))
    b.valu("v_add_u32", vr(V_WR), sr(S_M0B), vr(V_STO))
    b.salu("s_lshr_b32", sr(S_T0), sr(S_RB2), 1)
    b.salu("s_lshl_b32", sr(S_T0), sr(S_T0), 11)
    b.salu("s_add_u32", sr(S_T0), sr(S_T0), F1)
    b.salu("s_mul_i32", sr(S_T1), sr(S_R), 11)
    b.salu("s_mul_i32", sr(S_T1), sr(S_T1), 21846)
    b.salu("s_lshr_b32", sr(S_T1), sr(S_T1), 16)
    b.valu("v_min_u32", vr(V_U0), 4, vr(V_L))
    b.valu("v_add_u32", vr(V_U0), sr(S_T1), vr(V_U0))
    b.valu("v_min_u32", vr(V_U0), 14, vr(V_U0))
    b.valu("v_lshlrev_b32", vr(V_U0), 7, vr(V_U0))
    b.valu("v_add_u32", vr(V_FO), sr(S_T0), vr(V_U0))
    lds_check_issue(b, CONS, V_SY, V_C, "cz")
    b.wait(vm=0)
    stamp(b, 8)
    arrive(b, CNT + 4, S_F, V_U0)
    lds_check(b, CONS, 15, V_SY, V_C, "cz")

    def pref_a(t, half=None):
        for i in range(2):
            if half is not None and half != i:
                continue
            if i == 0:
                b.salu("s_mov_b32", sr(S_KA), t * 2048)
            b.vmem_load("buffer_load_dwordx4", vr(V_A + 8 * (t % RA) + 4 * i, 4), vr(V_AO), sr(S_H, 4), sr(S_KA),
                        mods=("offset:1024 " if i else "") + "sc1", tag=f"a{t}")

    def pref_wo(i):
        if i == 0:
            b.salu("s_lshl_b32", sr(S_T3), sr(S_R), 14)
        b.salu("s_add_u32", "m0", sr(S_T3), WO_OFF + i * 2048)
        b.salu("s_mov_b32", sr(S_KB), i * 16384)
        b.vmem_dma(vr(V_BW0), sr(S_WO, 4), sr(S_KB), tag="wo")
        b.vmem_dma(vr(V_BW1), sr(S_WO, 4), sr(S_KB), mods="offset:1024", tag="wo")
    for t in range(RD if not EARLY else 0):
        pref_b(t)
    nwo = 0
    while nwo < optval("nwo", 8):
        pref_wo(nwo)
        nwo += 1
    if 'ht' in OPT:
        b.valu("v_min_u32", vr(V_U0), 43, vr(V_L))
        b.salu("s_mul_i32", sr(S_T0), sr(S_CB), 44)
        b.valu("v_add_u32", vr(V_U0), sr(S_T0), vr(V_U0))
        b.valu("v_lshlrev_b32", vr(V_U0), 7, vr(V_U0))
        b.salu("s_mul_i32", sr(S_T0), sr(S_R), NDOWN * 2048)
    poll(b, V_W, V_FO)
    stamp(b, 9)
    if 'ht' in OPT:
        b.vmem_load("buffer_load_dword", vr(V_U1), vr(V_U0), sr(S_H, 4), sr(S_T0), mods="sc1", tag="ht")
        if 'htw' in OPT:
            b.wait(vm="ht")
    for t in range(RA):
        pref_a(t)
        if nwo < 8:
            pref_wo(nwo)
            nwo += 1

    def rdw(t):
        ws = V_W + 8 * (t % 2)
        b.wait(vm=f"b{t}")
        for j in range(2):
            for q in range(2):
                b.ds_read("ds_read_b64_tr_b16", vr(ws + 4 * j + 2 * q, 2), vr(V_TR0 + j), (t % RD) * 2048 + q * 1024, tag=f"d{t}")
    def rdw1(t, n):
        ws = V_W + 8 * (t % 2)
        if n == 0:
            b.wait(vm=f"b{t}")
        j, q = divmod(n, 2)
        b.ds_read("ds_read_b64_tr_b16", vr(ws + 4 * j + 2 * q, 2), vr(V_TR0 + j), (t % RD) * 2048 + q * 1024, tag=f"d{t}")
    rdw(0)
    for t in range(NDOWN):
        ws = V_W + 8 * (t % 2)
        b.wait(vm=f"a{t}", lg=f"d{t}")
        lds = []
        if t + RD < NDOWN:
            lds += [lambda: pref_b(t + RD, 0), lambda: pref_b(t + RD, 1)]
        if t >= 1 and t - 1 + RA < NDOWN:
            lds = [lambda: pref_a(t - 1 + RA, 0), lambda: pref_a(t - 1 + RA, 1)] + lds
        for i in range(2):
            for j in range(2):
                acc = V_ACC + 16 * (2 * i + j)
                b.mfma(vr(acc, 16), vr(ws + 4 * j, 4), vr(V_A + 8 * (t % RA) + 4 * i, 4), "0" if t == 0 else vr(acc, 16))
                if t + 1 < NDOWN and 2 * i + j < 2:
                    rdw1(t + 1, 2 * (2 * i + j))
                    rdw1(t + 1, 2 * (2 * i + j) + 1)
                if lds:
                    lds.pop(0)()
        if t == optval("twol", 13):
            b.wait(vm="wo")
            lds_signal(b, WOL, 1, V_U0)
    stamp(b, 10)
    for blk in range(4):
        for g in range(4):
            b.ds_write("ds_write_b128", vr(V_WR), vr(V_ACC + 16 * blk + 4 * g, 4), blk * 4096 + g * 1024)
    b.wait(lg=0)
    stamp(b, 11)
    stamp_out(b)
    b.raw("  s_endpgm")
    print("p1 instrs", b.ninstr)
    return b.text()


def p0():
    b = B(); b.nlabel = 3000
    b.label("L_P0")
    DPP = "row_mask:0xf bank_mask:0xf"
    V_T0, V_T1, V_T2 = 1, 2, 3
    V_XB = 4
    V_TRA = 8
    V_SY = 9
    V_NM, V_RS = 10, 11
    V_CSRD, V_STO, V_STV, V_RSS = 12, 13, 14, 15
    V_ID = 16
    V_XF = 24
    V_RING = 36
    V_ACC = 72
    V_D2 = 120
    TS = [136, 144]
    RD_, CD, CA, U0, U1 = 152, 160, 192, 200, 201
    SU, SQ = 250, 251
    GA, G0 = 204, 236
    V_UB = 244
    if 'ct' in OPT:
        b.valu("v_lshlrev_b32", vr(V_T0), 7, vr(V_L))
        b.salu("s_lshl_b32", sr(S_T0), "s2", 13)
        b.wait(lg=0)
        b.salu("s_cmp_eq_u32", sr(S_R), 2)
        b.salu("s_cselect_b32", sr(S_C), "s12", "s14")
        b.salu("s_cselect_b32", sr(S_C + 1), "s13", "s15")
        b.salu("s_mov_b32", sr(S_C + 2), 512 * 2752)
        b.salu("s_cmp_eq_u32", sr(S_R), 1)
        b.salu("s_cselect_b32", sr(S_C), "s6", sr(S_C))
        b.salu("s_cselect_b32", sr(S_C + 1), "s7", sr(S_C + 1))
        b.salu("s_cselect_b32", sr(S_C + 2), 512 * 3072, sr(S_C + 2))
        b.salu("s_cmp_eq_u32", sr(S_R), 0)
        b.salu("s_cselect_b32", sr(S_C), "s4", sr(S_C))
        b.salu("s_cselect_b32", sr(S_C + 1), "s5", sr(S_C + 1))
        b.salu("s_cselect_b32", sr(S_C + 2), 0x200000, sr(S_C + 2))
        b.salu("s_mov_b32", sr(S_C + 3), 0x20000)
        if optval("ctd", 0):
            b.raw(f"  s_sleep {optval('ctd', 0)}")
        b.vmem_load("buffer_load_dword", vr(243), vr(V_T0), sr(S_C, 4), sr(S_T0))
    xread_setup(b, V_XB, V_T0, V_T1, V_T2)
    tr192(b, V_TRA, 32, V_T0, V_T1)
    b.valu("v_add_u32", vr(V_TRA), 16384, vr(V_TRA))
    b.valu("v_lshlrev_b32", vr(V_T0), 2, vr(V_L))
    b.valu("v_min_u32", vr(V_T0), 124, vr(V_T0))
    b.valu("v_add_u32", vr(V_T0), SY_OFF, vr(V_T0))
    b.ds_write("ds_write_b32", vr(V_T0), vr(V_Z), 0)
    b.valu("v_mov_b32", vr(V_SY), SY_OFF)
    b.valu("v_and_b32", vr(V_T0), 31, vr(V_L))
    b.valu("v_lshrrev_b32", vr(V_T1), 5, vr(V_L))
    b.valu("v_lshlrev_b32", vr(V_T1), 2, vr(V_T1))
    b.valu("v_sub_u32", vr(V_T0), vr(V_T0), vr(V_T1))
    b.valu("v_mov_b32", vr(V_T1), "0x3f80")
    b.valu("v_mov_b32", vr(V_T2), "0x3f800000")
    for hf in range(2):
        for i in range(4):
            d = 16 * hf + ((2 * i) & 3) + 8 * (i >> 1)
            b.valu("v_cmp_eq_u32", "vcc", d, vr(V_T0))
            b.valu("v_cndmask_b32", vr(V_ID + 4 * hf + i), 0, vr(V_T1))
            b.valu("v_cmp_eq_u32", "vcc", d + 1, vr(V_T0))
            b.valu("v_cndmask_b32", vr(V_ID + 4 * hf + i), vr(V_ID + 4 * hf + i), vr(V_T2))
    b.valu("v_lshlrev_b32", vr(V_STO), 4, vr(V_L))
    b.valu("v_and_b32", vr(V_T0), 15, vr(V_L))
    b.valu("v_lshlrev_b32", vr(V_T0), 4, vr(V_T0))
    b.valu("v_lshrrev_b32", vr(V_T1), 5, vr(V_L))
    b.valu("v_lshl_add_u32", vr(V_T0), vr(V_T1), 8, vr(V_T0))
    b.valu("v_bfe_u32", vr(V_T2), vr(V_L), 4, 1)
    b.valu("v_lshl_add_u32", vr(V_STV), vr(V_T2), 16, vr(V_T0))
    b.valu("v_lshlrev_b32", vr(V_CSRD), 4, vr(V_T1))
    b.valu("v_add_u32", vr(V_CSRD), CS_OFF, vr(V_CSRD))
    common_srds(b)
    ub_setup(b, V_UB, V_T0, V_T1)

    def prod_loads():
        l1 = b.newlabel("np")
        b.salu("s_cmp_lg_u32", sr(S_R), 0)
        b.branch("s_cbranch_scc1", l1)
        b.opt_begin()
        b.vmem_load("buffer_load_dwordx2", vr(V_NON, 2), vr(V_Z), sr(S_DBG, 4), "0", mods="sc1")
        b.opt_end()
        b.label(l1)
        b.salu("s_lshl_b32", sr(S_T0), sr(S_CC), 13)
        b.salu("s_lshl_b32", sr(S_T1), sr(S_R), 11)
        b.salu("s_add_u32", sr(S_T0), sr(S_T0), sr(S_T1))
        b.valu("v_lshlrev_b32", vr(U0), 5, vr(V_L))
        b.vmem_load("buffer_load_dwordx4", vr(RD_, 4), vr(U0), sr(S_X, 4), sr(S_T0), tag="rl")
        b.vmem_load("buffer_load_dwordx4", vr(RD_ + 4, 4), vr(U0), sr(S_X, 4), sr(S_T0), mods="offset:16", tag="rl")
        b.salu("s_lshr_b32", sr(S_T0), sr(S_RB), 2)
        b.salu("s_and_b32", sr(S_T1), sr(S_RB), 3)
        b.salu("s_cmp_eq_u32", sr(S_T0), 1)
        b.salu("s_cselect_b32", sr(S_C), "s12", "s14")
        b.salu("s_cselect_b32", sr(S_C + 1), "s13", "s15")
        b.salu("s_movk_i32", sr(S_T3), 2752)
        b.salu("s_lshl_b32", sr(S_U0), sr(S_FS), 5)
        b.salu("s_mul_i32", sr(S_U1), sr(S_CC), 192)
        b.salu("s_cmp_eq_u32", sr(S_T0), 0)
        b.salu("s_cselect_b32", sr(S_C), "s6", sr(S_C))
        b.salu("s_cselect_b32", sr(S_C + 1), "s7", sr(S_C + 1))
        b.salu("s_cselect_b32", sr(S_T3), 3072, sr(S_T3))
        b.salu("s_cselect_b32", sr(S_U0), sr(S_U1), sr(S_U0))
        b.salu("s_lshl_b32", sr(S_C + 2), sr(S_T3), 9)
        b.salu("s_cmp_eq_u32", sr(S_T0), 3)
        b.salu("s_cselect_b32", sr(S_C + 2), 0, sr(S_C + 2))
        b.salu("s_mov_b32", sr(S_C + 3), 0x20000)
        b.salu("s_lshl_b32", sr(S_U1), sr(S_T1), 2)
        b.salu("s_add_u32", sr(S_U1), sr(S_U1), sr(S_R))
        b.salu("s_lshl_b32", sr(S_U1), sr(S_U1), 5)
        b.salu("s_mul_i32", sr(S_U1), sr(S_U1), sr(S_T3))
        b.salu("s_add_u32", sr(S_U0), sr(S_U0), sr(S_U1))
        b.valu("v_lshrrev_b32", vr(U0), 4, vr(V_L))
        b.valu("v_mul_u32_u24", vr(U0), sr(S_T3), vr(U0))
        b.valu("v_and_b32", vr(U1), 15, vr(V_L))
        b.valu("v_lshl_add_u32", vr(U0), vr(U1), 4, vr(U0))
        b.valu("v_cmp_gt_u32", "vcc", 12, vr(U1))
        b.valu("v_mov_b32", vr(U1), "0x40000000")
        b.valu("v_cndmask_b32", vr(U0), vr(U1), vr(U0))
        b.salu("s_lshl_b32", sr(S_T3), sr(S_T3), 2)
        for i in range(8):
            b.vmem_load("buffer_load_dwordx4", vr(CD + 4 * i, 4), vr(U0), sr(S_C, 4), sr(S_U0), tag="cl")
            if i < 7:
                b.salu("s_add_u32", sr(S_U0), sr(S_U0), sr(S_T3))
        b.salu("s_lshl_b32", sr(S_CSO), sr(S_CC), 2)
        b.salu("s_add_u32", sr(S_CSO), sr(S_CSO), sr(S_T1))
        b.salu("s_lshl_b32", sr(S_CSO), sr(S_CSO), 12)
        b.salu("s_lshl_b32", sr(S_U0), sr(S_T0), 7)
        b.salu("s_add_u32", sr(S_U0), sr(S_U0), 640)
        b.salu("s_cmp_eq_u32", sr(S_T0), 0)
        b.salu("s_cselect_b32", sr(S_U0), 0, sr(S_U0))
        b.salu("s_add_u32", sr(S_CSO), sr(S_CSO), sr(S_U0))
        b.salu("s_add_u32", sr(S_CSO), sr(S_CSO), CSG)

    def prod_ops():
        ops = []
        Vv = lambda *a, **k: ops.append(lambda: b.valu(*a, **k))
        A = ops.append
        A(lambda: b.wait(vm="rl"))
        if 'pdot' in OPT:
            A(lambda: (b.salu("s_mov_b32", sr(S_T0), "0x3f803f80"), b.salu("s_mov_b32", sr(S_T1), "0x3f80"), b.salu("s_mov_b32", sr(S_T3), "0x3f800000")))
            Vv("v_mov_b32", vr(SU), 0)
            Vv("v_mov_b32", vr(SQ), 0)
            for i in range(8):
                Vv("v_dot2c_f32_bf16", vr(SU), sr(S_T0), vr(RD_ + i))
                Vv("v_dot2c_f32_bf16", vr(SQ), vr(RD_ + i), vr(RD_ + i))
        for i in range(8 if 'pdot' not in OPT else 0):
            Vv("v_lshlrev_b32", vr(U0), 16, vr(RD_ + i))
            Vv("v_and_b32", vr(U1), "0xffff0000", vr(RD_ + i))
            if i == 0:
                Vv("v_add_f32", vr(SU), vr(U0), vr(U1))
                Vv("v_mul_f32", vr(SQ), vr(U0), vr(U0))
            else:
                Vv("v_add_f32", vr(SU), vr(SU), vr(U0))
                Vv("v_fmac_f32", vr(SQ), vr(U0), vr(U0))
                Vv("v_add_f32", vr(SU), vr(SU), vr(U1))
            Vv("v_fmac_f32", vr(SQ), vr(U1), vr(U1))
        Vv("v_permlane16_swap_b32", vr(SU), vr(SQ))
        Vv("v_add_f32", vr(SU), vr(SU), vr(SQ))
        for r in (8, 4, 2, 1):
            Vv("v_add_f32_dpp", vr(SU), vr(SU), vr(SU), mods=f"row_ror:{r} {DPP}")
        Vv("v_mov_b32", vr(SQ), vr(SU))
        Vv("v_permlane16_swap_b32", vr(SU), vr(SQ))
        Vv("v_mul_f32", vr(SU), hex(f32bits(1.0 / 512)), vr(SU))
        Vv("v_mul_f32", vr(SQ), hex(f32bits(1.0 / 512)), vr(SQ))
        Vv("v_fma_f32", vr(SQ), f"-{vr(SU)}", vr(SU), vr(SQ))
        Vv("v_max_f32", vr(SQ), 0, vr(SQ))
        A(lambda: bf16r(b, SQ))
        Vv("v_add_f32", vr(SQ), hex(f32bits(1e-5)), vr(SQ))
        A(lambda: bf16r(b, SQ))
        Vv("v_sqrt_f32", vr(SQ), vr(SQ))
        A(lambda: bf16r(b, SQ))
        Vv("v_rcp_f32", vr(SQ), vr(SQ))
        A(lambda: bf16r(b, SU))
        Vv("v_sub_f32", vr(SU), 0, vr(SU))
        A(lambda: b.wait(vm="cl"))
        for i in range(8):
            for j in range(4):
                src = CD + 4 * i + j
                if i == 0:
                    Vv("v_lshlrev_b32", vr(CA + 2 * j), 16, vr(src))
                    Vv("v_and_b32", vr(CA + 2 * j + 1), "0xffff0000", vr(src))
                elif 'pdot' in OPT:
                    Vv("v_dot2c_f32_bf16", vr(CA + 2 * j), sr(S_T1), vr(src))
                    Vv("v_dot2c_f32_bf16", vr(CA + 2 * j + 1), sr(S_T3), vr(src))
                else:
                    Vv("v_lshlrev_b32", vr(U0), 16, vr(src))
                    Vv("v_and_b32", vr(U1), "0xffff0000", vr(src))
                    Vv("v_add_f32", vr(CA + 2 * j), vr(CA + 2 * j), vr(U0))
                    Vv("v_add_f32", vr(CA + 2 * j + 1), vr(CA + 2 * j + 1), vr(U1))
        for i in range(4):
            Vv("v_permlane32_swap_b32", vr(CA + 2 * i), vr(CA + 2 * i + 1))
        for i in range(4):
            Vv("v_add_f32", vr(CA + 2 * i), vr(CA + 2 * i), vr(CA + 2 * i + 1))
        for i in range(2):
            Vv("v_permlane16_swap_b32", vr(CA + 4 * i), vr(CA + 4 * i + 2))
        for i in range(2):
            Vv("v_add_f32", vr(CA + 4 * i), vr(CA + 4 * i), vr(CA + 4 * i + 2))
        Vv("v_and_b32", vr(U0), 15, vr(V_L))
        Vv("v_lshlrev_b32", vr(U0), 5, vr(U0))
        Vv("v_bfe_u32", vr(U1), vr(V_L), 4, 1)
        Vv("v_lshl_add_u32", vr(U0), vr(U1), 3, vr(U0))
        Vv("v_lshrrev_b32", vr(U1), 5, vr(V_L))
        Vv("v_lshl_add_u32", vr(U0), vr(U1), 2, vr(U0))
        A(lambda: (b.salu("s_lshl_b32", sr(S_U0), sr(S_R), 9), b.salu("s_add_u32", sr(S_U0), sr(S_U0), CP_OFF)))
        Vv("v_add_u32", vr(U0), sr(S_U0), vr(U0))
        A(lambda: (b.ds_write("ds_write_b32", vr(U0), vr(CA), 0), b.ds_write("ds_write_b32", vr(U0), vr(CA + 4), 16)))

        def nonce():
            lok, lp, lsk = b.newlabel("nok"), b.newlabel("nlp"), b.newlabel("nsk")
            b.salu("s_cmp_lg_u32", sr(S_R), 0)
            b.branch("s_cbranch_scc1", lsk)
            b.opt_begin()
            b.label(lp)
            b.valu("v_cmp_eq_u32", "vcc", 0, vr(V_NON + 1))
            b.branch("s_cbranch_vccz", lok)
            b.opt_begin()
            guard(b, lok)
            b.raw("  s_sleep 4")
            b.vmem_load("buffer_load_dwordx2", vr(V_NON, 2), vr(V_Z), sr(S_DBG, 4), "0", mods="sc1")
            b.wait(vm=0)
            b.branch("s_branch", lp)
            b.opt_end()
            b.label(lok)
            b.valu("v_mov_b32", vr(U0), NC_OFF)
            b.ds_write("ds_write_b64", vr(U0), vr(V_NON, 2), 0)
            b.opt_end()
            b.label(lsk)
        A(nonce)
        return ops

    def publish():
        b.valu("v_mov_b32", vr(U0), NC_OFF)
        b.ds_read("ds_read_b64", vr(V_NON, 2), vr(U0), 0, tag="non")
        b.salu("s_lshl_b32", sr(S_U0), sr(S_RB), 11)
        b.salu("s_lshl_b32", sr(S_U1), sr(S_CC), 7)
        b.salu("s_add_u32", sr(S_U0), sr(S_U0), sr(S_U1))
        b.salu("s_lshl_b32", sr(S_U1), sr(S_R), 5)
        b.salu("s_add_u32", sr(S_U0), sr(S_U0), sr(S_U1))
        b.salu("s_add_u32", sr(S_U0), sr(S_U0), RSG)
        b.valu("v_lshrrev_b32", vr(U1), 1, vr(V_L))
        b.wait(lg="non")
        b.salu("s_mov_b32", "exec_lo", 1)
        b.salu("s_mov_b32", "exec_hi", 1)
        b.vmem_store("buffer_store_dwordx4", vr(SU, 4), vr(U1), sr(S_WS, 4), sr(S_U0), mods="sc1")
        b.salu("s_mov_b64", "exec", -1)
        l1 = b.newlabel("cf")
        b.salu("s_cmp_lg_u32", sr(S_R), 3)
        b.branch("s_cbranch_scc1", l1)
        b.opt_begin()
        b.salu("s_cmp_ge_u32", sr(S_RB), 12)
        b.branch("s_cbranch_scc1", l1)
        b.valu("v_lshlrev_b32", vr(U1), 3, vr(V_L))
        b.valu("v_add_u32", vr(U1), CP_OFF, vr(U1))
        for w in range(4):
            b.ds_read("ds_read_b64", vr(CD + 2 * w, 2), vr(U1), w * 512)
        b.valu("v_lshrrev_b32", vr(U1), 3, vr(V_L))
        b.valu("v_lshlrev_b32", vr(U1), 3, vr(U1))
        b.salu("s_cmp_lt_u32", sr(S_RB), 4)
        b.salu("s_cselect_b32", sr(S_U0), 0, -1)
        b.valu("v_and_b32", vr(U1), sr(S_U0), vr(U1))
        b.valu("v_add_u32", vr(U0), vr(V_L), vr(U1))
        b.valu("v_lshlrev_b32", vr(U0), 4, vr(U0))
        b.wait(lg=0)
        for e in range(2):
            b.valu("v_add_f32", vr(SU + e), vr(CD + e), vr(CD + 2 + e))
            b.valu("v_add_f32", vr(CD + 4 + e), vr(CD + 4 + e), vr(CD + 6 + e))
            b.valu("v_add_f32", vr(SU + e), vr(SU + e), vr(CD + 4 + e))
        b.salu("s_mov_b32", "exec_hi", "0xffff")
        b.vmem_store("buffer_store_dwordx4", vr(SU, 4), vr(U0), sr(S_WS, 4), sr(S_CSO), mods="sc1")
        b.salu("s_mov_b32", "exec_hi", -1)
        b.opt_end()
        b.label(l1)
        b.salu("s_lshl_b32", sr(S_U0), sr(S_R), 6)
        b.valu("v_add_u32", vr(U0), sr(S_U0), vr(V_L))
        b.valu("v_mov_b32", vr(U1), 144)
        b.valu("v_cmp_lt_u32", sr(S_CARE, 2), vr(U0), vr(U1))
        b.salu("s_lshl_b32", sr(S_U0), sr(S_CC), 14)
        b.salu("s_add_u32", sr(S_U0), sr(S_U0), CSG)
        b.valu("v_lshl_add_u32", vr(U0), vr(U0), 4, sr(S_U0))
        b.valu("v_mov_b32", vr(U1), "0x40000000")
        b.valu("v_cndmask_b32", vr(G0), vr(U1), vr(U0), sr(S_CARE, 2))
        for i in range(1, 4):
            b.valu("v_add_u32", vr(G0 + i), 4096 * i, vr(G0))
        b.salu("s_lshl_b32", sr(S_U0), sr(S_RB), 11)
        b.salu("s_lshl_b32", sr(S_U1), sr(S_R), 9)
        b.salu("s_add_u32", sr(S_U0), sr(S_U0), sr(S_U1))
        b.salu("s_add_u32", sr(S_U0), sr(S_U0), RSG)
        b.valu("v_and_b32", vr(U0), 31, vr(V_L))
        b.valu("v_lshl_add_u32", vr(G0 + 4), vr(U0), 4, sr(S_U0))

    def gather_issue(tag="ga"):
        for i in range(5):
            b.vmem_load("buffer_load_dwordx4", vr(GA + 4 * i, 4), vr(G0 + i), sr(S_WS, 4), "0", mods="sc1", tag=tag)

    def gather_write():
        lok, lp = b.newlabel("gok"), b.newlabel("gl")
        b.wait(vm="ga")
        b.label(lp)
        b.valu("v_cmp_ne_u64", sr(S_U0, 2), vr(GA + 2, 2), vr(V_NON, 2))
        for i in range(1, 4):
            b.valu("v_cmp_ne_u64", "vcc", vr(GA + 4 * i + 2, 2), vr(V_NON, 2))
            b.salu("s_or_b64", sr(S_U0, 2), sr(S_U0, 2), "vcc")
        b.salu("s_and_b64", sr(S_U0, 2), sr(S_U0, 2), sr(S_CARE, 2))
        b.valu("v_cmp_ne_u64", "vcc", vr(GA + 18, 2), vr(V_NON, 2))
        b.salu("s_or_b64", sr(S_U0, 2), sr(S_U0, 2), "vcc")
        b.branch("s_cbranch_scc0", lok)
        b.opt_begin()
        guard(b, lok)
        b.raw("  s_sleep 4")
        gather_issue(None)
        b.wait(vm=0)
        b.branch("s_branch", lp)
        b.opt_end()
        b.label(lok)
        for e in range(2):
            b.valu("v_add_f32", vr(GA + e), vr(GA + e), vr(GA + 4 + e))
            b.valu("v_add_f32", vr(GA + 8 + e), vr(GA + 8 + e), vr(GA + 12 + e))
            b.valu("v_add_f32", vr(GA + e), vr(GA + e), vr(GA + 8 + e))
        b.valu("v_mov_b32", vr(V_NM), vr(GA + 16))
        b.valu("v_mov_b32", vr(V_RS), vr(GA + 17))
        b.salu("s_min_u32", sr(S_U0), sr(S_R), 2)
        b.salu("s_lshl_b32", sr(S_U0), sr(S_U0), 9)
        b.salu("s_add_u32", sr(S_U0), sr(S_U0), CS_OFF)
        b.valu("v_lshl_add_u32", vr(U0), vr(V_L), 3, sr(S_U0))
        b.salu("s_mov_b64", "exec", sr(S_CARE, 2))
        b.ds_write("ds_write_b64", vr(U0), vr(GA, 2), 0)
        b.salu("s_mov_b64", "exec", -1)
        b.salu("s_lshl_b32", sr(S_U0), sr(S_R), 8)
        b.salu("s_add_u32", sr(S_U0), sr(S_U0), ST_OFF)
        b.valu("v_and_b32", vr(U0), 31, vr(V_L))
        b.valu("v_lshl_add_u32", vr(U0), vr(U0), 3, sr(S_U0))
        b.ds_write("ds_write_b64", vr(U0), vr(V_NM, 2), 0)

    LA = 6
    NFA = 96

    def read_a(f):
        ks, blk = divmod(f, 3)
        t, s = divmod(ks, 4)
        if blk == 0:
            b.ds_read("ds_read_b128", vr(V_XF + 4 * (ks % 3), 4), vr(V_XB + s), (t % 3) * PA, tag=f"x{ks}")
        r0 = V_RING + 4 * (f % 9)
        for q in range(2):
            off = (t % 3) * PA + s * 3072 + q * 768 + blk * 64
            if off >= 65536:
                a_, off = V_TRA2, off - 2 * PA
            else:
                a_ = V_TRA
            b.ds_read("ds_read_b64_tr_b16", vr(r0 + 2 * q, 2), vr(a_), off, tag=f"w{f}")
    V_TRA2 = V_RSS
    b.valu("v_add_u32", vr(V_TRA2), 2 * PA, vr(V_TRA))
    FPC, FPE = optval("fpc", 9), optval("fpe", 41)
    pops = prod_ops()
    nper = -(-len(pops) // (FPE - FPC))
    hooks = {}
    for f in range(FPC, FPE):
        hooks[f] = (lambda ops=pops[(f - FPC) * nper:(f - FPC + 1) * nper]: [o() for o in ops])
    hooks[optval("fpl", 2)] = prod_loads
    hooks[optval("fpu", 44)] = publish
    if 'mlg' in OPT:
        hooks[optval("fgi", 72)] = lambda: (w2_touch_mall(b, S_C, U0, 242), gather_issue())
    elif 'mlp' in OPT:
        hooks[optval("fpl", 2)] = lambda: (prod_loads(), w2_touch_mall(b, S_WA, U0, 242))
        hooks[optval("fgi", 72)] = gather_issue
    else:
        hooks[optval("fml", 66)] = lambda: w2_touch_mall(b, S_C, U0, 242)
        hooks[optval("fgi", 72)] = gather_issue
    hooks[optval("fgw", 88)] = gather_write
    ubq = [(t, n) for t in range(12, 14) for n in range(6)]

    def ub_issue(k):
        for _ in range(k):
            if ubq:
                t, n = ubq.pop(0)
                ub_step(b, V_UB, t, n)
    b.wait(lg=0)
    b.barrier()
    stamp(b, 1)
    for f in range(LA):
        read_a(f)
    for f in range(NFA):
        nf = f + LA
        if nf % 12 == 0:
            b.wait(lg=0)
            b.barrier()
            if nf // 12 in (2, 4, 8):
                stamp(b, {2: 2, 4: 3, 8: 4}[nf // 12])
            if nf == NFA:
                b.raw(f"  s_setprio {optval('pre', 3)}")
        if nf < NFA:
            read_a(nf)
        ks, blk = divmod(f, 3)
        b.wait(lg=[f"w{f}", f"x{ks}"])
        acc = V_ACC + 16 * blk
        b.mfma(vr(acc, 16), vr(V_RING + 4 * (f % 9), 4), vr(V_XF + 4 * (ks % 3), 4), "0" if ks == 0 else vr(acc, 16))
        if f in hooks:
            hooks[f]()

    def csrd(n):
        blk, hf = divmod(n, 2)
        T = TS[n % 2]
        b.ds_read("ds_read_b128", vr(T, 4), vr(V_CSRD), blk * 128 + hf * 64, tag=f"c{n}")
        b.ds_read("ds_read_b128", vr(T + 4, 4), vr(V_CSRD), blk * 128 + hf * 64 + 32, tag=f"c{n}")
    b.raw(f"  s_setprio {optval('pre', 3)}")
    csrd(0)
    b.salu("s_mul_i32", sr(S_T3), sr(S_CC), 3)
    b.salu("s_lshl_b32", sr(S_T0), sr(S_RB), 2)
    b.salu("s_add_u32", sr(S_T0), sr(S_T0), sr(S_R))
    b.salu("s_lshl_b32", sr(S_E), sr(S_T0), 10)
    for blk in range(3):
        acc = V_ACC + 16 * blk
        b.salu("s_add_u32", sr(S_T0), sr(S_T3), blk)
        b.salu("s_cmp_lt_u32", sr(S_T0), 16)
        b.salu("s_cselect_b32", sr(S_T1), hex(f32bits(QSCALE)), "1.0")
        b.valu("v_mul_f32", vr(V_T0), sr(S_T1), vr(V_RS))
        b.salu("s_lshl_b32", sr(S_U0), sr(S_T0), 17)
        b.salu("s_add_u32", sr(S_U0), sr(S_U0), sr(S_E))
        b.salu("s_add_u32", sr(S_U1), sr(S_U0), 65536)
        for hf in range(2):
            n = 2 * blk + hf
            T = TS[n % 2]
            if n + 1 < 6:
                csrd(n + 1)
            b.wait(lg=f"c{n}")
            for i in range(8):
                b.valu("v_fmac_f32", vr(acc + 8 * hf + i), vr(V_NM), vr(T + i))
            for i in range(8):
                b.valu("v_mul_f32", vr(acc + 8 * hf + i), vr(V_T0), vr(acc + 8 * hf + i))
            for i in range(4):
                b.valu("v_cvt_pk_bf16_f32", vr(acc + 8 * hf + i), vr(acc + 8 * hf + 2 * i), vr(acc + 8 * hf + 2 * i + 1))
        lv, lj = b.newlabel("ev"), b.newlabel("ej")
        b.salu("s_cmp_ge_u32", sr(S_T0), 32)
        b.branch("s_cbranch_scc1", lv)
        b.opt_begin()
        b.par = list(range(8))
        b.vmem_store("buffer_store_dwordx4", vr(acc, 4), vr(V_STO), sr(S_WS, 4), sr(S_U0), mods="sc1", tag="st")
        b.vmem_store("buffer_store_dwordx4", vr(acc + 8, 4), vr(V_STO), sr(S_WS, 4), sr(S_U1), mods="sc1", tag="st")
        b.par = None
        b.branch("s_branch", lj)
        b.opt_end()
        b.label(lv)
        b.opt_begin()
        b.par = []
        b.mfma(vr(V_D2, 16), vr(acc, 4), vr(V_ID, 4), "0")
        b.mfma(vr(V_D2, 16), vr(acc + 8, 4), vr(V_ID + 4, 4), vr(V_D2, 16))
        for i in range(8):
            b.valu("v_cvt_pk_bf16_f32", vr(acc + i), vr(V_D2 + 2 * i), vr(V_D2 + 2 * i + 1))
        b.vmem_store("buffer_store_dwordx4", vr(acc, 4), vr(V_STV), sr(S_WS, 4), sr(S_U0), mods="sc1", tag="st")
        b.vmem_store("buffer_store_dwordx4", vr(acc + 4, 4), vr(V_STV), sr(S_WS, 4), sr(S_U0), mods="offset:512 sc1", tag="st")
        b.par = None
        b.opt_end()
        b.label(lj)
    stamp(b, 5)
    b.salu("s_lshl_b32", sr(S_T3), sr(S_RB), 4)
    b.salu("s_add_u32", sr(S_T3), sr(S_T3), sr(S_CC))
    b.salu("s_lshl_b32", sr(S_T3), sr(S_T3), 7)
    b.salu("s_add_u32", sr(S_T3), sr(S_T3), F0)
    b.wait(vm=0)
    arrive(b, CNT, S_T3, V_T0)
    b.raw(f"  s_setprio {optval('pr0', 1)}")
    stamp(b, 6)
    attn(b, ub_issue, V_UB, V_SY)
    print("p0 instrs", b.ninstr)
    return b.text()


def attn(b, ub_issue, V_UB, V_SY):
    V_QO, V_VO, V_T0, V_T1, V_M0, V_M1, V_BIG = 1, 2, 3, 4, 5, 6, 7
    V_NEG = 10
    V_MSK = 12
    V_Q = 20
    V_K = 28
    V_V = 68
    V_B0, V_B1, V_CN, V_O, V_SM = 148, 164, 180, 196, 212
    V_C = 228
    S_KO, S_VO, S_EXV = 24, 28, 44
    S_RQ, S_HD, S_SO, S_NF, S_QB = 46, 47, 60, 61, 96
    ub_issue(6)
    b.salu("s_and_b32", sr(S_T0), "s2", 7)
    b.salu("s_lshl_b32", sr(S_HD), sr(S_T0), 2)
    b.salu("s_add_u32", sr(S_HD), sr(S_HD), sr(S_R))
    b.salu("s_lshr_b32", sr(S_RQ), "s2", 3)
    b.valu("v_and_b32", vr(V_T0), 3, vr(V_L))
    b.valu("v_min_u32", vr(V_T0), 2, vr(V_T0))
    b.valu("v_bfe_u32", vr(V_T1), vr(V_L), 2, 1)
    b.valu("v_lshl_add_u32", vr(V_T0), vr(V_T0), 4, vr(V_T1))
    b.salu("s_lshl_b32", sr(S_T0), sr(S_T0), 1)
    b.valu("v_add_u32", vr(V_T0), sr(S_T0), vr(V_T0))
    b.valu("v_mul_u32_u24", vr(V_T0), 21846, vr(V_T0))
    b.valu("v_lshrrev_b32", vr(V_T0), 16, vr(V_T0))
    b.valu("v_bfe_u32", vr(V_T1), vr(V_L), 3, 2)
    b.valu("v_min_u32", vr(V_T1), 2, vr(V_T1))
    b.salu("s_lshr_b32", sr(S_T1), sr(S_RQ), 1)
    b.valu("v_sub_u32", vr(V_T1), sr(S_T1), vr(V_T1))
    b.valu("v_max_i32", vr(V_T1), 0, vr(V_T1))
    b.valu("v_lshl_add_u32", vr(V_T0), vr(V_T1), 4, vr(V_T0))
    b.valu("v_lshlrev_b32", vr(V_T0), 7, vr(V_T0))
    b.valu("v_add_u32", vr(V_B0), F0, vr(V_T0))
    b.salu("s_lshl_b32", sr(S_QB), sr(S_HD), 16)
    b.salu("s_lshl_b32", sr(S_T1), sr(S_RQ), 11)
    b.salu("s_add_u32", sr(S_QB), sr(S_QB), sr(S_T1))
    b.valu("v_lshlrev_b32", vr(V_QO), 4, vr(V_L))
    for grp in range(3):
        b.salu("s_add_u32", sr(S_KO + grp), sr(S_QB), KF - 8192 + 4096 * grp)
        b.salu("s_add_u32", sr(S_VO + grp), sr(S_QB), VF - 8192 + 4096 * grp)
    b.salu("s_cmp_lt_u32", sr(S_RQ), 4)
    b.salu("s_cselect_b32", sr(S_VO + 3), sr(S_VO + 2), sr(S_VO))
    b.valu("v_and_b32", vr(V_T0), 15, vr(V_L))
    b.valu("v_lshlrev_b32", vr(V_T0), 4, vr(V_T0))
    b.valu("v_lshrrev_b32", vr(V_T1), 5, vr(V_L))
    b.valu("v_lshl_add_u32", vr(V_VO), vr(V_T1), 8, vr(V_T0))
    b.salu("s_mov_b32", sr(S_EXV), "0xffff")
    b.salu("s_mov_b32", sr(S_EXV + 1), "0xffff")
    ub_issue(6)
    b.valu("v_and_b32", vr(V_T0), 31, vr(V_L))
    b.valu("v_lshlrev_b32", vr(V_T1), 2, vr(V_T1))
    b.valu("v_sub_u32", vr(V_T0), vr(V_T0), vr(V_T1))
    for r in range(16):
        b.valu("v_cmp_le_i32", sr(S_MASK + 2 * r, 2), (r & 3) + 8 * (r >> 2), vr(V_T0))
    b.valu("v_mov_b32", vr(V_BIG), hex(f32bits(-1e30)))
    b.valu("v_mov_b32", vr(V_T0), "0xffff")
    b.valu("v_mov_b32", vr(V_T1), "0xffff0000")
    for i in range(8):
        b.valu("v_cndmask_b32", vr(V_MSK + i), 0, vr(V_T0), sr(S_MASK + 4 * i, 2))
        b.valu("v_cndmask_b32", vr(V_M0), 0, vr(V_T1), sr(S_MASK + 4 * i + 2, 2))
        b.valu("v_or_b32", vr(V_MSK + i), vr(V_MSK + i), vr(V_M0))
    b.wait(vm="U12")
    lds_signal(b, LAND, 12, V_T0)
    b.valu("v_mov_b32", vr(V_NEG), "0x3f803f80")
    b.valu("v_mov_b32", vr(V_NEG + 1), "0x3f803f80")
    for i in range(40):
        if 'pk' in OPT:
            b.valu("v_mov_b64", vr(V_V + 2 * i, 2), vr(V_NEG, 2))
        else:
            b.valu("v_mov_b32", vr(V_V + 2 * i), vr(V_NEG))
            b.valu("v_mov_b32", vr(V_V + 2 * i + 1), vr(V_NEG))
    b.salu("s_lshl_b32", sr(S_T1), sr(S_RQ), 16)
    b.salu("s_lshl_b32", sr(S_SO), sr(S_HD), 11)
    b.salu("s_add_u32", sr(S_SO), sr(S_SO), sr(S_T1))
    b.salu("s_add_u32", sr(S_SO), sr(S_SO), OF)
    for t in (14, 15):
        lds_check_issue(b, CONS, V_SY, V_C, f"k{t}")
        lds_check(b, CONS, t - 6, V_SY, V_C, f"k{t}")
        for n in range(6):
            ub_step(b, V_UB, t, n)
        b.wait(vm=f"U{t-1}")
        lds_signal(b, LAND, t - 1, V_T0)
    b.vmem_load("buffer_load_dwordx2", vr(V_B0 + 2, 2), vr(V_B0), sr(S_WS, 4), "0", mods="sc1", tag="fl")
    if 'nol2pf0' not in OPT:
        w2_touch_l2(b, S_DBG, 232, 233)
    b.wait(vm="U15")
    lds_signal(b, LAND, 15, V_T0)
    poll(b, V_B0 + 2, V_B0, first_issued=True)
    stamp(b, 7)

    def load_k(n):
        off = (n % 4) * 1024
        b.vmem_load("buffer_load_dwordx4", vr(V_K + 4 * n, 4), vr(V_QO), sr(S_WS, 4), sr(S_KO + n // 4),
                    mods=(f"offset:{off} " if off else "") + "sc1", tag=f"k{n}")

    def load_v(ns):
        b.salu("s_mov_b64", "exec", sr(S_EXV, 2))
        for n in ns:
            for mf in range(2):
                off = (n % 4) * 1024 + mf * 512
                b.vmem_load("buffer_load_dwordx4", vr(V_V + 8 * n + 4 * mf, 4), vr(V_VO), sr(S_WS, 4), sr(S_VO + (3 if n < 2 else n // 4)),
                            mods=(f"offset:{off} " if off else "") + "sc1", tag=f"v{n}")
        b.salu("s_mov_b64", "exec", -1)
    b.vmem_load("buffer_load_dwordx4", vr(V_Q, 4), vr(V_QO), sr(S_WS, 4), sr(S_QB), mods="sc1", tag="q0")
    for n in [0, 8, 7, 6, 5, 4, 3, 2, 1]:
        load_k(n)
    load_v([8, 0, 7, 6, 5, 4, 3, 2, 1, 9])
    b.vmem_load("buffer_load_dwordx4", vr(V_Q + 4, 4), vr(V_QO), sr(S_WS, 4), sr(S_QB), mods="offset:1024 sc1", tag="q1")
    load_k(9)
    if 'l2pf' in OPT:
        w2_touch_l2(b, S_DBG, 232, 233)
    stamp(b, 8)
    stubs = []
    for task in range(2):
        q = vr(V_Q + 4 * task, 4)
        Kf = lambda j: vr(V_K + 4 * (8 + task - j), 4)
        Vf = lambda j, mf: vr(V_V + 8 * (8 + task - j) + 4 * mf, 4)
        ktag = lambda j: f"k{8 + task - j}"
        vtag = lambda j: f"v{8 + task - j}"
        b.salu("s_lshl_b32", sr(S_T1), sr(S_RQ), 1)
        b.salu("s_add_u32", sr(S_T1), sr(S_T1), task)
        b.salu("s_min_u32", sr(S_NF), sr(S_T1), 7)
        L1, L2 = b.newlabel("p1"), b.newlabel("p2")
        bufs = [V_CN, V_O, V_B0, V_B1]
        if task == 1:
            b.wait(vm="k9")
        b.wait(vm=[f"q{task}", ktag(8)])
        b.mfma(vr(V_B0, 16), Kf(8), q, "0")
        b.wait(vm=ktag(0))
        b.mfma(vr(V_B1, 16), Kf(0), q, "0")
        for j in (1, 2):
            b.wait(vm=ktag(j))
            b.mfma(vr(bufs[(j - 1) % 4], 16), Kf(j), q, "0")
        lm1, lm2 = b.newlabel("m1"), b.newlabel("m2")
        b.nop(8)
        b.salu("s_cmp_lt_u32", sr(S_T1), 8)
        b.branch("s_cbranch_scc1", lm1)
        for r in range(16):
            b.valu("v_cndmask_b32", vr(V_SM + r), vr(V_B0 + r), vr(V_B1 + r), sr(S_MASK + 2 * r, 2))
        b.label(lm2)
        st = [f"{lm1}:", "  s_nop 7"]
        for r in range(16):
            st.append(f"  v_cndmask_b32 {vr(V_SM + r)}, {vr(V_BIG)}, {vr(V_B1 + r)}, {sr(S_MASK + 2 * r, 2)}")
        st.append(f"  s_branch {lm2}")
        stubs.append("\n".join(st))

        def maxtree(buf, first):
            for i in range(8):
                m = V_M0 + (i % 2)
                if first and i < 2:
                    b.valu("v_max_f32", vr(m), vr(buf + 2 * i), vr(buf + 2 * i + 1))
                else:
                    b.valu("v_max3_f32", vr(m), vr(buf + 2 * i), vr(buf + 2 * i + 1), vr(m))
        maxtree(V_SM, True)
        for j in range(1, 8):
            b.salu("s_cmp_lt_u32", sr(S_NF), j)
            b.branch("s_cbranch_scc1", L1)
            if j + 2 <= 7:
                b.wait(vm=ktag(j + 2))
                b.mfma(vr(bufs[(j + 1) % 4], 16), Kf(j + 2), q, "0")
            maxtree(bufs[(j - 1) % 4], False)
        b.label(L1)
        b.valu("v_max_f32", vr(V_M0), vr(V_M0), vr(V_M1))
        b.valu("v_mov_b32", vr(V_M1), vr(V_M0))
        b.valu("v_permlane32_swap_b32", vr(V_M1), vr(V_M0))
        b.valu("v_max_f32", vr(V_M0), vr(V_M0), vr(V_M1))
        b.valu("v_sub_f32", vr(V_NEG), 0, vr(V_M0))
        b.valu("v_sub_f32", vr(V_NEG + 1), 0, vr(V_M0))
        b.nop(2)
        for i in range(8):
            if 'pk' in OPT:
                b.valu("v_mov_b64", vr(V_CN + 2 * i, 2), vr(V_NEG, 2))
            else:
                b.valu("v_mov_b32", vr(V_CN + 2 * i), vr(V_NEG))
                b.valu("v_mov_b32", vr(V_CN + 2 * i + 1), vr(V_NEG))
        bufs2 = [V_B0, V_B1, V_SM]
        b.mfma(vr(V_B0, 16), Kf(1), q, vr(V_CN, 16))
        for r in range(8):
            if 'pk' in OPT:
                b.valu("v_pk_add_f32", vr(V_SM + 2 * r, 2), vr(V_SM + 2 * r, 2), vr(V_NEG, 2))
            else:
                b.valu("v_add_f32", vr(V_SM + 2 * r), vr(V_NEG), vr(V_SM + 2 * r))
                b.valu("v_add_f32", vr(V_SM + 2 * r + 1), vr(V_NEG), vr(V_SM + 2 * r + 1))
        b.mfma(vr(V_B1, 16), Kf(2), q, vr(V_CN, 16))

        def expcvt(buf, inserts):
            for r in range(16):
                if r in inserts:
                    inserts[r]()
                b.valu("v_exp_f32", vr(buf + r), vr(buf + r))
                if r % 2 == 1 and r >= 3:
                    i = (r - 3) // 2
                    b.valu("v_cvt_pk_bf16_f32", vr(buf + i), vr(buf + 2 * i), vr(buf + 2 * i + 1))
            b.valu("v_cvt_pk_bf16_f32", vr(buf + 7), vr(buf + 14), vr(buf + 15))
        expcvt(V_SM, {})
        for i in range(8):
            b.valu("v_and_b32", vr(V_SM + 8 + i), vr(V_MSK + i), vr(V_SM + i))
        for i in range(8):
            b.valu("v_xor_b32", vr(V_SM + i), vr(V_SM + i), vr(V_SM + 8 + i))
        b.wait(vm=[vtag(0), vtag(8), "k1"])
        b.mfma(vr(V_O, 16), Vf(0, 0), vr(V_SM + 8, 4), "0")
        pend = [(Vf(0, 1), vr(V_SM + 12, 4)), (Vf(8, 0), vr(V_SM, 4)), (Vf(8, 1), vr(V_SM + 4, 4))]
        for j in range(1, 9):
            if j <= 7:
                lx = b.newlabel("x")
                b.salu("s_cmp_lt_u32", sr(S_NF), j)
                b.branch("s_cbranch_scc1", lx)
                st = [f"{lx}:", "  s_waitcnt vmcnt(0)", "  s_nop 1"]
                for (a_, p_) in pend:
                    st.append(f"  v_mfma_f32_32x32x16_bf16 {vr(V_O, 16)}, {a_}, {p_}, {vr(V_O, 16)}")
                st.append(f"  s_branch {L2}")
                stubs.append("\n".join(st))
                buf = bufs2[(j - 1) % 3]
                ins = {}
                pos = [0, 4, 8, 12] if len(pend) == 3 else [0, 5, 10]
                if j > 1:
                    b.wait(vm=vtag(j - 1))
                for n_, (a_, p_) in enumerate(pend):
                    ins[pos[n_]] = (lambda a_=a_, p_=p_: b.mfma(vr(V_O, 16), a_, p_, vr(V_O, 16)))
                if j + 2 <= 7:
                    ins[pos[len(pend)]] = (lambda j=j: b.mfma(vr(bufs2[(j + 1) % 3], 16), Kf(j + 2), q, vr(V_CN, 16)))
                expcvt(buf, ins)
                pend = [(Vf(j, 0), vr(buf, 4)), (Vf(j, 1), vr(buf + 4, 4))]
            else:
                b.wait(vm=vtag(7))
                for (a_, p_) in pend:
                    b.mfma(vr(V_O, 16), a_, p_, vr(V_O, 16))
        b.label(L2)
        b.valu("v_rcp_f32", vr(V_NEG), vr(V_O + 8))
        b.valu("v_mov_b32", vr(V_NEG + 1), vr(V_NEG))
        for i in range(4):
            if 'pk' in OPT:
                b.valu("v_pk_mul_f32", vr(V_O + 2 * i, 2), vr(V_O + 2 * i, 2), vr(V_NEG, 2))
            else:
                b.valu("v_mul_f32", vr(V_O + 2 * i), vr(V_NEG), vr(V_O + 2 * i))
                b.valu("v_mul_f32", vr(V_O + 2 * i + 1), vr(V_NEG), vr(V_O + 2 * i + 1))
        for i in range(4):
            b.valu("v_cvt_pk_bf16_f32", vr(V_SM + i), vr(V_O + 2 * i), vr(V_O + 2 * i + 1))
        b.vmem_store("buffer_store_dwordx4", vr(V_SM, 4), vr(V_QO), sr(S_WS, 4), sr(S_SO),
                     mods=(f"offset:{1024*task} " if task else "") + "sc1", tag="ost")
        stamp(b, 9 + task)
    S_O, S_XO, S_OUT = 64, 68, 72
    S_RB2, S_CB, S_F = 76, 77, 78
    V_FO, V_OO, V_XOFF, V_TW0, V_TW1, V_EW, V_ER, V_RA, V_RA2 = 12, 13, 14, 15, 16, 17, 18, 19, 8
    V_XR = 20
    V_A = 28
    V_W2 = 92
    V_AC = 124
    V_R = 156
    X = 236
    b.salu("s_lshl_b32", sr(S_F), "s2", 7)
    b.salu("s_add_u32", sr(S_F), sr(S_F), F2)
    b.salu("s_and_b32", sr(S_T0), "s2", 7)
    b.salu("s_lshl_b32", sr(S_T0), sr(S_T0), 2)
    b.salu("s_bfe_u32", sr(S_T1), "s2", (2 << 16) | 3)
    b.salu("s_add_u32", sr(S_RB2), sr(S_T0), sr(S_T1))
    b.salu("s_lshr_b32", sr(S_CB), "s2", 5)
    b.salu("s_lshl_b32", sr(S_T0), sr(S_RB2), 16)
    b.salu("s_add_u32", sr(S_T1), sr(S_T0), OF)
    srd(b, S_O, "s22", "s23", 65536, add=sr(S_T1))
    if 'fakeo' in OPT:
        srd(b, S_O, "s8", "s9", 65536)
    srd(b, S_XO, "s4", "s5", 65536, add=sr(S_T0))
    srd(b, S_OUT, "s18", "s19", 65536, add=sr(S_T0))
    b.valu("v_lshrrev_b32", vr(V_T0), 5, vr(V_L))
    b.valu("v_lshlrev_b32", vr(V_T0), 2, vr(V_T0))
    b.valu("v_bfe_u32", vr(V_T1), vr(V_L), 2, 2)
    b.valu("v_add_u32", vr(V_T0), vr(V_T0), vr(V_T1))
    b.valu("v_and_b32", vr(V_M0), 3, vr(V_L))
    b.valu("v_lshlrev_b32", vr(V_M0), 3, vr(V_M0))
    b.valu("v_lshl_add_u32", vr(V_T0), vr(V_T0), 7, vr(V_M0))
    b.valu("v_lshrrev_b32", vr(V_T1), 1, vr(V_T1))
    b.valu("v_bfe_u32", vr(V_M0), vr(V_L), 4, 1)
    b.valu("v_lshl_add_u32", vr(V_T1), vr(V_T1), 1, vr(V_M0))
    b.valu("v_lshl_add_u32", vr(V_T0), vr(V_T1), 5, vr(V_T0))
    b.salu("s_and_b32", sr(S_T0), sr(S_R), 1)
    b.salu("s_lshl_b32", sr(S_T0), sr(S_T0), 6)
    b.valu("v_xor_b32", vr(V_T0), sr(S_T0), vr(V_T0))
    b.salu("s_lshl_b32", sr(S_T1), sr(S_T0), 9)
    b.salu("s_add_u32", sr(S_T1), sr(S_T1), WO_OFF)
    b.valu("v_add_u32", vr(V_TW0), sr(S_T1), vr(V_T0))
    b.valu("v_xor_b32", vr(V_TW1), 64, vr(V_TW0))
    b.salu("s_lshl_b32", sr(S_T1), sr(S_T0), 3)
    b.salu("s_lshl_b32", sr(S_T0), sr(S_RB2), 10)
    b.salu("s_add_u32", sr(S_T0), sr(S_T0), sr(S_T1))
    b.salu("s_add_u32", sr(S_T0), sr(S_T0), F2)
    b.valu("v_and_b32", vr(V_T0), 3, vr(V_L))
    b.valu("v_lshlrev_b32", vr(V_T0), 7, vr(V_T0))
    b.valu("v_add_u32", vr(V_FO), sr(S_T0), vr(V_T0))
    b.salu("s_lshl_b32", sr(S_T0), sr(S_R), 12)
    b.valu("v_add_u32", vr(V_RA), sr(S_T0), vr(V_QO))
    b.valu("v_add_u32", vr(V_RA2), 2 * RING, vr(V_RA))
    b.valu("v_add_u32", vr(V_EW), EX_OFF, vr(V_RA))
    b.valu("v_xor_b32", vr(V_ER), 4096, vr(V_RA))
    b.valu("v_add_u32", vr(V_ER), EX_OFF, vr(V_ER))
    b.salu("s_lshr_b32", sr(S_T0), sr(S_R), 1)
    b.salu("s_and_b32", sr(S_T1), sr(S_R), 1)
    b.salu("s_lshl_b32", sr(S_T1), sr(S_T1), 5)
    b.salu("s_add_u32", sr(S_T1), sr(S_T1), sr(S_T0))
    b.salu("s_lshl_b32", sr(S_T1), sr(S_T1), 10)
    b.valu("v_add_u32", vr(V_OO), sr(S_T1), vr(V_QO))
    b.salu("s_lshl_b32", sr(S_T0), sr(S_T0), 15)
    b.salu("s_lshl_b32", sr(S_T1), sr(S_CB), 7)
    b.salu("s_add_u32", sr(S_T0), sr(S_T0), sr(S_T1))
    b.salu("s_and_b32", sr(S_T1), sr(S_R), 1)
    b.salu("s_lshl_b32", sr(S_T1), sr(S_T1), 6)
    b.salu("s_add_u32", sr(S_T0), sr(S_T0), sr(S_T1))
    b.valu("v_and_b32", vr(V_T0), 31, vr(V_L))
    b.valu("v_lshlrev_b32", vr(V_T0), 10, vr(V_T0))
    b.valu("v_lshrrev_b32", vr(V_T1), 5, vr(V_L))
    b.valu("v_lshl_add_u32", vr(V_T0), vr(V_T1), 4, vr(V_T0))
    b.valu("v_add_u32", vr(V_XOFF), sr(S_T0), vr(V_T0))
    b.wait(vm=0)
    arrive(b, CNT + 8, S_F, V_T0)
    b.raw("  s_setprio 0")
    stamp(b, 11)
    b.vmem_load("buffer_load_dwordx4", vr(V_XR, 4), vr(V_XOFF), sr(S_XO, 4), "0", tag="xr")
    b.vmem_load("buffer_load_dwordx4", vr(V_XR + 4, 4), vr(V_XOFF), sr(S_XO, 4), "0", mods="offset:32", tag="xr")
    lds_check_issue(b, WOL, V_SY, V_R + 4, "wl")
    b.wait(vm="xr")
    for e in range(2):
        for i in range(4):
            b.valu("v_lshlrev_b32", vr(V_AC + 8 * e + 2 * i), 16, vr(V_XR + 4 * e + i))
            b.valu("v_and_b32", vr(V_AC + 8 * e + 2 * i + 1), "0xffff0000", vr(V_XR + 4 * e + i))
    for e in range(2):
        for i in range(4):
            b.valu("v_permlane32_swap_b32", vr(V_AC + 8 * e + i), vr(V_AC + 8 * e + 4 + i))
    if 'ot' in OPT:
        b.valu("v_and_b32", vr(V_T0), 15, vr(V_L))
        b.valu("v_lshrrev_b32", vr(V_T1), 3, vr(V_T0))
        b.valu("v_and_b32", vr(V_T0), 7, vr(V_T0))
        b.valu("v_lshlrev_b32", vr(V_T0), 7, vr(V_T0))
        b.valu("v_lshl_add_u32", vr(V_T0), vr(V_T1), 11, vr(V_T0))
        b.valu("v_readfirstlane_b32", sr(S_T0), vr(V_OO))
        b.salu("s_lshl_b32", sr(S_T1), sr(S_CB), 12)
        b.salu("s_add_u32", sr(S_T0), sr(S_T0), sr(S_T1))
    lds_check(b, WOL, 1, V_SY, V_R + 4, "wl", slp=4)
    poll(b, V_R, V_FO)
    stamp(b, 12)
    if 'ot' in OPT:
        b.vmem_load("buffer_load_dword", vr(V_T1), vr(V_T0), sr(S_O, 4), sr(S_T0), mods="sc1", tag="ot")
    for s in range(16):
        if s % 2 == 0 and s:
            b.salu("s_mov_b32", sr(S_SO), (s // 2) * 4096)
        b.vmem_load("buffer_load_dwordx4", vr(V_A + 4 * s, 4), vr(V_OO), sr(S_O, 4), sr(S_SO) if s >= 2 else "0",
                    mods=("offset:2048 " if s % 2 else "") + "sc1", tag=f"o{s}")

    def read_wo(s):
        for j in range(2):
            for q in range(2):
                b.ds_read("ds_read_b64_tr_b16", vr(V_W2 + 8 * (s % 4) + 4 * j + 2 * q, 2), vr(V_TW1 if j else V_TW0), s * 2048 + q * 1024, tag=f"u{s}")
    for s in range(3):
        read_wo(s)
    for s in range(16):
        if s + 3 < 16:
            read_wo(s + 3)
        b.wait(vm=f"o{s}", lg=f"u{s}")
        b.mfma(vr(V_AC + 16, 16), vr(V_W2 + 8 * (s % 4) + 4, 4), vr(V_A + 4 * s, 4), vr(V_AC + 16, 16) if s else "0")
        b.mfma(vr(V_AC, 16), vr(V_W2 + 8 * (s % 4), 4), vr(V_A + 4 * s, 4), vr(V_AC, 16))
    for g in range(4):
        b.ds_write("ds_write_b128", vr(V_EW), vr(V_AC + 16 + 4 * g, 4), g * 1024)
    b.wait(lg=0)
    stamp(b, 13)
    b.barrier()
    for g in range(4):
        for P in range(4):
            b.ds_read("ds_read_b128", vr(V_R + 20 * g + 4 * P, 4), vr(V_RA if P < 2 else V_RA2), (P % 2) * RING + g * 1024, tag=f"r{g}")
        b.ds_read("ds_read_b128", vr(V_R + 20 * g + 16, 4), vr(V_ER), g * 1024, tag=f"r{g}")
    for g in range(4):
        R = V_R + 20 * g
        b.wait(lg=f"r{g}")
        for i in range(4):
            b.valu("v_add_f32", vr(R + i), vr(R + i), vr(R + 4 + i))
            b.valu("v_add_f32", vr(R + 8 + i), vr(R + 8 + i), vr(R + 12 + i))
            b.valu("v_add_f32", vr(V_AC + 4 * g + i), vr(V_AC + 4 * g + i), vr(R + 16 + i))
        for i in range(4):
            b.valu("v_add_f32", vr(R + i), vr(R + i), vr(R + 8 + i))
        for i in range(4):
            b.valu("v_add_f32", vr(V_AC + 4 * g + i), vr(V_AC + 4 * g + i), vr(R + i))
        for i in range(2):
            b.valu("v_cvt_pk_bf16_f32", vr(X + 2 * g + i), vr(V_AC + 4 * g + 2 * i), vr(V_AC + 4 * g + 2 * i + 1))
        if g % 2 == 1:
            e = g // 2
            for i in range(2):
                b.valu("v_permlane32_swap_b32", vr(X + 4 * e + i), vr(X + 4 * e + 2 + i))
            b.vmem_store("buffer_store_dwordx4", vr(X + 4 * e, 4), vr(V_XOFF), sr(S_OUT, 4), "0",
                         mods=("offset:32 " if e else "") + ("sc1" if 'osc1' in OPT else ""))
    if STAMPS:
        b.raw("  s_waitcnt vmcnt(0)")
        stamp(b, 14)
        stamp_out(b)
    b.raw("  s_endpgm")
    for s_ in stubs:
        b.raw(s_)


NAME = "parallel_sum__sliding_block__glu_gated_reglu__prompt_kernel"
if __name__ == "__main__":
    hdr = open("parallel_sum__sliding_block__glu_gated_reglu__prompt.s.ref").read().split("; Override launch")[0]
    s = hdr + "; @launch grid=(256,1,1) block=(512,1,1) lds=163840\n"
    s += '.amdgcn_target "amdgcn-amd-amdhsa--gfx950"\n.text\n'
    s += kernel(NAME)
    s += f'''.section .rodata,"a"
.p2align 6
.amdhsa_kernel {NAME}
  .amdhsa_next_free_vgpr 256
  .amdhsa_next_free_sgpr 100
  .amdhsa_accum_offset 256
  .amdhsa_group_segment_fixed_size 0
  .amdhsa_kernarg_size 80
  .amdhsa_user_sgpr_count 2
  .amdhsa_user_sgpr_kernarg_segment_ptr 1
  .amdhsa_system_sgpr_workgroup_id_x 1
.end_amdhsa_kernel
'''
    open(sys.argv[1], "w").write(s)
```

```python
from asmb import *
import os, sys, struct
OPT = set(os.environ.get('OPT', '').split(','))
STAMPS = "stamps" in sys.argv


def optval(name, default):
    for o in OPT:
        if o.startswith(name + "="):
            return int(o.split("=")[1])
    return default


def f32bits(x):
    return struct.unpack("<I", struct.pack("<f", x))[0]


QF, KF, VF, HF, OF = 0x000000, 0x200000, 0x400000, 0x600000, 0xC00000
HF_RB = 86 * 2048
F0, F1, F2 = 0xE00000, 0xE08000, 0xE10000
RSG = 0xE18000
CSG = 0xE20000
WS_USED = 0xE60000

PA = 28672
SB = 24704
S1B = 12288 + 32
UB_SLOT = {8: 4, 9: 5, 10: 3, 11: 0, 12: 1, 13: 2, 14: 4, 15: 5}
WINB = 2 * SB
RD = 9
RING = RD * 2048
WO_OFF = 4 * RING
EX_OFF = WO_OFF + 65536
MISC = 159744
assert EX_OFF + 16384 <= MISC
CS_OFF = MISC
ST_OFF = MISC + 1536
CP_OFF = MISC + 2560
NC_OFF = MISC + 2560
SY_OFF = MISC + 4096 - 128
LAND, CONS, WOL, CNT, LAND1 = SY_OFF, SY_OFF + 16, SY_OFF + 32, SY_OFF + 48, SY_OFF + 64
NC_OFF = SY_OFF - 16
CP_OFF = EX_OFF + 16384
assert CP_OFF + 2048 <= MISC and CP_OFF >= 6 * SB
QSCALE = 0.25 * 1.4426950408889634
NDOWN = 22

S_X, S_WA, S_WS, S_WB, S_DBG, S_C = 24, 28, 32, 52, 56, 44
S_WV, S_R, S_P, S_RB, S_CC = 36, 37, 38, 39, 40
S_SOFF, S_T0, S_T1 = 41, 42, 43
S_T2, S_T3, S_U0, S_U1 = 48, 49, 50, 51
S_R4K, S_R3K, S_R6K, S_FS = 60, 61, 62, 63
S_MASK = 64
S_CSO, S_CARE, S_E = 96, 64, 97
S_ST = 98

V_L = 0
V_NON = 252
V_Z = 254
V_STP = 255


def stamp(b, i):
    if STAMPS:
        b.raw(f"  {'s_memtime' if 'cyc' in OPT else 's_memrealtime'} s[{S_ST}:{S_ST+1}]")
        b.raw("  s_waitcnt lgkmcnt(0)")
        b.raw(f"  v_writelane_b32 v{V_STP}, s{S_ST}, {i}")


def stamp_out(b, n=15):
    if not STAMPS:
        return
    b.raw("  s_mov_b64 exec, -1")
    b.raw(f"  s_mov_b32 s{S_WS+2}, 0x1000000")
    b.raw("  s_lshl_b32 s3, s2, 3")
    b.raw(f"  s_add_u32 s3, s3, s{S_WV}")
    b.raw("  s_lshl_b32 s3, s3, 2")
    b.raw("  s_add_u32 s3, s3, 0xF00000")
    b.raw("  v_lshlrev_b32 v1, 13, v0")
    b.raw(f"  s_mov_b64 exec, {(1 << n) - 1}")
    b.raw(f"  buffer_store_dword v{V_STP}, v1, s[{S_WS}:{S_WS+3}], s3 offen")


def srd(b, s, lo, hi, size, add=None):
    if add is None:
        b.salu("s_mov_b32", sr(s), lo)
        b.salu("s_mov_b32", sr(s + 1), hi)
    else:
        b.salu("s_add_u32", sr(s), lo, add)
        b.salu("s_addc_u32", sr(s + 1), hi, 0)
    b.salu("s_mov_b32", sr(s + 2), size)
    b.salu("s_mov_b32", sr(s + 3), 0x20000)


def guard(b, exit_label):
    b.salu("s_add_u32", "s3", "s3", 1)
    b.salu("s_cmp_gt_u32", "s3", 0x400000)
    b.branch("s_cbranch_scc1", exit_label)


def poll(b, vtmp, vaddr, first_issued=False, slp=None):
    lp, lq = b.newlabel("poll"), b.newlabel("pok")
    if not first_issued:
        b.vmem_load("buffer_load_dwordx2", vr(vtmp, 2), vr(vaddr), sr(S_WS, 4), "0", mods="sc1", tag="fl")
    b.wait(vm="fl")
    b.label(lp)
    b.valu("v_cmp_ne_u64", "vcc", vr(vtmp, 2), vr(V_NON, 2))
    b.branch("s_cbranch_vccz", lq)
    b.opt_begin()
    guard(b, lq)
    b.raw(f"  s_sleep {slp if slp is not None else optval('slp', 8)}")
    b.vmem_load("buffer_load_dwordx2", vr(vtmp, 2), vr(vaddr), sr(S_WS, 4), "0", mods="sc1")
    b.wait(vm=0)
    b.branch("s_branch", lp)
    b.opt_end()
    b.label(lq)


def arrive(b, cnt_off, s_flag, vt):
    b.valu("v_mov_b32", vr(vt), cnt_off)
    b.valu("v_mov_b32", vr(vt + 1), 1)
    b.salu("s_mov_b64", "exec", 1)
    b.raw(f"  ds_add_rtn_u32 {vr(vt+2)}, {vr(vt)}, {vr(vt+1)}")
    b.wait(lg=0)
    b.valu("v_readfirstlane_b32", sr(S_T2), vr(vt + 2))
    ld = b.newlabel("nf")
    b.salu("s_cmp_lg_u32", sr(S_T2), 3)
    b.branch("s_cbranch_scc1", ld)
    b.opt_begin()
    b.vmem_store("buffer_store_dwordx2", vr(V_NON, 2), vr(V_Z), sr(S_WS, 4), sr(s_flag), mods="sc1")
    b.opt_end()
    b.label(ld)
    b.salu("s_mov_b64", "exec", -1)


def lds_signal(b, word, val, vt):
    b.salu("s_lshl_b32", sr(S_T2), sr(S_R), 2)
    b.salu("s_add_u32", sr(S_T2), sr(S_T2), word)
    b.valu("v_mov_b32", vr(vt), sr(S_T2))
    b.valu("v_mov_b32", vr(vt + 1), val)
    b.ds_write("ds_write_b32", vr(vt), vr(vt + 1), 0)


def lds_check_issue(b, word, va, vt, tag):
    b.ds_read("ds_read_b128", vr(vt, 4), vr(va), word - SY_OFF, tag=tag)


def lds_check(b, word, val, va, vt, tag, slp=0):
    lp, lq = b.newlabel("lsp"), b.newlabel("lok")
    b.wait(lg=tag)
    b.label(lp)
    b.valu("v_min3_u32", vr(vt), vr(vt), vr(vt + 1), vr(vt + 2))
    b.valu("v_min_u32", vr(vt), vr(vt), vr(vt + 3))
    b.valu("v_cmp_gt_u32", "vcc", val, vr(vt))
    b.branch("s_cbranch_vccz", lq)
    b.opt_begin()
    guard(b, lq)
    if slp:
        b.raw(f"  s_sleep {slp}")
    b.ds_read("ds_read_b128", vr(vt, 4), vr(va), word - SY_OFF)
    b.wait(lg=0)
    b.branch("s_branch", lp)
    b.opt_end()
    b.label(lq)


def lds_check_a(b, val, vt, tag):
    b.wait(lg=tag)
    b.valu("v_min3_u32", vr(vt), vr(vt), vr(vt + 1), vr(vt + 2))
    b.valu("v_min_u32", vr(vt), vr(vt), vr(vt + 3))
    b.valu("v_cmp_gt_u32", "vcc", val, vr(vt))


def lds_check_b(b, word, val, va, vt):
    lp, lq = b.newlabel("lsp"), b.newlabel("lok")
    b.label(lp)
    b.branch("s_cbranch_vccz", lq)
    b.opt_begin()
    guard(b, lq)
    b.ds_read("ds_read_b128", vr(vt, 4), vr(va), word - SY_OFF)
    b.wait(lg=0)
    b.valu("v_min3_u32", vr(vt), vr(vt), vr(vt + 1), vr(vt + 2))
    b.valu("v_min_u32", vr(vt), vr(vt), vr(vt + 3))
    b.valu("v_cmp_gt_u32", "vcc", val, vr(vt))
    b.nop(5)
    b.branch("s_branch", lp)
    b.opt_end()
    b.label(lq)


def w2_touch_mall(b, sc, va, vd):
    l1 = b.newlabel("w2")
    b.salu("s_cmp_lg_u32", sr(S_R), 1)
    b.branch("s_cbranch_scc1", l1)
    b.opt_begin()
    b.salu("s_sub_u32", sr(S_U1), "s2", 172)
    b.salu("s_cmp_lt_u32", "s2", 172)
    b.salu("s_cselect_b32", sr(sc), "s16", "s8")
    b.salu("s_cselect_b32", sr(sc + 1), "s17", "s9")
    b.salu("s_cselect_b32", sr(S_U0), "s2", sr(S_U1))
    b.salu("s_mov_b32", sr(sc + 2), 512 * 1024)
    b.salu("s_cselect_b32", sr(sc + 2), 1376 * 1024, sr(sc + 2))
    b.salu("s_mov_b32", sr(sc + 3), 0x20000)
    b.salu("s_lshl_b32", sr(S_U0), sr(S_U0), 13)
    b.valu("v_lshlrev_b32", vr(va), 7, vr(V_L))
    b.vmem_load("buffer_load_dword", vr(vd), vr(va), sr(sc, 4), sr(S_U0))
    b.opt_end()
    b.label(l1)


def w2_touch_l2(b, sc, va, vd):
    b.salu("s_lshr_b32", sr(S_U0), "s2", 3)
    b.salu("s_sub_u32", sr(S_U1), sr(S_U0), 22)
    b.salu("s_cmp_lt_u32", sr(S_U0), 22)
    b.salu("s_cselect_b32", sr(sc), "s16", "s8")
    b.salu("s_cselect_b32", sr(sc + 1), "s17", "s9")
    b.salu("s_cselect_b32", sr(S_U0), sr(S_U0), sr(S_U1))
    b.salu("s_mov_b32", sr(sc + 2), 512 * 1024)
    b.salu("s_cselect_b32", sr(sc + 2), 1376 * 1024, sr(sc + 2))
    b.salu("s_mov_b32", sr(sc + 3), 0x20000)
    b.salu("s_lshl_b32", sr(S_U0), sr(S_U0), 16)
    b.salu("s_lshl_b32", sr(S_U1), sr(S_R), 14)
    b.salu("s_add_u32", sr(S_U0), sr(S_U0), sr(S_U1))
    if 'map162' in OPT:
        b.salu("s_and_b32", sr(S_U1), "s2", 3)
        b.salu("s_lshl_b32", sr(S_U1), sr(S_U1), 8)
        b.salu("s_add_u32", sr(S_U0), sr(S_U0), sr(S_U1))
        b.valu("v_bfe_u32", vr(va), vr(V_L), 1, 4)
        b.valu("v_lshlrev_b32", vr(va), 10, vr(va))
        b.valu("v_and_b32", vr(vd), 1, vr(V_L))
        b.valu("v_lshl_add_u32", vr(va), vr(vd), 7, vr(va))
        b.vmem_load("buffer_load_dword", vr(vd), vr(va), sr(sc, 4), sr(S_U0), tag="pf")
        return
    if 'map48' not in OPT:
        b.salu("s_and_b32", sr(S_U1), "s2", 1)
        b.salu("s_lshl_b32", sr(S_U1), sr(S_U1), 9)
        b.salu("s_add_u32", sr(S_U0), sr(S_U0), sr(S_U1))
        b.valu("v_lshrrev_b32", vr(va), 2, vr(V_L))
        b.valu("v_lshlrev_b32", vr(va), 10, vr(va))
        b.valu("v_and_b32", vr(vd), 3, vr(V_L))
        b.valu("v_lshl_add_u32", vr(va), vr(vd), 7, vr(va))
        b.vmem_load("buffer_load_dword", vr(vd), vr(va), sr(sc, 4), sr(S_U0), tag="pf")
        return
    b.valu("v_lshlrev_b32", vr(va), 7, vr(V_L))
    b.vmem_load("buffer_load_dword", vr(vd), vr(va), sr(sc, 4), sr(S_U0), tag="pf")
    b.salu("s_add_u32", sr(S_U0), sr(S_U0), 8192)
    b.vmem_load("buffer_load_dword", vr(vd + 1), vr(va), sr(sc, 4), sr(S_U0), tag="pf")


def dec2(b, s_rb2, s_cb):
    if 'map162' in OPT:
        if s_rb2 is not None:
            b.salu("s_bfe_u32", sr(S_T0), "s2", (1 << 16) | 2)
            b.salu("s_lshl_b32", sr(S_T0), sr(S_T0), 4)
            b.salu("s_bfe_u32", sr(S_T1), "s2", (4 << 16) | 3)
            b.salu("s_add_u32", sr(s_rb2), sr(S_T0), sr(S_T1))
        b.salu("s_and_b32", sr(S_T1), "s2", 3)
        b.salu("s_lshl_b32", sr(S_T1), sr(S_T1), 1)
        b.salu("s_lshr_b32", sr(s_cb), "s2", 7)
        b.salu("s_add_u32", sr(s_cb), sr(s_cb), sr(S_T1))
    elif 'map48' not in OPT:
        if s_rb2 is not None:
            b.salu("s_bfe_u32", sr(S_T0), "s2", (2 << 16) | 1)
            b.salu("s_lshl_b32", sr(S_T0), sr(S_T0), 3)
            b.salu("s_bfe_u32", sr(S_T1), "s2", (3 << 16) | 3)
            b.salu("s_add_u32", sr(s_rb2), sr(S_T0), sr(S_T1))
        b.salu("s_and_b32", sr(S_T1), "s2", 1)
        b.salu("s_lshl_b32", sr(S_T1), sr(S_T1), 2)
        b.salu("s_lshr_b32", sr(s_cb), "s2", 6)
        b.salu("s_add_u32", sr(s_cb), sr(s_cb), sr(S_T1))
    else:
        if s_rb2 is not None:
            b.salu("s_and_b32", sr(S_T0), "s2", 7)
            b.salu("s_lshl_b32", sr(S_T0), sr(S_T0), 2)
            b.salu("s_bfe_u32", sr(S_T1), "s2", (2 << 16) | 3)
            b.salu("s_add_u32", sr(s_rb2), sr(S_T0), sr(S_T1))
        b.salu("s_lshr_b32", sr(s_cb), "s2", 5)


def bf16r(b, reg):
    b.valu("v_cvt_pk_bf16_f32", vr(reg), vr(reg), vr(reg))
    b.valu("v_lshlrev_b32", vr(reg), 16, vr(reg))


def rows12_offsets(b, dst, n, stride, s_base, t0, t1):
    for i in range(n):
        b.valu("v_add_u32", vr(t0), 64 * i, vr(V_L))
        b.valu("v_mul_u32_u24", vr(t1), 5462, vr(t0))
        b.valu("v_lshrrev_b32", vr(t1), 16, vr(t1))
        b.valu("v_mul_u32_u24", vr(t1), stride - 192, vr(t1))
        b.valu("v_lshl_add_u32", vr(t1), vr(t0), 4, vr(t1))
        b.salu("s_sub_u32", sr(S_T2), sr(s_base), 1024 * (i % 4))
        b.valu("v_add_u32", vr(dst + i), sr(S_T2), vr(t1))


def ub_setup(b, dst, t0, t1):
    b.salu("s_cmp_lt_u32", sr(S_R), 2)
    b.salu("s_cselect_b32", sr(S_WB), "s12", "s14")
    b.salu("s_cselect_b32", sr(S_WB + 1), "s13", "s15")
    b.salu("s_cmp_lt_u32", sr(S_CC), 15)
    b.salu("s_cselect_b32", sr(S_WB + 2), 512 * 2752, 0)
    b.salu("s_mov_b32", sr(S_WB + 3), 0x20000)
    b.salu("s_and_b32", sr(S_U0), sr(S_R), 1)
    b.salu("s_mul_i32", sr(S_R6K), sr(S_U0), 6144)
    b.salu("s_lshr_b32", sr(S_U1), sr(S_R), 1)
    b.salu("s_mul_i32", sr(S_U1), sr(S_U1), S1B)
    b.salu("s_add_u32", sr(S_R6K), sr(S_R6K), sr(S_U1))
    b.salu("s_mul_i32", sr(S_U0), sr(S_U0), 32 * 2752)
    b.salu("s_lshl_b32", sr(S_U1), sr(S_FS), 5)
    b.salu("s_add_u32", sr(S_U0), sr(S_U0), sr(S_U1))
    rows12_offsets(b, dst, 6, 2752, S_U0, t0, t1)


def ub_step(b, vq, t, n):
    if n % 4 == 0:
        b.salu("s_add_u32", "m0", sr(S_R6K), UB_SLOT[t] * SB + 1024 * n)
    if n == 0:
        b.salu("s_mov_b32", sr(S_SOFF), (t - 8) * 64 * 2752)
    b.vmem_dma(vr(vq + n), sr(S_WB, 4), sr(S_SOFF), mods=f"offset:{1024*(n%4)}" if n % 4 else "", tag=f"U{t}")


def xread_setup(b, vxb, t0, t1, t2):
    b.valu("v_and_b32", vr(t0), 31, vr(V_L))
    b.salu("s_lshl_b32", sr(S_T0), sr(S_R), 5)
    b.valu("v_add_u32", vr(t0), sr(S_T0), vr(t0))
    b.valu("v_lshrrev_b32", vr(t1), 1, vr(t0))
    b.valu("v_lshrrev_b32", vr(t2), 5, vr(V_L))
    b.valu("v_xor_b32", vr(t1), vr(t1), vr(t2))
    b.valu("v_and_b32", vr(t1), 7, vr(t1))
    b.valu("v_lshlrev_b32", vr(t1), 4, vr(t1))
    b.valu("v_lshl_add_u32", vr(vxb), vr(t0), 7, vr(t1))
    for s in range(1, 4):
        b.valu("v_xor_b32", vr(vxb + s), 32 * s, vr(vxb))


def tr192(b, dst, chmul, t0, t1):
    b.valu("v_lshrrev_b32", vr(t0), 5, vr(V_L))
    b.valu("v_lshlrev_b32", vr(t0), 3, vr(t0))
    b.valu("v_bfe_u32", vr(t1), vr(V_L), 2, 2)
    b.valu("v_add_u32", vr(t0), vr(t0), vr(t1))
    b.valu("v_mul_u32_u24", vr(t0), 192, vr(t0))
    b.valu("v_and_b32", vr(t1), 3, vr(V_L))
    b.valu("v_lshl_add_u32", vr(t0), vr(t1), 3, vr(t0))
    b.valu("v_bfe_u32", vr(t1), vr(V_L), 4, 1)
    b.valu("v_mul_u32_u24", vr(t1), chmul, vr(t1))
    b.valu("v_add_u32", vr(dst), vr(t0), vr(t1))


def kernel(name):
    b = B()
    b.raw(f".globl {name}\n.p2align 8\n.type {name},@function\n{name}:")
    b.salu("s_cmp_ge_u32", "s2", 256)
    b.branch("s_cbranch_scc1", "L_END")
    stamp(b, 0)
    b.raw("  s_load_dwordx16 s[4:19], s[0:1], 0")
    b.raw("  s_load_dwordx4 s[20:23], s[0:1], 64")
    b.raw(f"  s_getpc_b64 s[{S_U0}:{S_U0+1}]")
    b.label("L_PC")
    b.valu("v_lshlrev_b32", "v2", 7, "v0")
    b.valu("v_min_u32", "v2", "L_END-L_PC", "v2")
    b.raw(f"  global_load_dword v251, v2, s[{S_U0}:{S_U0+1}]")
    b.valu("v_lshrrev_b32", "v1", 6, "v0")
    b.valu("v_and_b32", "v0", 63, "v0")
    b.valu("v_readfirstlane_b32", sr(S_WV), "v1")
    RBB = optval("rbb", 2)
    xb = 4 - RBB
    b.salu("s_and_b32", sr(S_T0), "s2", (1 << xb) - 1)
    b.salu("s_lshl_b32", sr(S_T0), sr(S_T0), RBB)
    b.salu("s_bfe_u32", sr(S_T1), "s2", (RBB << 16) | 3)
    b.salu("s_add_u32", sr(S_RB), sr(S_T0), sr(S_T1))
    b.salu("s_bfe_u32", sr(S_T0), "s2", ((3 - xb) << 16) | xb)
    b.salu("s_lshl_b32", sr(S_T0), sr(S_T0), 5 - RBB)
    b.salu("s_lshr_b32", sr(S_T1), "s2", 3 + RBB)
    b.salu("s_add_u32", sr(S_CC), sr(S_T0), sr(S_T1))
    if 'al' in OPT:
        b.salu("s_bfe_u32", sr(S_T0), "s2", (2 << 16) | 1)
        b.salu("s_lshl_b32", sr(S_T0), sr(S_T0), 2)
        b.salu("s_bfe_u32", sr(S_T1), "s2", (2 << 16) | 3)
        b.salu("s_add_u32", sr(S_RB), sr(S_T0), sr(S_T1))
        b.salu("s_and_b32", sr(S_T0), "s2", 1)
        b.salu("s_lshl_b32", sr(S_T0), sr(S_T0), 3)
        b.salu("s_lshr_b32", sr(S_T1), "s2", 5)
        b.salu("s_add_u32", sr(S_CC), sr(S_T0), sr(S_T1))
    b.salu("s_and_b32", sr(S_R), sr(S_WV), 3)
    b.salu("s_lshr_b32", sr(S_P), sr(S_WV), 2)
    b.salu("s_mul_i32", sr(S_FS), sr(S_CC), 6)
    b.salu("s_min_u32", sr(S_FS), sr(S_FS), 80)
    b.valu("v_mov_b32", vr(V_Z), 0)
    b.salu("s_mov_b32", "s3", 0)
    b.salu("s_cmp_eq_u32", sr(S_P), 0)
    b.branch("s_cbranch_scc1", "L_P0")
    t1 = p1()
    t0 = p0()
    return b.text() + t1 + t0 + "L_END:\n  s_endpgm\n"


def common_srds(b):
    b.wait(lg=0)
    b.salu("s_lshl_b32", sr(S_T0), sr(S_RB), 17)
    srd(b, S_X, "s4", "s5", 0x20000, add=sr(S_T0))
    srd(b, S_WA, "s6", "s7", 512 * 3072)
    srd(b, S_WS, "s22", "s23", WS_USED)
    srd(b, S_DBG, "s20", "s21", 256)


def p1():
    b = B(); b.nlabel = 1000
    V_XO0, V_XO1, V_T0, V_T1, V_T2 = 1, 2, 3, 4, 5
    V_TRB = 1
    V_SY, V_CK = 4, 8
    V_RING = 8
    V_ACC = 32
    V_X = 128
    V_WA = 32
    V_UB, V_XB = 36, 44
    S_H, S_WD, S_WO = 72, 76, 80
    S_RB2, S_CB, S_M0B, S_KA, S_KB, S_F = 84, 85, 86, 87, 88, 89

    def pref_b(t, half=None):
        if half in (None, 0):
            b.salu("s_add_u32", "m0", sr(S_M0B), (t % RD) * 2048)
            b.salu("s_mov_b32", sr(S_KB), t * 16384)
            b.vmem_dma("v7", sr(S_WD, 4), sr(S_KB), tag=f"b{t}")
        if half in (None, 1):
            b.salu("s_mov_b32", sr(S_KB), t * 16384 + 8192 - 1024)
            b.vmem_dma("v7", sr(S_WD, 4), sr(S_KB), mods="offset:1024", tag=f"b{t}")
    S_PS = 64

    def pstamp(i):
        if STAMPS:
            b.raw(f"  {'s_memtime' if 'cyc' in OPT else 's_memrealtime'} s[{S_ST}:{S_ST+1}]")
            b.raw("  s_waitcnt lgkmcnt(0)")
            b.raw(f"  s_mov_b32 s{S_PS+i}, s{S_ST}")
    if STAMPS:
        b.raw(f"  s_mov_b32 s{S_PS}, s{S_ST}")
    b.salu("s_lshl_b32", sr(S_R4K), sr(S_R), 12)
    b.valu("v_lshrrev_b32", vr(V_T0), 3, vr(V_L))
    b.salu("s_lshl_b32", sr(S_T0), sr(S_R), 5)
    b.valu("v_add_u32", vr(V_T1), sr(S_T0), vr(V_T0))
    b.valu("v_lshrrev_b32", vr(V_T2), 1, vr(V_T1))
    b.valu("v_xor_b32", vr(V_T2), vr(V_T2), vr(V_L))
    b.valu("v_and_b32", vr(V_T2), 7, vr(V_T2))
    b.valu("v_lshlrev_b32", vr(V_T2), 4, vr(V_T2))
    b.valu("v_lshl_add_u32", vr(V_XO0), vr(V_T1), 10, vr(V_T2))
    b.valu("v_xor_b32", vr(V_XO1), 64, vr(V_XO0))
    b.valu("v_add_u32", vr(V_XO1), 8192 - 1024, vr(V_XO1))
    b.salu("s_mul_i32", sr(S_R3K), sr(S_R), 3072)
    b.salu("s_mul_i32", sr(S_U0), sr(S_R), 16 * 3072)
    b.salu("s_mul_i32", sr(S_U1), sr(S_CC), 192)
    b.salu("s_add_u32", sr(S_U0), sr(S_U0), sr(S_U1))
    rows12_offsets(b, V_WA, 3, 3072, S_U0, V_T0, V_T1)
    common_srds(b)

    def a_steps(t):
        st = []
        base = (t % 3) * PA

        def xs(n):
            if n == 0:
                b.salu("s_add_u32", "m0", sr(S_R4K), base)
                b.salu("s_mov_b32", sr(S_SOFF), t * 128)
            if n == 2:
                b.salu("s_add_u32", sr(S_SOFF), sr(S_SOFF), 16384 - 2048)
            b.vmem_dma(vr(V_XO1 if n % 2 else V_XO0), sr(S_X, 4), sr(S_SOFF), mods=f"offset:{1024*n}" if n else "", tag=f"A{t}")

        def ws_(n):
            if n == 0:
                b.salu("s_add_u32", "m0", sr(S_R3K), base + 16384)
                b.salu("s_mov_b32", sr(S_SOFF), t * 64 * 3072)
            b.vmem_dma(vr(V_WA + n), sr(S_WA, 4), sr(S_SOFF), mods=f"offset:{1024*n}" if n else "", tag=f"A{t}")
        return [lambda n=n: xs(n) for n in range(4)] + [lambda n=n: ws_(n) for n in range(3)]
    for f in a_steps(0):
        f()
    b.salu("s_or_b32", sr(S_T0), "s2", sr(S_R))
    b.salu("s_cmp_lg_u32", sr(S_T0), 0)
    b.branch("s_cbranch_scc1", "L_NL")
    b.opt_begin()
    b.raw(f"  s_memrealtime s[{S_T2}:{S_T2+1}]")
    b.raw("  s_waitcnt lgkmcnt(0)")
    b.salu("s_or_b32", sr(S_T2 + 1), sr(S_T2 + 1), "0x80000000")
    b.valu("v_mov_b32", vr(V_NON), sr(S_T2))
    b.valu("v_mov_b32", vr(V_NON + 1), sr(S_T2 + 1))
    b.salu("s_mov_b64", "exec", 1)
    b.vmem_store("buffer_store_dwordx2", vr(V_NON, 2), vr(V_Z), sr(S_DBG, 4), "0", mods="sc1")
    b.salu("s_mov_b64", "exec", -1)
    b.opt_end()
    b.label("L_NL")
    for f in a_steps(1):
        f()
    xread_setup(b, V_XB, V_T0, V_T1, V_T2)
    ub_setup(b, V_UB, V_T0, V_T1)
    b.wait(vm="A0", lg=0)
    b.barrier()
    pstamp(1)
    UBP1 = {6: [8, 9], 7: [10, 11]} if 'ubl' not in OPT else {6: [8], 7: [9]}
    for t in range(8):
        steps = a_steps(t + 2) if t + 2 < 8 else []
        for u in UBP1.get(t, []):
            steps += [lambda n=n, u=u: ub_step(b, V_UB, u, n) for n in range(6)]
        for f in steps[:2]:
            f()
        for s in range(4):
            ks = 4 * t + s
            b.ds_read("ds_read_b128", vr(V_X + 4 * ks, 4), vr(V_XB + s), (t % 3) * PA, tag=f"x{ks}")
        for f in steps[2:]:
            f()
        if t == 7:
            tr192(b, V_TRB, S1B, V_T1 + 2, V_T1 + 3)
            b.valu("v_add_u32", vr(V_TRB + 1), WINB, vr(V_TRB))
            b.valu("v_add_u32", vr(V_TRB + 2), 2 * WINB, vr(V_TRB))
            b.valu("v_mov_b32", vr(V_SY), SY_OFF)
            b.salu("s_lshl_b32", sr(S_T0), sr(S_R), 2)
            b.salu("s_add_u32", sr(S_T0), sr(S_T0), CONS)
            b.valu("v_mov_b32", "v5", sr(S_T0))
            srd(b, S_WD, "s16", "s17", 1376 * 1024)
            b.valu("v_bfe_u32", "v6", vr(V_L), 4, 1)
            b.valu("v_lshlrev_b32", "v6", 2, "v6")
            b.valu("v_xor_b32", "v6", "v6", vr(V_L))
            b.valu("v_and_b32", "v6", 7, "v6")
            b.valu("v_lshlrev_b32", "v6", 4, "v6")
            b.valu("v_lshrrev_b32", "v7", 3, vr(V_L))
            b.valu("v_lshl_add_u32", "v7", "v7", 10, "v6")
            dec2(b, None, S_T0)
            b.salu("s_lshl_b32", sr(S_T0), sr(S_T0), 7)
            b.salu("s_mul_i32", sr(S_T1), sr(S_R), NDOWN * 16384)
            b.salu("s_add_u32", sr(S_T1), sr(S_T1), sr(S_T0))
            b.valu("v_add_u32", "v7", sr(S_T1), "v7")
            b.salu("s_mul_i32", sr(S_M0B), sr(S_R), RING)
        b.wait(vm=f"A{t+1}" if t < 7 else "U8", lg=0)
        b.barrier()
        if t + 1 in (2, 4, 8):
            pstamp({2: 2, 4: 3, 8: 4}[t + 1])
    LA = optval('lab', 4)
    NF = 6 * 32
    EARLY = False
    KT = optval("kt", 28)
    order = [(ks, blk) for ks in range(KT) for blk in range(6)] + [(ks, blk) for blk in range(6) for ks in range(KT, 32)]

    def read_w(f):
        ks, blk = order[f]
        t, s = 8 + ks // 4, ks % 4
        r0 = V_RING + 4 * (f % 5)
        for q in range(2):
            off = UB_SLOT[t] * SB + s * 3072 + q * 768 + blk * 32
            b.ds_read("ds_read_b64_tr_b16", vr(r0 + 2 * q, 2), vr(V_TRB + off // WINB), off % WINB, tag=f"w{f}")
    V_CKT = V_RING + 20
    b.raw(f"  s_setprio {optval('pr1', 2)}")
    V_NM, V_RS, V_CSRD, V_STO, V_A1 = 128, 129, 130, 131, 132
    TS = [136, 144]

    def csrd(n):
        blk, g = divmod(n, 2)
        T = TS[n % 2]
        b.ds_read("ds_read_b128", vr(T, 4), vr(V_CSRD), blk * 128 + g * 32, tag=f"c{n}")
        b.ds_read("ds_read_b128", vr(T + 4, 4), vr(V_CSRD), blk * 128 + 64 + g * 32, tag=f"c{n}")

    def epi_setup_ops():
        ops = []
        Vv = lambda *a, **k: ops.append(lambda: b.valu(*a, **k))
        S = lambda *a: ops.append(lambda: b.salu(*a))
        Vv("v_and_b32", vr(V_A1), 31, vr(V_L))
        S("s_lshl_b32", sr(S_T0), sr(S_R), 8)
        S("s_add_u32", sr(S_T0), sr(S_T0), ST_OFF)
        Vv("v_lshl_add_u32", vr(V_A1), vr(V_A1), 3, sr(S_T0))
        ops.append(lambda: b.ds_read("ds_read_b64", vr(V_NM, 2), vr(V_A1), 0, tag="str"))
        Vv("v_lshrrev_b32", vr(V_CSRD), 5, vr(V_L))
        Vv("v_lshlrev_b32", vr(V_CSRD), 4, vr(V_CSRD))
        Vv("v_add_u32", vr(V_CSRD), CS_OFF + 384, vr(V_CSRD))
        Vv("v_lshlrev_b32", vr(V_STO), 4, vr(V_L))
        ops.append(lambda: csrd(0))
        S("s_lshl_b32", sr(S_T0), sr(S_RB), 1)
        S("s_lshr_b32", sr(S_T1), sr(S_R), 1)
        S("s_add_u32", sr(S_T0), sr(S_T0), sr(S_T1))
        S("s_mul_i32", sr(S_T3), sr(S_T0), HF_RB)
        S("s_and_b32", sr(S_T1), sr(S_R), 1)
        S("s_lshl_b32", sr(S_T1), sr(S_T1), 10)
        S("s_add_u32", sr(S_T3), sr(S_T3), sr(S_T1))
        S("s_lshl_b32", sr(S_T1), sr(S_FS), 11)
        S("s_add_u32", sr(S_T3), sr(S_T3), sr(S_T1))
        S("s_add_u32", sr(S_T3), sr(S_T3), HF)
        ops.append(lambda: (b.salu("s_cmp_lt_u32", sr(S_CC), 15), b.salu("s_cselect_b32", sr(S_T3), sr(S_T3), "0x40000000")))
        ops.append(lambda: b.wait(lg="str"))
        Vv("v_mul_f32", vr(V_RS), vr(V_RS), vr(V_RS))
        return ops

    def epi_ops(blk):
        ops = []
        Vv = lambda *a, **k: ops.append(lambda: b.valu(*a, **k))
        acc = V_ACC + 16 * blk
        for g in range(2):
            n = 2 * blk + g
            T = TS[n % 2]
            if n + 1 < 12:
                ops.append(lambda n=n: csrd(n + 1))
            ops.append(lambda n=n: b.wait(lg=f"c{n}"))
            for i in range(4):
                Vv("v_fmac_f32", vr(acc + 4 * g + i), vr(V_NM), vr(T + i))
            for i in range(4):
                Vv("v_fmac_f32", vr(acc + 8 + 4 * g + i), vr(V_NM), vr(T + 4 + i))
            for i in range(4):
                Vv("v_max_f32", vr(acc + 4 * g + i), 0, vr(acc + 4 * g + i))
            for i in range(4):
                Vv("v_mul_f32", vr(acc + 8 + 4 * g + i), vr(V_RS), vr(acc + 8 + 4 * g + i))
            for i in range(4):
                Vv("v_mul_f32", vr(acc + 4 * g + i), vr(acc + 4 * g + i), vr(acc + 8 + 4 * g + i))
        for i in range(4):
            Vv("v_cvt_pk_bf16_f32", vr(acc + i), vr(acc + 2 * i), vr(acc + 2 * i + 1))

        def st():
            b.salu("s_add_u32", sr(S_T0), sr(S_T3), (blk // 2) * 4096)
            b.vmem_store("buffer_store_dwordx4", vr(acc, 4), vr(V_STO), sr(S_WS, 4), sr(S_T0),
                         mods=("offset:2048 " if blk % 2 else "") + "sc1", tag="st")
        ops.append(st)
        return ops
    first_use = {}
    last_use = {}
    for f, (ks, blk) in enumerate(order):
        first_use.setdefault(8 + ks // 4, f)
        last_use[8 + ks // 4] = f
    fu_inv = {v: k for k, v in first_use.items()}
    chk_issue = {}
    for t in range(9, 16):
        chk_issue[max(first_use[t] - 7, first_use[t - 1])] = t
        assert first_use[t] - first_use[t - 1] >= 4
    fill = []
    NK = 32 - KT
    for f in range(LA):
        read_w(f)
    for f in range(NF):
        nf = f + LA
        for t in (9, 10, 11):
            if nf == first_use[t] - 16:
                b.wait(vm=f"U{t}")
                b.valu("v_mov_b32", "v6", t)
                b.ds_write("ds_write_b32", "v5", "v6", LAND1 - CONS)
        if nf in fu_inv and fu_inv[nf] >= 9:
            t = fu_inv[nf]
            lds_check_b(b, LAND1 if t <= 11 else LAND, t, V_SY, V_CKT)
        if nf in chk_issue:
            t = chk_issue[nf]
            lds_check_issue(b, LAND1 if t <= 11 else LAND, V_SY, V_CKT, f"L{t}")
        if nf < NF:
            read_w(nf)
        ks, blk = order[f]
        b.wait(lg=f"w{f}")
        acc = V_ACC + 16 * blk
        b.mfma(vr(acc, 16), vr(V_RING + 4 * (f % 5), 4), vr(V_X + 4 * ks, 4), "0" if ks == 0 else vr(acc, 16))
        if nf + 2 in fu_inv and fu_inv[nf + 2] >= 9:
            lds_check_a(b, fu_inv[nf + 2], V_CKT, f"L{fu_inv[nf + 2]}")
        for t in (8, 9, 15):
            if f == last_use[t]:
                b.valu("v_mov_b32", "v6", t)
                b.ds_write("ds_write_b32", "v5", "v6", 0)
        if f == 6 * KT - 12:
            fill += epi_setup_ops()
        if f >= 6 * KT + NK + 1 and (f - 6 * KT - 1) % NK == 0:
            fill += epi_ops((f - 6 * KT - 1) // NK - 1)
        for _ in range(optval("fre", 7)):
            if fill:
                fill.pop(0)()
        if f == 95:
            pstamp(5)
        if 'fine' in OPT and f in (19, 43, 67):
            pstamp({19: 1, 43: 2, 67: 3}[f])
        if 'fine2' in OPT and f in (115, 139, 163):
            pstamp({115: 1, 139: 2, 163: 3}[f])
    pstamp(6)
    fill += epi_ops(5)
    b.valu("v_mov_b32", vr(V_Z), 0)
    b.valu("v_mov_b32", vr(V_A1), NC_OFF)
    b.ds_read("ds_read_b64", vr(V_NON, 2), vr(V_A1), 0)
    while fill:
        fill.pop(0)()
    b.raw(f"  s_setprio {optval('pr1b', 0)}")
    pstamp(7)
    if STAMPS:
        for i in range(8):
            b.raw(f"  v_writelane_b32 v{V_STP}, s{S_PS+i}, {i}")
    V_AO, V_BO0, V_BO1, V_TR0, V_TR1, V_BW0, V_BW1, V_FO, V_WR, V_U0, V_U1, V_U2 = 132, 133, 134, 135, 136, 137, 138, 139, 140, 141, 142, 143
    V_W = 144
    V_A = 160
    V_C = 8
    RA = optval('ra', 5)
    IL = 'noil' not in OPT
    b.salu("s_lshl_b32", sr(S_F), sr(S_RB), 4)
    b.salu("s_add_u32", sr(S_F), sr(S_F), sr(S_CC))
    b.salu("s_lshl_b32", sr(S_F), sr(S_F), 7)
    b.salu("s_add_u32", sr(S_F), sr(S_F), F1)
    dec2(b, S_RB2, S_CB)
    b.salu("s_mul_i32", sr(S_T0), sr(S_RB2), HF_RB)
    b.salu("s_add_u32", sr(S_T0), sr(S_T0), HF)
    srd(b, S_H, "s22", "s23", HF_RB, add=sr(S_T0))
    if 'fakea' in OPT:
        srd(b, S_H, "s16", "s17", HF_RB)
    srd(b, S_WO, "s8", "s9", 512 * 1024)
    b.salu("s_mul_i32", sr(S_T0), sr(S_R), NDOWN * 2048)
    b.valu("v_add_u32", vr(V_AO), sr(S_T0), vr(V_STO))
    b.valu("v_bfe_u32", vr(V_U1), vr(V_L), 4, 1)
    b.valu("v_lshlrev_b32", vr(V_U1), 2, vr(V_U1))
    b.valu("v_xor_b32", vr(V_U1), vr(V_U1), vr(V_L))
    b.valu("v_and_b32", vr(V_U1), 7, vr(V_U1))
    b.valu("v_lshlrev_b32", vr(V_U1), 4, vr(V_U1))
    b.valu("v_lshrrev_b32", vr(V_U0), 3, vr(V_L))
    b.valu("v_lshl_add_u32", vr(V_U0), vr(V_U0), 10, vr(V_U1))
    b.salu("s_lshl_b32", sr(S_T0), sr(S_CB), 7)
    b.salu("s_mul_i32", sr(S_T1), sr(S_R), NDOWN * 16384)
    b.salu("s_add_u32", sr(S_T1), sr(S_T1), sr(S_T0))
    b.salu("s_lshl_b32", sr(S_T1), sr(S_R), 17)
    b.salu("s_add_u32", sr(S_T1), sr(S_T1), sr(S_T0))
    b.valu("v_add_u32", vr(V_BW0), sr(S_T1), vr(V_U0))
    b.valu("v_add_u32", vr(V_BW1), 8192 - 1024, vr(V_BW0))
    b.valu("v_lshrrev_b32", vr(V_U0), 5, vr(V_L))
    b.valu("v_lshlrev_b32", vr(V_U0), 2, vr(V_U0))
    b.valu("v_bfe_u32", vr(V_U1), vr(V_L), 2, 2)
    b.valu("v_add_u32", vr(V_U0), vr(V_U0), vr(V_U1))
    b.valu("v_and_b32", vr(V_U2), 3, vr(V_L))
    b.valu("v_lshlrev_b32", vr(V_U2), 3, vr(V_U2))
    b.valu("v_lshl_add_u32", vr(V_U0), vr(V_U0), 7, vr(V_U2))
    b.valu("v_lshrrev_b32", vr(V_U1), 1, vr(V_U1))
    b.valu("v_bfe_u32", vr(V_U2), vr(V_L), 4, 1)
    b.valu("v_lshl_add_u32", vr(V_U1), vr(V_U1), 1, vr(V_U2))
    b.valu("v_lshl_add_u32", vr(V_U0), vr(V_U1), 5, vr(V_U0))
    b.valu("v_add_u32", vr(V_TR0), sr(S_M0B), vr(V_U0))
    b.valu("v_xor_b32", vr(V_TR1), 64, vr(V_TR0))
    b.valu("v_add_u32", vr(V_WR), sr(S_M0B), vr(V_STO))
    b.salu("s_lshr_b32", sr(S_T0), sr(S_RB2), 1)
    b.salu("s_lshl_b32", sr(S_T0), sr(S_T0), 11)
    b.salu("s_add_u32", sr(S_T0), sr(S_T0), F1)
    b.salu("s_mul_i32", sr(S_T1), sr(S_R), 11)
    b.salu("s_mul_i32", sr(S_T1), sr(S_T1), 21846)
    b.salu("s_lshr_b32", sr(S_T1), sr(S_T1), 16)
    b.valu("v_min_u32", vr(V_U0), 4, vr(V_L))
    b.valu("v_add_u32", vr(V_U0), sr(S_T1), vr(V_U0))
    b.valu("v_min_u32", vr(V_U0), 14, vr(V_U0))
    b.valu("v_lshlrev_b32", vr(V_U0), 7, vr(V_U0))
    b.valu("v_add_u32", vr(V_FO), sr(S_T0), vr(V_U0))
    lds_check_issue(b, CONS, V_SY, V_C, "cz")
    b.wait(vm=0)
    stamp(b, 8)
    arrive(b, CNT + 4, S_F, V_U0)
    lds_check(b, CONS, 15, V_SY, V_C, "cz")

    def pref_a(t, half=None):
        for i in range(2):
            if half is not None and half != i:
                continue
            if i == 0:
                b.salu("s_mov_b32", sr(S_KA), t * 2048)
            b.vmem_load("buffer_load_dwordx4", vr(V_A + 8 * (t % RA) + 4 * i, 4), vr(V_AO), sr(S_H, 4), sr(S_KA),
                        mods=("offset:1024 " if i else "") + "sc1", tag=f"a{t}")

    def pref_wo(i):
        if i == 0:
            b.salu("s_lshl_b32", sr(S_T3), sr(S_R), 14)
        b.salu("s_add_u32", "m0", sr(S_T3), WO_OFF + i * 2048)
        b.salu("s_mov_b32", sr(S_KB), i * 16384)
        b.vmem_dma(vr(V_BW0), sr(S_WO, 4), sr(S_KB), tag="wo")
        b.vmem_dma(vr(V_BW1), sr(S_WO, 4), sr(S_KB), mods="offset:1024", tag="wo")
    for t in range(RD if not EARLY else 0):
        pref_b(t)
    nwo = 0
    while nwo < optval("nwo", 8):
        pref_wo(nwo)
        nwo += 1
    if 'ht' in OPT:
        b.valu("v_min_u32", vr(V_U0), 43, vr(V_L))
        b.salu("s_mul_i32", sr(S_T0), sr(S_CB), 44)
        b.valu("v_add_u32", vr(V_U0), sr(S_T0), vr(V_U0))
        b.valu("v_lshlrev_b32", vr(V_U0), 7, vr(V_U0))
        b.salu("s_mul_i32", sr(S_T0), sr(S_R), NDOWN * 2048)
    poll(b, V_W, V_FO)
    stamp(b, 9)
    if 'ht' in OPT:
        b.vmem_load("buffer_load_dword", vr(V_U1), vr(V_U0), sr(S_H, 4), sr(S_T0), mods="sc1", tag="ht")
        if 'htw' in OPT:
            b.wait(vm="ht")
    for t in range(RA):
        pref_a(t)
        if nwo < 8:
            pref_wo(nwo)
            nwo += 1

    def rdw(t):
        ws = V_W + 8 * (t % 2)
        b.wait(vm=f"b{t}")
        for j in range(2):
            for q in range(2):
                b.ds_read("ds_read_b64_tr_b16", vr(ws + 4 * j + 2 * q, 2), vr(V_TR0 + j), (t % RD) * 2048 + q * 1024, tag=f"d{t}")
    def rdw1(t, n):
        ws = V_W + 8 * (t % 2)
        if n == 0:
            b.wait(vm=f"b{t}")
        j, q = divmod(n, 2)
        b.ds_read("ds_read_b64_tr_b16", vr(ws + 4 * j + 2 * q, 2), vr(V_TR0 + j), (t % RD) * 2048 + q * 1024, tag=f"d{t}")
    rdw(0)
    for t in range(NDOWN):
        ws = V_W + 8 * (t % 2)
        b.wait(vm=f"a{t}", lg=f"d{t}")
        lds = []
        if t + RD < NDOWN:
            lds += [lambda: pref_b(t + RD, 0), lambda: pref_b(t + RD, 1)]
        if t >= 1 and t - 1 + RA < NDOWN:
            lds = [lambda: pref_a(t - 1 + RA, 0), lambda: pref_a(t - 1 + RA, 1)] + lds
        for i in range(2):
            for j in range(2):
                acc = V_ACC + 16 * (2 * i + j)
                b.mfma(vr(acc, 16), vr(ws + 4 * j, 4), vr(V_A + 8 * (t % RA) + 4 * i, 4), "0" if t == 0 else vr(acc, 16))
                if t + 1 < NDOWN and 2 * i + j < 2:
                    rdw1(t + 1, 2 * (2 * i + j))
                    rdw1(t + 1, 2 * (2 * i + j) + 1)
                if lds:
                    lds.pop(0)()
        if t == optval("twol", 13):
            b.wait(vm="wo")
            lds_signal(b, WOL, 1, V_U0)
    stamp(b, 10)
    for blk in range(4):
        for g in range(4):
            b.ds_write("ds_write_b128", vr(V_WR), vr(V_ACC + 16 * blk + 4 * g, 4), blk * 4096 + g * 1024)
    b.wait(lg=0)
    stamp(b, 11)
    stamp_out(b)
    b.raw("  s_endpgm")
    print("p1 instrs", b.ninstr)
    return b.text()


def p0():
    b = B(); b.nlabel = 3000
    b.label("L_P0")
    DPP = "row_mask:0xf bank_mask:0xf"
    V_T0, V_T1, V_T2 = 1, 2, 3
    V_XB = 4
    V_TRA = 8
    V_SY = 9
    V_NM, V_RS = 10, 11
    V_CSRD, V_STO, V_STV, V_RSS = 12, 13, 14, 15
    V_ID = 16
    V_XF = 24
    V_RING = 36
    V_ACC = 72
    V_D2 = 120
    TS = [136, 144]
    RD_, CD, CA, U0, U1 = 152, 160, 192, 200, 201
    SU, SQ = 250, 251
    GA, G0 = 204, 236
    V_UB = 244
    if 'ct' in OPT:
        b.valu("v_lshlrev_b32", vr(V_T0), 7, vr(V_L))
        b.salu("s_lshl_b32", sr(S_T0), "s2", 13)
        b.wait(lg=0)
        b.salu("s_cmp_eq_u32", sr(S_R), 2)
        b.salu("s_cselect_b32", sr(S_C), "s12", "s14")
        b.salu("s_cselect_b32", sr(S_C + 1), "s13", "s15")
        b.salu("s_mov_b32", sr(S_C + 2), 512 * 2752)
        b.salu("s_cmp_eq_u32", sr(S_R), 1)
        b.salu("s_cselect_b32", sr(S_C), "s6", sr(S_C))
        b.salu("s_cselect_b32", sr(S_C + 1), "s7", sr(S_C + 1))
        b.salu("s_cselect_b32", sr(S_C + 2), 512 * 3072, sr(S_C + 2))
        b.salu("s_cmp_eq_u32", sr(S_R), 0)
        b.salu("s_cselect_b32", sr(S_C), "s4", sr(S_C))
        b.salu("s_cselect_b32", sr(S_C + 1), "s5", sr(S_C + 1))
        b.salu("s_cselect_b32", sr(S_C + 2), 0x200000, sr(S_C + 2))
        b.salu("s_mov_b32", sr(S_C + 3), 0x20000)
        if optval("ctd", 0):
            b.raw(f"  s_sleep {optval('ctd', 0)}")
        b.vmem_load("buffer_load_dword", vr(243), vr(V_T0), sr(S_C, 4), sr(S_T0))
    xread_setup(b, V_XB, V_T0, V_T1, V_T2)
    tr192(b, V_TRA, 32, V_T0, V_T1)
    b.valu("v_add_u32", vr(V_TRA), 16384, vr(V_TRA))
    b.valu("v_lshlrev_b32", vr(V_T0), 2, vr(V_L))
    b.valu("v_min_u32", vr(V_T0), 124, vr(V_T0))
    b.valu("v_add_u32", vr(V_T0), SY_OFF, vr(V_T0))
    b.ds_write("ds_write_b32", vr(V_T0), vr(V_Z), 0)
    b.valu("v_mov_b32", vr(V_SY), SY_OFF)
    b.valu("v_and_b32", vr(V_T0), 31, vr(V_L))
    b.valu("v_lshrrev_b32", vr(V_T1), 5, vr(V_L))
    b.valu("v_lshlrev_b32", vr(V_T1), 2, vr(V_T1))
    b.valu("v_sub_u32", vr(V_T0), vr(V_T0), vr(V_T1))
    b.valu("v_mov_b32", vr(V_T1), "0x3f80")
    b.valu("v_mov_b32", vr(V_T2), "0x3f800000")
    for hf in range(2):
        for i in range(4):
            d = 16 * hf + ((2 * i) & 3) + 8 * (i >> 1)
            b.valu("v_cmp_eq_u32", "vcc", d, vr(V_T0))
            b.valu("v_cndmask_b32", vr(V_ID + 4 * hf + i), 0, vr(V_T1))
            b.valu("v_cmp_eq_u32", "vcc", d + 1, vr(V_T0))
            b.valu("v_cndmask_b32", vr(V_ID + 4 * hf + i), vr(V_ID + 4 * hf + i), vr(V_T2))
    b.valu("v_lshlrev_b32", vr(V_STO), 4, vr(V_L))
    b.valu("v_and_b32", vr(V_T0), 15, vr(V_L))
    b.valu("v_lshlrev_b32", vr(V_T0), 4, vr(V_T0))
    b.valu("v_lshrrev_b32", vr(V_T1), 5, vr(V_L))
    b.valu("v_lshl_add_u32", vr(V_T0), vr(V_T1), 8, vr(V_T0))
    b.valu("v_bfe_u32", vr(V_T2), vr(V_L), 4, 1)
    b.valu("v_lshl_add_u32", vr(V_STV), vr(V_T2), 16, vr(V_T0))
    b.valu("v_lshlrev_b32", vr(V_CSRD), 4, vr(V_T1))
    b.valu("v_add_u32", vr(V_CSRD), CS_OFF, vr(V_CSRD))
    common_srds(b)
    if 'tlb' in OPT:
        sh = optval("tsh", 21)
        b.salu("s_cmp_eq_u32", sr(S_R), 2)
        b.salu("s_cselect_b32", sr(S_C), "s16", "s8")
        b.salu("s_cselect_b32", sr(S_C + 1), "s17", "s9")
        b.salu("s_mov_b32", sr(S_C + 2), 512 * 1024)
        b.salu("s_cmp_eq_u32", sr(S_R), 1)
        b.salu("s_cselect_b32", sr(S_C), "s18", sr(S_C))
        b.salu("s_cselect_b32", sr(S_C + 1), "s19", sr(S_C + 1))
        b.salu("s_cselect_b32", sr(S_C + 2), 0x200000, sr(S_C + 2))
        b.salu("s_cmp_eq_u32", sr(S_R), 0)
        b.salu("s_cselect_b32", sr(S_C), "s22", sr(S_C))
        b.salu("s_cselect_b32", sr(S_C + 1), "s23", sr(S_C + 1))
        b.salu("s_cselect_b32", sr(S_C + 2), WS_USED, sr(S_C + 2))
        b.salu("s_mov_b32", sr(S_C + 3), 0x20000)
        b.valu("v_min_u32", vr(V_T0), 63 if sh < 21 else 15, vr(V_L))
        b.valu("v_lshlrev_b32", vr(V_T0), sh, vr(V_T0))
        b.vmem_load("buffer_load_dword", vr(243), vr(V_T0), sr(S_C, 4), "0", mods="sc0 sc1")
    ub_setup(b, V_UB, V_T0, V_T1)

    def prod_loads():
        l1 = b.newlabel("np")
        b.salu("s_cmp_lg_u32", sr(S_R), 0)
        b.branch("s_cbranch_scc1", l1)
        b.opt_begin()
        b.vmem_load("buffer_load_dwordx2", vr(V_NON, 2), vr(V_Z), sr(S_DBG, 4), "0", mods="sc1")
        b.opt_end()
        b.label(l1)
        b.salu("s_lshl_b32", sr(S_T0), sr(S_CC), 13)
        b.salu("s_lshl_b32", sr(S_T1), sr(S_R), 11)
        b.salu("s_add_u32", sr(S_T0), sr(S_T0), sr(S_T1))
        b.valu("v_lshlrev_b32", vr(U0), 5, vr(V_L))
        b.vmem_load("buffer_load_dwordx4", vr(RD_, 4), vr(U0), sr(S_X, 4), sr(S_T0), tag="rl")
        b.vmem_load("buffer_load_dwordx4", vr(RD_ + 4, 4), vr(U0), sr(S_X, 4), sr(S_T0), mods="offset:16", tag="rl")
        b.salu("s_lshr_b32", sr(S_T0), sr(S_RB), 2)
        b.salu("s_and_b32", sr(S_T1), sr(S_RB), 3)
        b.salu("s_cmp_eq_u32", sr(S_T0), 1)
        b.salu("s_cselect_b32", sr(S_C), "s12", "s14")
        b.salu("s_cselect_b32", sr(S_C + 1), "s13", "s15")
        b.salu("s_movk_i32", sr(S_T3), 2752)
        b.salu("s_lshl_b32", sr(S_U0), sr(S_FS), 5)
        b.salu("s_mul_i32", sr(S_U1), sr(S_CC), 192)
        b.salu("s_cmp_eq_u32", sr(S_T0), 0)
        b.salu("s_cselect_b32", sr(S_C), "s6", sr(S_C))
        b.salu("s_cselect_b32", sr(S_C + 1), "s7", sr(S_C + 1))
        b.salu("s_cselect_b32", sr(S_T3), 3072, sr(S_T3))
        b.salu("s_cselect_b32", sr(S_U0), sr(S_U1), sr(S_U0))
        b.salu("s_lshl_b32", sr(S_C + 2), sr(S_T3), 9)
        b.salu("s_cmp_eq_u32" if 'diagf' not in OPT else "s_cmp_ge_u32", sr(S_T0), 3 if 'diagf' not in OPT else 1)
        b.salu("s_cselect_b32", sr(S_C + 2), 0, sr(S_C + 2))
        b.salu("s_mov_b32", sr(S_C + 3), 0x20000)
        b.salu("s_lshl_b32", sr(S_U1), sr(S_T1), 2)
        b.salu("s_add_u32", sr(S_U1), sr(S_U1), sr(S_R))
        b.salu("s_lshl_b32", sr(S_U1), sr(S_U1), 5)
        b.salu("s_mul_i32", sr(S_U1), sr(S_U1), sr(S_T3))
        b.salu("s_add_u32", sr(S_U0), sr(S_U0), sr(S_U1))
        b.valu("v_lshrrev_b32", vr(U0), 4, vr(V_L))
        b.valu("v_mul_u32_u24", vr(U0), sr(S_T3), vr(U0))
        b.valu("v_and_b32", vr(U1), 15, vr(V_L))
        b.valu("v_lshl_add_u32", vr(U0), vr(U1), 4, vr(U0))
        b.valu("v_cmp_gt_u32", "vcc", 12, vr(U1))
        b.valu("v_mov_b32", vr(U1), "0x40000000")
        b.valu("v_cndmask_b32", vr(U0), vr(U1), vr(U0))
        b.salu("s_lshl_b32", sr(S_T3), sr(S_T3), 2)
        for i in range(8):
            b.vmem_load("buffer_load_dwordx4", vr(CD + 4 * i, 4), vr(U0), sr(S_C, 4), sr(S_U0), tag="cl")
            if i < 7:
                b.salu("s_add_u32", sr(S_U0), sr(S_U0), sr(S_T3))
        b.salu("s_lshl_b32", sr(S_CSO), sr(S_CC), 2)
        b.salu("s_add_u32", sr(S_CSO), sr(S_CSO), sr(S_T1))
        b.salu("s_lshl_b32", sr(S_CSO), sr(S_CSO), 12)
        b.salu("s_lshl_b32", sr(S_U0), sr(S_T0), 7)
        b.salu("s_add_u32", sr(S_U0), sr(S_U0), 640)
        b.salu("s_cmp_eq_u32", sr(S_T0), 0)
        b.salu("s_cselect_b32", sr(S_U0), 0, sr(S_U0))
        b.salu("s_add_u32", sr(S_CSO), sr(S_CSO), sr(S_U0))
        b.salu("s_add_u32", sr(S_CSO), sr(S_CSO), CSG)

    def prod_ops():
        ops = []
        Vv = lambda *a, **k: ops.append(lambda: b.valu(*a, **k))
        A = ops.append
        A(lambda: b.wait(vm="rl"))
        if 'pdot' in OPT:
            A(lambda: (b.salu("s_mov_b32", sr(S_T0), "0x3f803f80"), b.salu("s_mov_b32", sr(S_T1), "0x3f80"), b.salu("s_mov_b32", sr(S_T3), "0x3f800000")))
            Vv("v_mov_b32", vr(SU), 0)
            Vv("v_mov_b32", vr(SQ), 0)
            for i in range(8):
                Vv("v_dot2c_f32_bf16", vr(SU), sr(S_T0), vr(RD_ + i))
                Vv("v_dot2c_f32_bf16", vr(SQ), vr(RD_ + i), vr(RD_ + i))
        for i in range(8 if 'pdot' not in OPT else 0):
            Vv("v_lshlrev_b32", vr(U0), 16, vr(RD_ + i))
            Vv("v_and_b32", vr(U1), "0xffff0000", vr(RD_ + i))
            if i == 0:
                Vv("v_add_f32", vr(SU), vr(U0), vr(U1))
                Vv("v_mul_f32", vr(SQ), vr(U0), vr(U0))
            else:
                Vv("v_add_f32", vr(SU), vr(SU), vr(U0))
                Vv("v_fmac_f32", vr(SQ), vr(U0), vr(U0))
                Vv("v_add_f32", vr(SU), vr(SU), vr(U1))
            Vv("v_fmac_f32", vr(SQ), vr(U1), vr(U1))
        Vv("v_permlane16_swap_b32", vr(SU), vr(SQ))
        Vv("v_add_f32", vr(SU), vr(SU), vr(SQ))
        for r in (8, 4, 2, 1):
            Vv("v_add_f32_dpp", vr(SU), vr(SU), vr(SU), mods=f"row_ror:{r} {DPP}")
        Vv("v_mov_b32", vr(SQ), vr(SU))
        Vv("v_permlane16_swap_b32", vr(SU), vr(SQ))
        Vv("v_mul_f32", vr(SU), hex(f32bits(1.0 / 512)), vr(SU))
        Vv("v_mul_f32", vr(SQ), hex(f32bits(1.0 / 512)), vr(SQ))
        Vv("v_fma_f32", vr(SQ), f"-{vr(SU)}", vr(SU), vr(SQ))
        Vv("v_max_f32", vr(SQ), 0, vr(SQ))
        A(lambda: bf16r(b, SQ))
        Vv("v_add_f32", vr(SQ), hex(f32bits(1e-5)), vr(SQ))
        A(lambda: bf16r(b, SQ))
        Vv("v_sqrt_f32", vr(SQ), vr(SQ))
        A(lambda: bf16r(b, SQ))
        Vv("v_rcp_f32", vr(SQ), vr(SQ))
        A(lambda: bf16r(b, SU))
        Vv("v_sub_f32", vr(SU), 0, vr(SU))
        A(lambda: b.wait(vm="cl"))
        for i in range(8):
            for j in range(4):
                src = CD + 4 * i + j
                if i == 0:
                    Vv("v_lshlrev_b32", vr(CA + 2 * j), 16, vr(src))
                    Vv("v_and_b32", vr(CA + 2 * j + 1), "0xffff0000", vr(src))
                elif 'pdot' in OPT:
                    Vv("v_dot2c_f32_bf16", vr(CA + 2 * j), sr(S_T1), vr(src))
                    Vv("v_dot2c_f32_bf16", vr(CA + 2 * j + 1), sr(S_T3), vr(src))
                else:
                    Vv("v_lshlrev_b32", vr(U0), 16, vr(src))
                    Vv("v_and_b32", vr(U1), "0xffff0000", vr(src))
                    Vv("v_add_f32", vr(CA + 2 * j), vr(CA + 2 * j), vr(U0))
                    Vv("v_add_f32", vr(CA + 2 * j + 1), vr(CA + 2 * j + 1), vr(U1))
        for i in range(4):
            Vv("v_permlane32_swap_b32", vr(CA + 2 * i), vr(CA + 2 * i + 1))
        for i in range(4):
            Vv("v_add_f32", vr(CA + 2 * i), vr(CA + 2 * i), vr(CA + 2 * i + 1))
        for i in range(2):
            Vv("v_permlane16_swap_b32", vr(CA + 4 * i), vr(CA + 4 * i + 2))
        for i in range(2):
            Vv("v_add_f32", vr(CA + 4 * i), vr(CA + 4 * i), vr(CA + 4 * i + 2))
        Vv("v_and_b32", vr(U0), 15, vr(V_L))
        Vv("v_lshlrev_b32", vr(U0), 5, vr(U0))
        Vv("v_bfe_u32", vr(U1), vr(V_L), 4, 1)
        Vv("v_lshl_add_u32", vr(U0), vr(U1), 3, vr(U0))
        Vv("v_lshrrev_b32", vr(U1), 5, vr(V_L))
        Vv("v_lshl_add_u32", vr(U0), vr(U1), 2, vr(U0))
        A(lambda: (b.salu("s_lshl_b32", sr(S_U0), sr(S_R), 9), b.salu("s_add_u32", sr(S_U0), sr(S_U0), CP_OFF)))
        Vv("v_add_u32", vr(U0), sr(S_U0), vr(U0))
        A(lambda: (b.ds_write("ds_write_b32", vr(U0), vr(CA), 0), b.ds_write("ds_write_b32", vr(U0), vr(CA + 4), 16)))

        def nonce():
            lok, lp, lsk = b.newlabel("nok"), b.newlabel("nlp"), b.newlabel("nsk")
            b.salu("s_cmp_lg_u32", sr(S_R), 0)
            b.branch("s_cbranch_scc1", lsk)
            b.opt_begin()
            b.label(lp)
            b.valu("v_cmp_eq_u32", "vcc", 0, vr(V_NON + 1))
            b.branch("s_cbranch_vccz", lok)
            b.opt_begin()
            guard(b, lok)
            b.raw("  s_sleep 4")
            b.vmem_load("buffer_load_dwordx2", vr(V_NON, 2), vr(V_Z), sr(S_DBG, 4), "0", mods="sc1")
            b.wait(vm=0)
            b.branch("s_branch", lp)
            b.opt_end()
            b.label(lok)
            b.valu("v_mov_b32", vr(U0), NC_OFF)
            b.ds_write("ds_write_b64", vr(U0), vr(V_NON, 2), 0)
            b.opt_end()
            b.label(lsk)
        A(nonce)
        return ops

    def publish():
        b.valu("v_mov_b32", vr(U0), NC_OFF)
        b.ds_read("ds_read_b64", vr(V_NON, 2), vr(U0), 0, tag="non")
        b.salu("s_lshl_b32", sr(S_U0), sr(S_RB), 11)
        b.salu("s_lshl_b32", sr(S_U1), sr(S_CC), 7)
        b.salu("s_add_u32", sr(S_U0), sr(S_U0), sr(S_U1))
        b.salu("s_lshl_b32", sr(S_U1), sr(S_R), 5)
        b.salu("s_add_u32", sr(S_U0), sr(S_U0), sr(S_U1))
        b.salu("s_add_u32", sr(S_U0), sr(S_U0), RSG)
        b.valu("v_lshrrev_b32", vr(U1), 1, vr(V_L))
        b.wait(lg="non")
        b.salu("s_mov_b32", "exec_lo", 1)
        b.salu("s_mov_b32", "exec_hi", 1)
        b.vmem_store("buffer_store_dwordx4", vr(SU, 4), vr(U1), sr(S_WS, 4), sr(S_U0), mods="sc1")
        b.salu("s_mov_b64", "exec", -1)
        l1 = b.newlabel("cf")
        b.salu("s_cmp_lg_u32", sr(S_R), 3)
        b.branch("s_cbranch_scc1", l1)
        b.opt_begin()
        b.salu("s_cmp_ge_u32", sr(S_RB), 12)
        b.branch("s_cbranch_scc1", l1)
        b.valu("v_lshlrev_b32", vr(U1), 3, vr(V_L))
        b.valu("v_add_u32", vr(U1), CP_OFF, vr(U1))
        for w in range(4):
            b.ds_read("ds_read_b64", vr(CD + 2 * w, 2), vr(U1), w * 512)
        b.valu("v_lshrrev_b32", vr(U1), 3, vr(V_L))
        b.valu("v_lshlrev_b32", vr(U1), 3, vr(U1))
        b.salu("s_cmp_lt_u32", sr(S_RB), 4)
        b.salu("s_cselect_b32", sr(S_U0), 0, -1)
        b.valu("v_and_b32", vr(U1), sr(S_U0), vr(U1))
        b.valu("v_add_u32", vr(U0), vr(V_L), vr(U1))
        b.valu("v_lshlrev_b32", vr(U0), 4, vr(U0))
        b.wait(lg=0)
        for e in range(2):
            b.valu("v_add_f32", vr(SU + e), vr(CD + e), vr(CD + 2 + e))
            b.valu("v_add_f32", vr(CD + 4 + e), vr(CD + 4 + e), vr(CD + 6 + e))
            b.valu("v_add_f32", vr(SU + e), vr(SU + e), vr(CD + 4 + e))
        b.salu("s_mov_b32", "exec_hi", "0xffff")
        b.vmem_store("buffer_store_dwordx4", vr(SU, 4), vr(U0), sr(S_WS, 4), sr(S_CSO), mods="sc1")
        b.salu("s_mov_b32", "exec_hi", -1)
        b.opt_end()
        b.label(l1)
        b.salu("s_lshl_b32", sr(S_U0), sr(S_R), 6)
        b.valu("v_add_u32", vr(U0), sr(S_U0), vr(V_L))
        b.valu("v_mov_b32", vr(U1), 144)
        b.valu("v_cmp_lt_u32", sr(S_CARE, 2), vr(U0), vr(U1))
        b.salu("s_lshl_b32", sr(S_U0), sr(S_CC), 14)
        b.salu("s_add_u32", sr(S_U0), sr(S_U0), CSG)
        b.valu("v_lshl_add_u32", vr(U0), vr(U0), 4, sr(S_U0))
        b.valu("v_mov_b32", vr(U1), "0x40000000")
        b.valu("v_cndmask_b32", vr(G0), vr(U1), vr(U0), sr(S_CARE, 2))
        for i in range(1, 4):
            b.valu("v_add_u32", vr(G0 + i), 4096 * i, vr(G0))
        b.salu("s_lshl_b32", sr(S_U0), sr(S_RB), 11)
        b.salu("s_lshl_b32", sr(S_U1), sr(S_R), 9)
        b.salu("s_add_u32", sr(S_U0), sr(S_U0), sr(S_U1))
        b.salu("s_add_u32", sr(S_U0), sr(S_U0), RSG)
        b.valu("v_and_b32", vr(U0), 31, vr(V_L))
        b.valu("v_lshl_add_u32", vr(G0 + 4), vr(U0), 4, sr(S_U0))

    def gather_issue(tag="ga"):
        for i in range(5):
            b.vmem_load("buffer_load_dwordx4", vr(GA + 4 * i, 4), vr(G0 + i), sr(S_WS, 4), "0", mods="sc1", tag=tag)

    def gather_write():
        lok, lp = b.newlabel("gok"), b.newlabel("gl")
        b.wait(vm="ga")
        b.label(lp)
        b.valu("v_cmp_ne_u64", sr(S_U0, 2), vr(GA + 2, 2), vr(V_NON, 2))
        for i in range(1, 4):
            b.valu("v_cmp_ne_u64", "vcc", vr(GA + 4 * i + 2, 2), vr(V_NON, 2))
            b.salu("s_or_b64", sr(S_U0, 2), sr(S_U0, 2), "vcc")
        b.salu("s_and_b64", sr(S_U0, 2), sr(S_U0, 2), sr(S_CARE, 2))
        b.valu("v_cmp_ne_u64", "vcc", vr(GA + 18, 2), vr(V_NON, 2))
        b.salu("s_or_b64", sr(S_U0, 2), sr(S_U0, 2), "vcc")
        b.branch("s_cbranch_scc0", lok)
        b.opt_begin()
        guard(b, lok)
        b.raw("  s_sleep 4")
        gather_issue(None)
        b.wait(vm=0)
        b.branch("s_branch", lp)
        b.opt_end()
        b.label(lok)
        for e in range(2):
            b.valu("v_add_f32", vr(GA + e), vr(GA + e), vr(GA + 4 + e))
            b.valu("v_add_f32", vr(GA + 8 + e), vr(GA + 8 + e), vr(GA + 12 + e))
            b.valu("v_add_f32", vr(GA + e), vr(GA + e), vr(GA + 8 + e))
        b.valu("v_mov_b32", vr(V_NM), vr(GA + 16))
        b.valu("v_mov_b32", vr(V_RS), vr(GA + 17))
        b.salu("s_min_u32", sr(S_U0), sr(S_R), 2)
        b.salu("s_lshl_b32", sr(S_U0), sr(S_U0), 9)
        b.salu("s_add_u32", sr(S_U0), sr(S_U0), CS_OFF)
        b.valu("v_lshl_add_u32", vr(U0), vr(V_L), 3, sr(S_U0))
        b.salu("s_mov_b64", "exec", sr(S_CARE, 2))
        b.ds_write("ds_write_b64", vr(U0), vr(GA, 2), 0)
        b.salu("s_mov_b64", "exec", -1)
        b.salu("s_lshl_b32", sr(S_U0), sr(S_R), 8)
        b.salu("s_add_u32", sr(S_U0), sr(S_U0), ST_OFF)
        b.valu("v_and_b32", vr(U0), 31, vr(V_L))
        b.valu("v_lshl_add_u32", vr(U0), vr(U0), 3, sr(S_U0))
        b.ds_write("ds_write_b64", vr(U0), vr(V_NM, 2), 0)

    LA = 6
    NFA = 96

    def read_a(f):
        ks, blk = divmod(f, 3)
        t, s = divmod(ks, 4)
        if blk == 0:
            b.ds_read("ds_read_b128", vr(V_XF + 4 * (ks % 3), 4), vr(V_XB + s), (t % 3) * PA, tag=f"x{ks}")
        r0 = V_RING + 4 * (f % 9)
        for q in range(2):
            off = (t % 3) * PA + s * 3072 + q * 768 + blk * 64
            if off >= 65536:
                a_, off = V_TRA2, off - 2 * PA
            else:
                a_ = V_TRA
            b.ds_read("ds_read_b64_tr_b16", vr(r0 + 2 * q, 2), vr(a_), off, tag=f"w{f}")
    V_TRA2 = V_RSS
    b.valu("v_add_u32", vr(V_TRA2), 2 * PA, vr(V_TRA))
    FPC, FPE = optval("fpc", 9), optval("fpe", 41)
    pops = prod_ops()
    nper = -(-len(pops) // (FPE - FPC))
    hooks = {}
    for f in range(FPC, FPE):
        hooks[f] = (lambda ops=pops[(f - FPC) * nper:(f - FPC + 1) * nper]: [o() for o in ops])
    hooks[optval("fpl", 2)] = prod_loads
    if 'diagt' in OPT:
        def late_touch():
            b.salu("s_cmp_eq_u32", sr(S_R), 2)
            b.salu("s_cselect_b32", sr(S_WA), "s12", "s14")
            b.salu("s_cselect_b32", sr(S_WA + 1), "s13", "s15")
            b.salu("s_cmp_ge_u32", sr(S_R), 2)
            b.salu("s_cselect_b32", sr(S_WA + 2), 512 * 2752, 0)
            b.salu("s_lshl_b32", sr(S_T2), "s2", 13)
            b.valu("v_lshlrev_b32", vr(241), 7, vr(V_L))
            b.vmem_load("buffer_load_dword", vr(243), vr(241), sr(S_WA, 4), sr(S_T2))
        prev = hooks.get(optval("flt", 24))
        hooks[optval("flt", 24)] = lambda: (prev() if prev else None, late_touch())
    hooks[optval("fpu", 44)] = publish
    if 'mlg' in OPT:
        hooks[optval("fgi", 72)] = lambda: (w2_touch_mall(b, S_C, U0, 242), gather_issue())
    elif 'mlp' in OPT:
        hooks[optval("fpl", 2)] = lambda: (prod_loads(), w2_touch_mall(b, S_WA, U0, 242))
        hooks[optval("fgi", 72)] = gather_issue
    else:
        hooks[optval("fml", 66)] = lambda: w2_touch_mall(b, S_C, U0, 242)
        hooks[optval("fgi", 72)] = gather_issue
    hooks[optval("fgw", 88)] = gather_write
    ubq = [(t, n) for t in range(12, 14) for n in range(6)]

    def ub_issue(k):
        for _ in range(k):
            if ubq:
                t, n = ubq.pop(0)
                ub_step(b, V_UB, t, n)
    b.wait(lg=0)
    b.barrier()
    stamp(b, 1)
    for f in range(LA):
        read_a(f)
    for f in range(NFA):
        nf = f + LA
        if nf % 12 == 0:
            b.wait(lg=0)
            b.barrier()
            if nf // 12 in (2, 4, 8):
                stamp(b, {2: 2, 4: 3, 8: 4}[nf // 12])
            if nf == NFA:
                b.raw(f"  s_setprio {optval('pre', 3)}")
        if nf < NFA:
            read_a(nf)
        ks, blk = divmod(f, 3)
        b.wait(lg=[f"w{f}", f"x{ks}"])
        acc = V_ACC + 16 * blk
        b.mfma(vr(acc, 16), vr(V_RING + 4 * (f % 9), 4), vr(V_XF + 4 * (ks % 3), 4), "0" if ks == 0 else vr(acc, 16))
        if f in hooks:
            hooks[f]()
        if 'ue' in OPT and nf >= NFA:
            ub_issue(2)

    def csrd(n):
        blk, hf = divmod(n, 2)
        T = TS[n % 2]
        b.ds_read("ds_read_b128", vr(T, 4), vr(V_CSRD), blk * 128 + hf * 64, tag=f"c{n}")
        b.ds_read("ds_read_b128", vr(T + 4, 4), vr(V_CSRD), blk * 128 + hf * 64 + 32, tag=f"c{n}")
    b.raw(f"  s_setprio {optval('pre', 3)}")
    csrd(0)
    b.salu("s_mul_i32", sr(S_T3), sr(S_CC), 3)
    b.salu("s_lshl_b32", sr(S_T0), sr(S_RB), 2)
    b.salu("s_add_u32", sr(S_T0), sr(S_T0), sr(S_R))
    b.salu("s_lshl_b32", sr(S_E), sr(S_T0), 10)
    for blk in range(3):
        acc = V_ACC + 16 * blk
        b.salu("s_add_u32", sr(S_T0), sr(S_T3), blk)
        b.salu("s_cmp_lt_u32", sr(S_T0), 16)
        b.salu("s_cselect_b32", sr(S_T1), hex(f32bits(QSCALE)), "1.0")
        b.valu("v_mul_f32", vr(V_T0), sr(S_T1), vr(V_RS))
        b.salu("s_lshl_b32", sr(S_U0), sr(S_T0), 17)
        b.salu("s_add_u32", sr(S_U0), sr(S_U0), sr(S_E))
        b.salu("s_add_u32", sr(S_U1), sr(S_U0), 65536)
        for hf in range(2):
            n = 2 * blk + hf
            T = TS[n % 2]
            if n + 1 < 6:
                csrd(n + 1)
            b.wait(lg=f"c{n}")
            for i in range(8):
                b.valu("v_fmac_f32", vr(acc + 8 * hf + i), vr(V_NM), vr(T + i))
            for i in range(8):
                b.valu("v_mul_f32", vr(acc + 8 * hf + i), vr(V_T0), vr(acc + 8 * hf + i))
            for i in range(4):
                b.valu("v_cvt_pk_bf16_f32", vr(acc + 8 * hf + i), vr(acc + 8 * hf + 2 * i), vr(acc + 8 * hf + 2 * i + 1))
        lv, lj = b.newlabel("ev"), b.newlabel("ej")
        b.salu("s_cmp_ge_u32", sr(S_T0), 32)
        b.branch("s_cbranch_scc1", lv)
        b.opt_begin()
        b.par = list(range(8))
        b.vmem_store("buffer_store_dwordx4", vr(acc, 4), vr(V_STO), sr(S_WS, 4), sr(S_U0), mods="sc1", tag="st")
        b.vmem_store("buffer_store_dwordx4", vr(acc + 8, 4), vr(V_STO), sr(S_WS, 4), sr(S_U1), mods="sc1", tag="st")
        b.par = None
        b.branch("s_branch", lj)
        b.opt_end()
        b.label(lv)
        b.opt_begin()
        b.par = []
        b.mfma(vr(V_D2, 16), vr(acc, 4), vr(V_ID, 4), "0")
        b.mfma(vr(V_D2, 16), vr(acc + 8, 4), vr(V_ID + 4, 4), vr(V_D2, 16))
        for i in range(8):
            b.valu("v_cvt_pk_bf16_f32", vr(acc + i), vr(V_D2 + 2 * i), vr(V_D2 + 2 * i + 1))
        b.vmem_store("buffer_store_dwordx4", vr(acc, 4), vr(V_STV), sr(S_WS, 4), sr(S_U0), mods="sc1", tag="st")
        b.vmem_store("buffer_store_dwordx4", vr(acc + 4, 4), vr(V_STV), sr(S_WS, 4), sr(S_U0), mods="offset:512 sc1", tag="st")
        b.par = None
        b.opt_end()
        b.label(lj)
        if 'ue' in OPT:
            if blk == 0:
                b.wait(vm="U12")
                lds_signal(b, LAND, 12, V_T1)
            if blk >= 1 and 'ue2' in OPT:
                t = 13 + blk
                lds_check_issue(b, CONS, V_SY, V_D2, f"k{t}")
                lds_check(b, CONS, t - 6, V_SY, V_D2, f"k{t}")
                for n in range(6):
                    ub_step(b, V_UB, t, n)
            if blk == 1:
                b.wait(vm="U13")
                lds_signal(b, LAND, 13, V_T1)
    stamp(b, 5)
    b.salu("s_lshl_b32", sr(S_T3), sr(S_RB), 4)
    b.salu("s_add_u32", sr(S_T3), sr(S_T3), sr(S_CC))
    b.salu("s_lshl_b32", sr(S_T3), sr(S_T3), 7)
    b.salu("s_add_u32", sr(S_T3), sr(S_T3), F0)
    if 'ue2' in OPT:
        b.wait(vm="st")
        lds_signal(b, LAND, 14, V_T0)
    else:
        b.wait(vm=0)
    arrive(b, CNT, S_T3, V_T0)
    b.raw(f"  s_setprio {optval('pr0', 1)}")
    stamp(b, 6)
    attn(b, ub_issue, V_UB, V_SY)
    print("p0 instrs", b.ninstr)
    return b.text()


def attn(b, ub_issue, V_UB, V_SY):
    V_QO, V_VO, V_T0, V_T1, V_M0, V_M1, V_BIG = 1, 2, 3, 4, 5, 6, 7
    V_NEG = 10
    V_MSK = 12
    V_Q = 20
    V_K = 28
    V_V = 68
    V_B0, V_B1, V_CN, V_O, V_SM = 148, 164, 180, 196, 212
    V_C = 228
    S_KO, S_VO, S_EXV = 24, 10, 44
    S_RQ, S_HD, S_SO, S_NF, S_QB = 46, 47, 60, 61, 96
    ub_issue(6)
    b.salu("s_and_b32", sr(S_T0), "s2", 7)
    b.salu("s_lshl_b32", sr(S_HD), sr(S_T0), 2)
    b.salu("s_add_u32", sr(S_HD), sr(S_HD), sr(S_R))
    b.salu("s_lshr_b32", sr(S_RQ), "s2", 3)
    b.valu("v_and_b32", vr(V_T0), 3, vr(V_L))
    b.valu("v_min_u32", vr(V_T0), 2, vr(V_T0))
    b.valu("v_bfe_u32", vr(V_T1), vr(V_L), 2, 1)
    b.valu("v_lshl_add_u32", vr(V_T0), vr(V_T0), 4, vr(V_T1))
    b.salu("s_lshl_b32", sr(S_T0), sr(S_T0), 1)
    b.valu("v_add_u32", vr(V_T0), sr(S_T0), vr(V_T0))
    b.valu("v_mul_u32_u24", vr(V_T0), 21846, vr(V_T0))
    b.valu("v_lshrrev_b32", vr(V_T0), 16, vr(V_T0))
    b.valu("v_bfe_u32", vr(V_T1), vr(V_L), 3, 2)
    b.valu("v_min_u32", vr(V_T1), 2, vr(V_T1))
    b.salu("s_lshr_b32", sr(S_T1), sr(S_RQ), 1)
    b.valu("v_sub_u32", vr(V_T1), sr(S_T1), vr(V_T1))
    b.valu("v_max_i32", vr(V_T1), 0, vr(V_T1))
    b.valu("v_lshl_add_u32", vr(V_T0), vr(V_T1), 4, vr(V_T0))
    b.valu("v_lshlrev_b32", vr(V_T0), 7, vr(V_T0))
    b.valu("v_add_u32", vr(V_B0), F0, vr(V_T0))
    b.salu("s_lshl_b32", sr(S_QB), sr(S_HD), 16)
    b.salu("s_lshl_b32", sr(S_T1), sr(S_RQ), 11)
    b.salu("s_add_u32", sr(S_QB), sr(S_QB), sr(S_T1))
    b.valu("v_lshlrev_b32", vr(V_QO), 4, vr(V_L))
    b.salu("s_lshl_b32", sr(S_T1), sr(S_HD), 16)
    for m in range(5):
        b.salu("s_add_i32", sr(S_T0), sr(S_QB), -8192 + 2048 * m)
        b.salu("s_max_i32", sr(S_T0), sr(S_T0), sr(S_T1))
        b.salu("s_add_u32", sr(S_KO + m), sr(S_T0), KF)
        b.salu("s_add_u32", sr(S_VO + m), sr(S_T0), VF)
    b.valu("v_and_b32", vr(V_T0), 15, vr(V_L))
    b.valu("v_lshlrev_b32", vr(V_T0), 4, vr(V_T0))
    b.valu("v_lshrrev_b32", vr(V_T1), 5, vr(V_L))
    b.valu("v_lshl_add_u32", vr(V_VO), vr(V_T1), 8, vr(V_T0))
    b.salu("s_mov_b32", sr(S_EXV), "0xffff")
    b.salu("s_mov_b32", sr(S_EXV + 1), "0xffff")
    ub_issue(6)
    b.valu("v_and_b32", vr(V_T0), 31, vr(V_L))
    b.valu("v_lshlrev_b32", vr(V_T1), 2, vr(V_T1))
    b.valu("v_sub_u32", vr(V_T0), vr(V_T0), vr(V_T1))
    for r in range(16):
        b.valu("v_cmp_le_i32", sr(S_MASK + 2 * r, 2), (r & 3) + 8 * (r >> 2), vr(V_T0))
    b.valu("v_mov_b32", vr(V_BIG), hex(f32bits(-1e30)))
    b.valu("v_mov_b32", vr(V_T0), "0xffff")
    b.valu("v_mov_b32", vr(V_T1), "0xffff0000")
    for i in range(8):
        b.valu("v_cndmask_b32", vr(V_MSK + i), 0, vr(V_T0), sr(S_MASK + 4 * i, 2))
        b.valu("v_cndmask_b32", vr(V_M0), 0, vr(V_T1), sr(S_MASK + 4 * i + 2, 2))
        b.valu("v_or_b32", vr(V_MSK + i), vr(V_MSK + i), vr(V_M0))
    if 'ue' not in OPT:
        b.wait(vm="U12")
        lds_signal(b, LAND, 12, V_T0)
    b.valu("v_mov_b32", vr(V_NEG), "0x3f803f80")
    b.valu("v_mov_b32", vr(V_NEG + 1), "0x3f803f80")
    for i in range(40):
        if 'pk' in OPT:
            b.valu("v_mov_b64", vr(V_V + 2 * i, 2), vr(V_NEG, 2))
        else:
            b.valu("v_mov_b32", vr(V_V + 2 * i), vr(V_NEG))
            b.valu("v_mov_b32", vr(V_V + 2 * i + 1), vr(V_NEG))
    b.salu("s_lshl_b32", sr(S_T1), sr(S_RQ), 16)
    b.salu("s_lshl_b32", sr(S_SO), sr(S_HD), 11)
    b.salu("s_add_u32", sr(S_SO), sr(S_SO), sr(S_T1))
    b.salu("s_add_u32", sr(S_SO), sr(S_SO), OF)
    for t in ((14, 15) if 'ue2' not in OPT else ()):
        lds_check_issue(b, CONS, V_SY, V_C, f"k{t}")
        lds_check(b, CONS, t - 6, V_SY, V_C, f"k{t}")
        for n in range(6):
            ub_step(b, V_UB, t, n)
        b.wait(vm=f"U{t-1}")
        lds_signal(b, LAND, t - 1, V_T0)
    b.vmem_load("buffer_load_dwordx2", vr(V_B0 + 2, 2), vr(V_B0), sr(S_WS, 4), "0", mods="sc1", tag="fl")
    if 'nol2pf0' not in OPT:
        w2_touch_l2(b, S_DBG, 232, 233)
    b.wait(vm="U15")
    lds_signal(b, LAND, 15, V_T0)
    poll(b, V_B0 + 2, V_B0, first_issued=True)
    stamp(b, 7)

    def load_k(n):
        off = (n % 2) * 1024
        b.vmem_load("buffer_load_dwordx4", vr(V_K + 4 * n, 4), vr(V_QO), sr(S_WS, 4), sr(S_KO + n // 2),
                    mods=(f"offset:{off} " if off else "") + "sc1", tag=f"k{n}")

    def load_v(ns):
        b.salu("s_mov_b64", "exec", sr(S_EXV, 2))
        for n in ns:
            for mf in range(2):
                off = (n % 2) * 1024 + mf * 512
                b.vmem_load("buffer_load_dwordx4", vr(V_V + 8 * n + 4 * mf, 4), vr(V_VO), sr(S_WS, 4), sr(S_VO + n // 2),
                            mods=(f"offset:{off} " if off else "") + "sc1", tag=f"v{n}")
        b.salu("s_mov_b64", "exec", -1)
    b.vmem_load("buffer_load_dwordx4", vr(V_Q, 4), vr(V_QO), sr(S_WS, 4), sr(S_QB), mods="sc1", tag="q0")
    for n in [0, 8, 7, 6, 5, 4, 3, 2, 1]:
        load_k(n)
    load_v([8, 0, 7, 6, 5, 4, 3, 2, 1, 9])
    b.vmem_load("buffer_load_dwordx4", vr(V_Q + 4, 4), vr(V_QO), sr(S_WS, 4), sr(S_QB), mods="offset:1024 sc1", tag="q1")
    load_k(9)
    if 'l2pf' in OPT:
        w2_touch_l2(b, S_DBG, 232, 233)
    stamp(b, 8)
    stubs = []
    for task in range(2):
        q = vr(V_Q + 4 * task, 4)
        Kf = lambda j: vr(V_K + 4 * (8 + task - j), 4)
        Vf = lambda j, mf: vr(V_V + 8 * (8 + task - j) + 4 * mf, 4)
        ktag = lambda j: f"k{8 + task - j}"
        vtag = lambda j: f"v{8 + task - j}"
        b.salu("s_lshl_b32", sr(S_T1), sr(S_RQ), 1)
        b.salu("s_add_u32", sr(S_T1), sr(S_T1), task)
        b.salu("s_min_u32", sr(S_NF), sr(S_T1), 7)
        L1, L2 = b.newlabel("p1"), b.newlabel("p2")
        bufs = [V_CN, V_O, V_B0, V_B1]
        if task == 1:
            b.wait(vm="k9")
        b.wait(vm=[f"q{task}", ktag(8)])
        b.mfma(vr(V_B0, 16), Kf(8), q, "0")
        b.wait(vm=ktag(0))
        b.mfma(vr(V_B1, 16), Kf(0), q, "0")
        for j in (1, 2):
            b.wait(vm=ktag(j))
            b.mfma(vr(bufs[(j - 1) % 4], 16), Kf(j), q, "0")
        lm1, lm2 = b.newlabel("m1"), b.newlabel("m2")
        b.nop(8)
        b.salu("s_cmp_lt_u32", sr(S_T1), 8)
        b.branch("s_cbranch_scc1", lm1)
        for r in range(16):
            b.valu("v_cndmask_b32", vr(V_SM + r), vr(V_B0 + r), vr(V_B1 + r), sr(S_MASK + 2 * r, 2))
        b.label(lm2)
        st = [f"{lm1}:", "  s_nop 7"]
        for r in range(16):
            st.append(f"  v_cndmask_b32 {vr(V_SM + r)}, {vr(V_BIG)}, {vr(V_B1 + r)}, {sr(S_MASK + 2 * r, 2)}")
        st.append(f"  s_branch {lm2}")
        stubs.append("\n".join(st))

        def maxtree(buf, first):
            for i in range(8):
                m = V_M0 + (i % 2)
                if first and i < 2:
                    b.valu("v_max_f32", vr(m), vr(buf + 2 * i), vr(buf + 2 * i + 1))
                else:
                    b.valu("v_max3_f32", vr(m), vr(buf + 2 * i), vr(buf + 2 * i + 1), vr(m))
        maxtree(V_SM, True)
        for j in range(1, 8):
            b.salu("s_cmp_lt_u32", sr(S_NF), j)
            b.branch("s_cbranch_scc1", L1)
            if j + 2 <= 7:
                b.wait(vm=ktag(j + 2))
                b.mfma(vr(bufs[(j + 1) % 4], 16), Kf(j + 2), q, "0")
            maxtree(bufs[(j - 1) % 4], False)
        b.label(L1)
        b.valu("v_max_f32", vr(V_M0), vr(V_M0), vr(V_M1))
        b.valu("v_mov_b32", vr(V_M1), vr(V_M0))
        b.valu("v_permlane32_swap_b32", vr(V_M1), vr(V_M0))
        b.valu("v_max_f32", vr(V_M0), vr(V_M0), vr(V_M1))
        b.valu("v_sub_f32", vr(V_NEG), 0, vr(V_M0))
        b.valu("v_sub_f32", vr(V_NEG + 1), 0, vr(V_M0))
        b.nop(2)
        for i in range(8):
            if 'pk' in OPT:
                b.valu("v_mov_b64", vr(V_CN + 2 * i, 2), vr(V_NEG, 2))
            else:
                b.valu("v_mov_b32", vr(V_CN + 2 * i), vr(V_NEG))
                b.valu("v_mov_b32", vr(V_CN + 2 * i + 1), vr(V_NEG))
        bufs2 = [V_B0, V_B1, V_SM]
        b.mfma(vr(V_B0, 16), Kf(1), q, vr(V_CN, 16))
        for r in range(8):
            if 'pk' in OPT:
                b.valu("v_pk_add_f32", vr(V_SM + 2 * r, 2), vr(V_SM + 2 * r, 2), vr(V_NEG, 2))
            else:
                b.valu("v_add_f32", vr(V_SM + 2 * r), vr(V_NEG), vr(V_SM + 2 * r))
                b.valu("v_add_f32", vr(V_SM + 2 * r + 1), vr(V_NEG), vr(V_SM + 2 * r + 1))
        b.mfma(vr(V_B1, 16), Kf(2), q, vr(V_CN, 16))

        def expcvt(buf, inserts):
            for r in range(16):
                if r in inserts:
                    inserts[r]()
                b.valu("v_exp_f32", vr(buf + r), vr(buf + r))
                if r % 2 == 1 and r >= 3:
                    i = (r - 3) // 2
                    b.valu("v_cvt_pk_bf16_f32", vr(buf + i), vr(buf + 2 * i), vr(buf + 2 * i + 1))
            b.valu("v_cvt_pk_bf16_f32", vr(buf + 7), vr(buf + 14), vr(buf + 15))
        expcvt(V_SM, {})
        for i in range(8):
            b.valu("v_and_b32", vr(V_SM + 8 + i), vr(V_MSK + i), vr(V_SM + i))
        for i in range(8):
            b.valu("v_xor_b32", vr(V_SM + i), vr(V_SM + i), vr(V_SM + 8 + i))
        b.wait(vm=[vtag(0), vtag(8), "k1"])
        b.mfma(vr(V_O, 16), Vf(0, 0), vr(V_SM + 8, 4), "0")
        pend = [(Vf(0, 1), vr(V_SM + 12, 4)), (Vf(8, 0), vr(V_SM, 4)), (Vf(8, 1), vr(V_SM + 4, 4))]
        for j in range(1, 9):
            if j <= 7:
                lx = b.newlabel("x")
                b.salu("s_cmp_lt_u32", sr(S_NF), j)
                b.branch("s_cbranch_scc1", lx)
                st = [f"{lx}:", "  s_waitcnt vmcnt(0)", "  s_nop 1"]
                for (a_, p_) in pend:
                    st.append(f"  v_mfma_f32_32x32x16_bf16 {vr(V_O, 16)}, {a_}, {p_}, {vr(V_O, 16)}")
                st.append(f"  s_branch {L2}")
                stubs.append("\n".join(st))
                buf = bufs2[(j - 1) % 3]
                ins = {}
                pos = [0, 4, 8, 12] if len(pend) == 3 else [0, 5, 10]
                if j > 1:
                    b.wait(vm=vtag(j - 1))
                for n_, (a_, p_) in enumerate(pend):
                    ins[pos[n_]] = (lambda a_=a_, p_=p_: b.mfma(vr(V_O, 16), a_, p_, vr(V_O, 16)))
                if j + 2 <= 7:
                    ins[pos[len(pend)]] = (lambda j=j: b.mfma(vr(bufs2[(j + 1) % 3], 16), Kf(j + 2), q, vr(V_CN, 16)))
                expcvt(buf, ins)
                pend = [(Vf(j, 0), vr(buf, 4)), (Vf(j, 1), vr(buf + 4, 4))]
            else:
                b.wait(vm=vtag(7))
                for (a_, p_) in pend:
                    b.mfma(vr(V_O, 16), a_, p_, vr(V_O, 16))
        b.label(L2)
        b.valu("v_rcp_f32", vr(V_NEG), vr(V_O + 8))
        b.valu("v_mov_b32", vr(V_NEG + 1), vr(V_NEG))
        for i in range(4):
            if 'pk' in OPT:
                b.valu("v_pk_mul_f32", vr(V_O + 2 * i, 2), vr(V_O + 2 * i, 2), vr(V_NEG, 2))
            else:
                b.valu("v_mul_f32", vr(V_O + 2 * i), vr(V_NEG), vr(V_O + 2 * i))
                b.valu("v_mul_f32", vr(V_O + 2 * i + 1), vr(V_NEG), vr(V_O + 2 * i + 1))
        for i in range(4):
            b.valu("v_cvt_pk_bf16_f32", vr(V_SM + i), vr(V_O + 2 * i), vr(V_O + 2 * i + 1))
        b.vmem_store("buffer_store_dwordx4", vr(V_SM, 4), vr(V_QO), sr(S_WS, 4), sr(S_SO),
                     mods=(f"offset:{1024*task} " if task else "") + "sc1", tag="ost")
        stamp(b, 9 + task)
    S_O, S_XO, S_OUT = 64, 68, 72
    S_RB2, S_CB, S_F = 76, 77, 78
    V_FO, V_OO, V_XOFF, V_TW0, V_TW1, V_EW, V_ER, V_RA, V_RA2 = 12, 13, 14, 15, 16, 17, 18, 19, 8
    V_XR = 20
    V_A = 28
    V_W2 = 92
    V_AC = 124
    V_R = 156
    X = 236
    b.salu("s_lshl_b32", sr(S_F), "s2", 7)
    b.salu("s_add_u32", sr(S_F), sr(S_F), F2)
    dec2(b, S_RB2, S_CB)
    b.salu("s_lshl_b32", sr(S_T0), sr(S_RB2), 16)
    b.salu("s_add_u32", sr(S_T1), sr(S_T0), OF)
    srd(b, S_O, "s22", "s23", 65536, add=sr(S_T1))
    if 'fakeo' in OPT:
        srd(b, S_O, "s8", "s9", 65536)
    srd(b, S_XO, "s4", "s5", 65536, add=sr(S_T0))
    srd(b, S_OUT, "s18", "s19", 65536, add=sr(S_T0))
    b.valu("v_lshrrev_b32", vr(V_T0), 5, vr(V_L))
    b.valu("v_lshlrev_b32", vr(V_T0), 2, vr(V_T0))
    b.valu("v_bfe_u32", vr(V_T1), vr(V_L), 2, 2)
    b.valu("v_add_u32", vr(V_T0), vr(V_T0), vr(V_T1))
    b.valu("v_and_b32", vr(V_M0), 3, vr(V_L))
    b.valu("v_lshlrev_b32", vr(V_M0), 3, vr(V_M0))
    b.valu("v_lshl_add_u32", vr(V_T0), vr(V_T0), 7, vr(V_M0))
    b.valu("v_lshrrev_b32", vr(V_T1), 1, vr(V_T1))
    b.valu("v_bfe_u32", vr(V_M0), vr(V_L), 4, 1)
    b.valu("v_lshl_add_u32", vr(V_T1), vr(V_T1), 1, vr(V_M0))
    b.valu("v_lshl_add_u32", vr(V_T0), vr(V_T1), 5, vr(V_T0))
    b.salu("s_and_b32", sr(S_T0), sr(S_R), 1)
    b.salu("s_lshl_b32", sr(S_T0), sr(S_T0), 6)
    b.valu("v_xor_b32", vr(V_T0), sr(S_T0), vr(V_T0))
    b.salu("s_lshl_b32", sr(S_T1), sr(S_T0), 9)
    b.salu("s_add_u32", sr(S_T1), sr(S_T1), WO_OFF)
    b.valu("v_add_u32", vr(V_TW0), sr(S_T1), vr(V_T0))
    b.valu("v_xor_b32", vr(V_TW1), 64, vr(V_TW0))
    b.salu("s_lshl_b32", sr(S_T1), sr(S_T0), 3)
    b.salu("s_lshl_b32", sr(S_T0), sr(S_RB2), 10)
    b.salu("s_add_u32", sr(S_T0), sr(S_T0), sr(S_T1))
    b.salu("s_add_u32", sr(S_T0), sr(S_T0), F2)
    b.valu("v_and_b32", vr(V_T0), 3, vr(V_L))
    b.valu("v_lshlrev_b32", vr(V_T0), 7, vr(V_T0))
    b.valu("v_add_u32", vr(V_FO), sr(S_T0), vr(V_T0))
    b.salu("s_lshl_b32", sr(S_T0), sr(S_R), 12)
    b.valu("v_add_u32", vr(V_RA), sr(S_T0), vr(V_QO))
    b.valu("v_add_u32", vr(V_RA2), 2 * RING, vr(V_RA))
    b.valu("v_add_u32", vr(V_EW), EX_OFF, vr(V_RA))
    b.valu("v_xor_b32", vr(V_ER), 4096, vr(V_RA))
    b.valu("v_add_u32", vr(V_ER), EX_OFF, vr(V_ER))
    b.salu("s_lshr_b32", sr(S_T0), sr(S_R), 1)
    b.salu("s_and_b32", sr(S_T1), sr(S_R), 1)
    b.salu("s_lshl_b32", sr(S_T1), sr(S_T1), 5)
    b.salu("s_add_u32", sr(S_T1), sr(S_T1), sr(S_T0))
    b.salu("s_lshl_b32", sr(S_T1), sr(S_T1), 10)
    b.valu("v_add_u32", vr(V_OO), sr(S_T1), vr(V_QO))
    b.salu("s_lshl_b32", sr(S_T0), sr(S_T0), 15)
    b.salu("s_lshl_b32", sr(S_T1), sr(S_CB), 7)
    b.salu("s_add_u32", sr(S_T0), sr(S_T0), sr(S_T1))
    b.salu("s_and_b32", sr(S_T1), sr(S_R), 1)
    b.salu("s_lshl_b32", sr(S_T1), sr(S_T1), 6)
    b.salu("s_add_u32", sr(S_T0), sr(S_T0), sr(S_T1))
    b.valu("v_and_b32", vr(V_T0), 31, vr(V_L))
    b.valu("v_lshlrev_b32", vr(V_T0), 10, vr(V_T0))
    b.valu("v_lshrrev_b32", vr(V_T1), 5, vr(V_L))
    b.valu("v_lshl_add_u32", vr(V_T0), vr(V_T1), 4, vr(V_T0))
    b.valu("v_add_u32", vr(V_XOFF), sr(S_T0), vr(V_T0))
    b.wait(vm=0)
    arrive(b, CNT + 8, S_F, V_T0)
    b.raw("  s_setprio 0")
    stamp(b, 11)
    b.vmem_load("buffer_load_dwordx4", vr(V_XR, 4), vr(V_XOFF), sr(S_XO, 4), "0", tag="xr")
    b.vmem_load("buffer_load_dwordx4", vr(V_XR + 4, 4), vr(V_XOFF), sr(S_XO, 4), "0", mods="offset:32", tag="xr")
    lds_check_issue(b, WOL, V_SY, V_R + 4, "wl")
    b.wait(vm="xr")
    for e in range(2):
        for i in range(4):
            b.valu("v_lshlrev_b32", vr(V_AC + 8 * e + 2 * i), 16, vr(V_XR + 4 * e + i))
            b.valu("v_and_b32", vr(V_AC + 8 * e + 2 * i + 1), "0xffff0000", vr(V_XR + 4 * e + i))
    for e in range(2):
        for i in range(4):
            b.valu("v_permlane32_swap_b32", vr(V_AC + 8 * e + i), vr(V_AC + 8 * e + 4 + i))
    if 'ot' in OPT:
        b.valu("v_and_b32", vr(V_T0), 15, vr(V_L))
        b.valu("v_lshrrev_b32", vr(V_T1), 3, vr(V_T0))
        b.valu("v_and_b32", vr(V_T0), 7, vr(V_T0))
        b.valu("v_lshlrev_b32", vr(V_T0), 7, vr(V_T0))
        b.valu("v_lshl_add_u32", vr(V_T0), vr(V_T1), 11, vr(V_T0))
        b.valu("v_readfirstlane_b32", sr(S_T0), vr(V_OO))
        b.salu("s_lshl_b32", sr(S_T1), sr(S_CB), 12)
        b.salu("s_add_u32", sr(S_T0), sr(S_T0), sr(S_T1))
    lds_check(b, WOL, 1, V_SY, V_R + 4, "wl", slp=4)
    poll(b, V_R, V_FO)
    stamp(b, 12)
    if 'ot' in OPT:
        b.vmem_load("buffer_load_dword", vr(V_T1), vr(V_T0), sr(S_O, 4), sr(S_T0), mods="sc1", tag="ot")
    for s in range(16):
        if s % 2 == 0 and s:
            b.salu("s_mov_b32", sr(S_SO), (s // 2) * 4096)
        b.vmem_load("buffer_load_dwordx4", vr(V_A + 4 * s, 4), vr(V_OO), sr(S_O, 4), sr(S_SO) if s >= 2 else "0",
                    mods=("offset:2048 " if s % 2 else "") + "sc1", tag=f"o{s}")

    def read_wo(s):
        for j in range(2):
            for q in range(2):
                b.ds_read("ds_read_b64_tr_b16", vr(V_W2 + 8 * (s % 4) + 4 * j + 2 * q, 2), vr(V_TW1 if j else V_TW0), s * 2048 + q * 1024, tag=f"u{s}")
    for s in range(3):
        read_wo(s)
    for s in range(16):
        if s + 3 < 16:
            read_wo(s + 3)
        b.wait(vm=f"o{s}", lg=f"u{s}")
        b.mfma(vr(V_AC + 16, 16), vr(V_W2 + 8 * (s % 4) + 4, 4), vr(V_A + 4 * s, 4), vr(V_AC + 16, 16) if s else "0")
        b.mfma(vr(V_AC, 16), vr(V_W2 + 8 * (s % 4), 4), vr(V_A + 4 * s, 4), vr(V_AC, 16))
    for g in range(4):
        b.ds_write("ds_write_b128", vr(V_EW), vr(V_AC + 16 + 4 * g, 4), g * 1024)
    b.wait(lg=0)
    stamp(b, 13)
    b.barrier()
    for g in range(4):
        for P in range(4):
            b.ds_read("ds_read_b128", vr(V_R + 20 * g + 4 * P, 4), vr(V_RA if P < 2 else V_RA2), (P % 2) * RING + g * 1024, tag=f"r{g}")
        b.ds_read("ds_read_b128", vr(V_R + 20 * g + 16, 4), vr(V_ER), g * 1024, tag=f"r{g}")
    for g in range(4):
        R = V_R + 20 * g
        b.wait(lg=f"r{g}")
        for i in range(4):
            b.valu("v_add_f32", vr(R + i), vr(R + i), vr(R + 4 + i))
            b.valu("v_add_f32", vr(R + 8 + i), vr(R + 8 + i), vr(R + 12 + i))
            b.valu("v_add_f32", vr(V_AC + 4 * g + i), vr(V_AC + 4 * g + i), vr(R + 16 + i))
        for i in range(4):
            b.valu("v_add_f32", vr(R + i), vr(R + i), vr(R + 8 + i))
        for i in range(4):
            b.valu("v_add_f32", vr(V_AC + 4 * g + i), vr(V_AC + 4 * g + i), vr(R + i))
        for i in range(2):
            b.valu("v_cvt_pk_bf16_f32", vr(X + 2 * g + i), vr(V_AC + 4 * g + 2 * i), vr(V_AC + 4 * g + 2 * i + 1))
        if g % 2 == 1:
            e = g // 2
            for i in range(2):
                b.valu("v_permlane32_swap_b32", vr(X + 4 * e + i), vr(X + 4 * e + 2 + i))
            b.vmem_store("buffer_store_dwordx4", vr(X + 4 * e, 4), vr(V_XOFF), sr(S_OUT, 4), "0",
                         mods=("offset:32 " if e else "") + ("sc1" if 'osc1' in OPT else ""))
    if STAMPS:
        b.raw("  s_waitcnt vmcnt(0)")
        stamp(b, 14)
        stamp_out(b)
    b.raw("  s_endpgm")
    for s_ in stubs:
        b.raw(s_)


NAME = "parallel_sum__sliding_block__glu_gated_reglu__prompt_kernel"
if __name__ == "__main__":
    hdr = open("parallel_sum__sliding_block__glu_gated_reglu__prompt.s.ref").read().split("; Override launch")[0]
    s = hdr + "; @launch grid=(256,1,1) block=(512,1,1) lds=163840\n"
    s += '.amdgcn_target "amdgcn-amd-amdhsa--gfx950"\n.text\n'
    s += kernel(NAME)
    s += f'''.section .rodata,"a"
.p2align 6
.amdhsa_kernel {NAME}
  .amdhsa_next_free_vgpr 256
  .amdhsa_next_free_sgpr 100
  .amdhsa_accum_offset 256
  .amdhsa_group_segment_fixed_size 0
  .amdhsa_kernarg_size 80
  .amdhsa_user_sgpr_count 2
  .amdhsa_user_sgpr_kernarg_segment_ptr 1
  .amdhsa_system_sgpr_workgroup_id_x 1
.end_amdhsa_kernel
'''
    open(sys.argv[1], "w").write(s)
```
